```python
import torch

def _softmax(x, axis=-1):
    return torch.softmax(x, dim=axis)
def _gelu(x):
    return torch.nn.functional.gelu(x, approximate="tanh")
def _silu(x):
    return torch.nn.functional.silu(x)
def _sigmoid(x):
    return torch.sigmoid(x)
def _layernorm(x, axis=-1, eps=1e-5):
    m = x.mean(dim=axis, keepdim=True)
    v = x.var(dim=axis, keepdim=True, unbiased=False)
    return (x - m) / torch.sqrt(v + eps)
def _scatter_add(tgt, idx, src, axis=0):
    return tgt.clone().index_add_(axis, idx, src)
def _segment_sum(src, seg, n):
    out = torch.zeros((n,) + src.shape[1:], dtype=src.dtype)
    return out.index_add_(0, seg, src)
def _pad(x, pw):
    flat = tuple(v for pair in reversed(pw) for v in pair)
    return torch.nn.functional.pad(x, flat)

kernel_name = 'gated_mix__compressed_kv_cla__linear_kernel_hedgehog__prompt'

def setup_inputs():

    _w = (lambda a: (lambda t: t.to(torch.bfloat16) if t.is_floating_point() else t)(torch.as_tensor(a)))
    def _A_setup():
        B, H, Sq, Sk, D, M = 1, 32, 2048, 2048, 128, 512
        Dc = 4 * D
        return {
            "x": _w((lambda *s: torch.randn(*s, dtype=torch.bfloat16) * 0.05)(B, Sq, M)),
            "c_kv": _w((lambda *s: torch.randn(*s, dtype=torch.bfloat16) * 0.8)(B, Sk, Dc)),
            "w_q": _w((lambda *s: torch.randn(*s, dtype=torch.bfloat16) * 6.4)(M, H, D) * (M ** -0.5)),
            "w_uk": _w((lambda *s: torch.randn(*s, dtype=torch.bfloat16) * 6.4)(Dc, H, D) * (Dc ** -0.5)),
            "w_uv": _w((lambda *s: torch.randn(*s, dtype=torch.bfloat16) * 0.8)(Dc, H, D) * (Dc ** -0.5)),
            "w_o": _w((lambda *s: torch.randn(*s, dtype=torch.bfloat16) * 0.8)(H, D, M) * ((H * D) ** -0.5)),
        }
    _A_in = _A_setup()

    def _B_setup():
        B, S, D, H = 1, 2048, 512, 32
        Dh = D // H
        return {
            "x": _w((lambda *s: torch.randn(*s, dtype=torch.bfloat16) * 0.05)(B, S, D)),
            "wqkv": _w((lambda *s: torch.randn(*s, dtype=torch.bfloat16) * 1.6)(D, 3 * D)),
            "w_phi": _w((lambda *s: torch.randn(*s, dtype=torch.bfloat16) * 1.6)(H, Dh, Dh) * (Dh ** -0.5)),
            "wo": _w((lambda *s: torch.randn(*s, dtype=torch.bfloat16) * 0.05)(D, D)),
        }
    _B_in = _B_setup()

    return {
        "A_x": _A_in["x"],
        "A_c_kv": _A_in["c_kv"],
        "A_w_q": _A_in["w_q"],
        "A_w_uk": _A_in["w_uk"],
        "A_w_uv": _A_in["w_uv"],
        "A_w_o": _A_in["w_o"],
        "B_x": _B_in["x"],
        "B_wqkv": _B_in["wqkv"],
        "B_w_phi": _B_in["w_phi"],
        "B_wo": _B_in["wo"],
        "gate_w": _w((lambda *s: torch.randn(*s, dtype=torch.bfloat16) * 0.05)(512) * 16.0),
    }

def reference(A_x, A_c_kv, A_w_q, A_w_uk, A_w_uv, A_w_o, B_x, B_wqkv, B_w_phi, B_wo, gate_w):
    def _A_ref(x, c_kv, w_q, w_uk, w_uv, w_o):
        B, Sq, M = x.shape[0], x.shape[1], x.shape[2]
        Sk = c_kv.shape[1]
        H, D = w_q.shape[1], w_q.shape[2]
        q = torch.einsum("bqm,mhd->bhqd", x, w_q)
        k = torch.einsum("bkc,chd->bhkd", c_kv, w_uk)
        v = torch.einsum("bkc,chd->bhkd", c_kv, w_uv)
        scores = torch.einsum("bhqd,bhkd->bhqk", q, k) * (D ** -0.5)
        off = Sk - Sq
        qi = torch.arange(Sq)[:, None]
        kj = torch.arange(Sk)[None, :]
        cmask = kj <= (qi + off)
        scores = torch.where(cmask[None, None], scores, -1e9)
        p = _softmax(scores, axis=-1)
        ctx = torch.einsum("bhqk,bhkd->bhqd", p, v)
        return torch.einsum("bhqd,hdm->bqm", ctx, w_o)

    def _B_ref(x, wqkv, w_phi, wo):
        B, S, D = x.shape
        H = 32; Dh = D // H
        qkv = (lambda x, *d: x.permute(*d))((x @ wqkv).reshape(B, S, 3, H, Dh), 2, 0, 3, 1, 4)
        q, k, v = qkv[0], qkv[1], qkv[2]
        pq = torch.einsum("bhsd,hdf->bhsf", q, w_phi)
        pk = torch.einsum("bhsd,hdf->bhsf", k, w_phi)
        phi_q = torch.concatenate([_softmax(pq, axis=-1), _softmax(-pq, axis=-1)], axis=-1)
        phi_k = torch.concatenate([_softmax(pk, axis=-1), _softmax(-pk, axis=-1)], axis=-1)
        kv = torch.einsum("bhsf,bhsd->bhfd", phi_k, v)
        z  = torch.einsum("bhsf->bhf", phi_k)
        num = torch.einsum("bhqf,bhfd->bhqd", phi_q, kv)
        den = torch.einsum("bhqf,bhf->bhq", phi_q, z)[..., None] + 1e-6
        o = num / den
        return (lambda x, *d: x.permute(*d))(o, 0, 2, 1, 3).reshape(B, S, D) @ wo

    x = A_x
    g = _sigmoid((x * gate_w).sum(-1, keepdims=True))
    a = _A_ref(x, A_c_kv, A_w_q, A_w_uk, A_w_uv, A_w_o)
    b = _B_ref(x, B_wqkv, B_w_phi, B_wo)
    return g * a + (1 - g) * b
```

```python
class Asm:
    guid = 0
    def __init__(self):
        self.L = []
        self.uid = 0
    def __call__(self, s):
        for ln in s.strip("\n").split("\n"):
            self.L.append("    " + ln.strip() if not ln.strip().endswith(":") else ln.strip())
    def label(self, base):
        Asm.guid += 1
        return f"L_{base}_{Asm.guid}"
    def text(self):
        return "\n".join(self.L) + "\n"

def vr(b, n=1):
    return f"v{b}" if n == 1 else f"v[{b}:{b+n-1}]"
def sr(b, n=1):
    return f"s{b}" if n == 1 else f"s[{b}:{b+n-1}]"

MB = 1 << 20
WS_Q = 0
WS_K = 16 * MB
WS_V = 32 * MB
WS_CTXO = 48 * MB
WS_QKVB = 68 * MB
WS_KVP = 76 * MB
WS_G = 78 * MB
WS_CNT = 79 * MB
WS_SIZE = 0x10000000
CTX_PITCH = 9216

def srd(a, d, lo, hi, size):
    a(f"s_mov_b32 s{d}, {lo}\ns_mov_b32 s{d+1}, {hi}\ns_mov_b32 s{d+2}, {hex(size)}\ns_mov_b32 s{d+3}, 0x00020000")

def srd_ws(a, d, wsreg, off, size):
    a(f"s_add_u32 s{d}, s{wsreg}, {hex(off)}\ns_addc_u32 s{d+1}, s{wsreg+1}, 0\ns_mov_b32 s{d+2}, {hex(size)}\ns_mov_b32 s{d+3}, 0x00020000")

def kernel_head(name):
    return f".globl {name}\n.p2align 8\n.type {name},@function\n{name}:\n"

def kernel_desc(name, vgpr, sgpr=102):
    acc = (vgpr + 3) // 4 * 4
    return f""".p2align 6
.amdhsa_kernel {name}
  .amdhsa_next_free_vgpr {vgpr}
  .amdhsa_next_free_sgpr {sgpr}
  .amdhsa_accum_offset {acc}
  .amdhsa_group_segment_fixed_size 0
  .amdhsa_kernarg_size 112
  .amdhsa_user_sgpr_count 2
  .amdhsa_user_sgpr_kernarg_segment_ptr 1
  .amdhsa_system_sgpr_workgroup_id_x 1
.end_amdhsa_kernel
"""
```

```python
from common import *
NWG1 = 1728
def gen_k1():
    a = Asm()
    ACC = 64
    XF = 128
    WF = 160
    VOX = 8; VOW = 12
    RX = 16; RW = 20
    a(f"""
    s_cmp_ge_u32 s2, {NWG1}
    s_cbranch_scc1 L_k1_end
    s_load_dwordx16 s[4:19], s[0:1], 0
    s_load_dwordx2 s[20:21], s[0:1], 104
    s_and_b32 s3, s2, 7
    s_mul_i32 s3, s3, 216
    s_lshr_b32 s22, s2, 3
    s_add_u32 s3, s3, s22
    s_lshr_b32 s40, s3, 4
    s_and_b32 s41, s3, 15
    v_lshrrev_b32 v1, 6, v0
    s_nop 0
    v_readfirstlane_b32 s42, v1
    v_and_b32 v2, 63, v0
    s_waitcnt lgkmcnt(0)
    """)
    a("""
    s_lshr_b32 s45, s40, 5
    s_and_b32 s44, s40, 31
    s_lshl_b32 s44, s44, 8
    s_mov_b32 s43, 8192
    s_mov_b32 s30, 0x400000
    s_mov_b32 s24, s6
    s_mov_b32 s25, s7
    s_mov_b32 s28, s10
    s_mov_b32 s29, s11
    s_cmp_eq_u32 s45, 2
    s_cselect_b32 s28, s12, s28
    s_cselect_b32 s29, s13, s29
    s_cmp_eq_u32 s45, 0
    s_cselect_b32 s28, s8, s28
    s_cselect_b32 s29, s9, s29
    s_cselect_b32 s24, s4, s24
    s_cselect_b32 s25, s5, s25
    s_cmp_eq_u32 s45, 3
    s_cselect_b32 s28, s18, s28
    s_cselect_b32 s29, s19, s29
    s_cselect_b32 s24, s4, s24
    s_cselect_b32 s25, s5, s25
    s_cselect_b32 s43, 3072, s43
    s_cselect_b32 s30, 0x180000, s30
    s_mov_b32 s26, 0x200000
    s_mov_b32 s27, 0x00020000
    s_mov_b32 s31, 0x00020000
    s_mov_b32 s32, s20
    s_mov_b32 s33, s21
    s_mov_b32 s34, 0x10000000
    s_mov_b32 s35, 0x00020000
    """)
    a("""
    v_lshrrev_b32 v3, 3, v2
    v_lshrrev_b32 v4, 4, v2
    v_and_b32 v5, 7, v2
    s_lshl_b32 s46, s42, 5
    s_lshl_b32 s47, s41, 7
    s_add_u32 s46, s46, s47
    v_add_u32 v3, s46, v3
    """)
    for i in range(4):
        a(f"""
        v_add_u32 v6, {(i&1)*4}, v4
        v_xor_b32 v6, v5, v6
        v_lshlrev_b32 v6, 4, v6
        v_add_u32 v7, {8*i}, v3
        v_lshl_add_u32 v{VOX+i}, v7, 10, v6
        """)
    a("""
    v_and_b32 v5, 15, v2
    v_lshlrev_b32 v6, 2, v4
    v_xor_b32 v5, v5, v6
    v_lshlrev_b32 v5, 4, v5
    v_add_u32 v5, s44, v5
    s_lshl_b32 s46, s42, 4
    v_add_u32 v4, s46, v4
    """)
    for i in range(4):
        a(f"""
        v_add_u32 v6, {4*i}, v4
        v_mul_lo_u32 v6, v6, s43
        v_add_u32 v{VOW+i}, v6, v5
        """)
    a("""
    s_lshr_b32 s48, s42, 1
    s_and_b32 s49, s42, 1
    v_and_b32 v3, 31, v2
    v_lshrrev_b32 v4, 5, v2
    s_lshl_b32 s46, s48, 6
    v_add_u32 v5, s46, v3
    v_lshrrev_b32 v6, 1, v3
    v_and_b32 v6, 7, v6
    v_xor_b32 v6, v6, v4
    v_lshlrev_b32 v6, 4, v6
    """)
    a(f"v_lshl_add_u32 v{RX}, v5, 7, v6")
    for s in range(1, 4):
        a(f"v_xor_b32 v{RX+s}, {s*32}, v{RX}")
    a("""
    v_lshrrev_b32 v3, 2, v2
    v_and_b32 v3, 3, v3
    v_lshrrev_b32 v4, 5, v2
    v_lshl_add_u32 v4, v4, 3, v3
    v_lshlrev_b32 v4, 8, v4
    v_and_b32 v5, 3, v2
    v_lshlrev_b32 v5, 3, v5
    v_bfe_u32 v6, v2, 4, 1
    v_lshl_add_u32 v5, v6, 5, v5
    v_add_u32 v4, v4, v5
    v_add_u32 v4, 16384, v4
    s_lshl_b32 s46, s49, 1
    """)
    for nb in range(2):
        a(f"""
        s_add_u32 s47, s46, {nb}
        v_xor_b32 v5, s47, v3
        v_lshl_add_u32 v{RW+nb}, v5, 6, v4
        """)
    a("""
    s_mov_b32 s50, 0
    s_mov_b32 s51, 0
    s_lshl_b32 s52, s43, 6
    s_lshl_b32 s53, s42, 12
    """)
    def loads(stage):
        for i in range(4):
            a(f"s_add_u32 m0, s53, {stage*32768 + i*1024}\ns_nop 0\nbuffer_load_dwordx4 v{VOX+i}, s[24:27], s50 offen lds")
        for i in range(4):
            a(f"s_add_u32 m0, s53, {stage*32768 + 16384 + i*1024}\ns_nop 0\nbuffer_load_dwordx4 v{VOW+i}, s[28:31], s51 offen lds")
        a("s_add_u32 s50, s50, 128\ns_add_u32 s51, s51, s52")
    def reads(stage, s):
        o = stage * 32768
        for mb in range(2):
            a(f"ds_read_b128 {vr(XF+(s*2+mb)*4,4)}, v{RX+s} offset:{o+mb*4096}")
        for nb in range(2):
            b = WF + (s*2+nb)*4
            a(f"ds_read_b64_tr_b16 {vr(b,2)}, v{RW+nb} offset:{o+s*4096}")
            a(f"ds_read_b64_tr_b16 {vr(b+2,2)}, v{RW+nb} offset:{o+s*4096+1024}")
    def mfmas(s, vtype, first):
        for mb in range(2):
            for nb in range(2):
                acc = vr(ACC+(mb*2+nb)*16, 16)
                xf = vr(XF+(s*2+mb)*4, 4); wf = vr(WF+(s*2+nb)*4, 4)
                c = "0" if first else acc
                if vtype: a(f"v_mfma_f32_32x32x16_bf16 {acc}, {xf}, {wf}, {c}")
                else: a(f"v_mfma_f32_32x32x16_bf16 {acc}, {wf}, {xf}, {c}")
    def mainloop(vtype):
        for kk in range(8):
            st = kk & 1
            a("s_waitcnt vmcnt(0)\ns_barrier")
            if kk < 7: loads(st ^ 1)
            reads(st, 0); reads(st, 1); reads(st, 2)
            a("s_waitcnt lgkmcnt(12)")
            mfmas(0, vtype, kk == 0)
            reads(st, 3)
            a("s_waitcnt lgkmcnt(12)")
            mfmas(1, vtype, False)
            a("s_waitcnt lgkmcnt(6)")
            mfmas(2, vtype, False)
            a("s_waitcnt lgkmcnt(0)")
            mfmas(3, vtype, False)
        a("s_nop 15")
    loads(0)
    a("s_cmp_eq_u32 s45, 2\ns_cbranch_scc1 L_k1_vtype")
    mainloop(False)
    a(f"""
    s_and_b32 s46, s40, 31
    s_lshl_b32 s46, s46, 19
    s_mov_b32 s54, 256
    s_mov_b32 s55, 0
    s_cmp_eq_u32 s45, 1
    s_cselect_b32 s55, 15, s55
    s_cselect_b32 s47, {hex(WS_K)}, 0
    s_add_u32 s46, s46, s47
    s_add_u32 s47, s44, {hex(WS_QKVB)}
    s_cmp_eq_u32 s45, 3
    s_cselect_b32 s46, s47, s46
    s_cselect_b32 s54, 3072, s54
    v_and_b32 v3, 31, v2
    v_lshrrev_b32 v4, 5, v2
    s_lshl_b32 s47, s41, 7
    s_lshl_b32 s56, s48, 6
    s_add_u32 s47, s47, s56
    v_add_u32 v5, s47, v3
    v_mul_lo_u32 v5, v5, s54
    v_add_u32 v5, s46, v5
    v_and_b32 v3, s55, v3
    s_lshl_b32 s47, s49, 3
    v_add_u32 v4, s47, v4
    s_lshl_b32 s56, s54, 5
    """)
    for mb in range(2):
        for nb in range(2):
            for hf in range(2):
                b = ACC + (mb*2+nb)*16 + hf*8
                for p in range(4):
                    a(f"v_cvt_pk_bf16_f32 v{192+p}, v{b+2*p}, v{b+2*p+1}")
                a(f"""
                v_add_u32 v6, {nb*4+hf*2}, v4
                v_xor_b32 v6, v6, v3
                v_lshl_add_u32 v6, v6, 4, v5
                buffer_store_dwordx4 v[192:195], v6, s[32:35], 0 offen
                s_nop 1
                """)
        if mb == 0: a("v_add_u32 v5, s56, v5")
    a("s_branch L_k1_end")
    a("L_k1_vtype:")
    mainloop(True)
    a(f"""
    s_and_b32 s46, s40, 31
    s_lshl_b32 s46, s46, 5
    s_lshl_b32 s47, s41, 1
    s_add_u32 s46, s46, s47
    s_add_u32 s46, s46, s48
    s_lshl_b32 s46, s46, 14
    s_add_u32 s46, s46, {hex(WS_V)}
    v_and_b32 v3, 31, v2
    v_lshrrev_b32 v4, 5, v2
    s_lshl_b32 s47, s49, 6
    v_add_u32 v5, s47, v3
    v_lshlrev_b32 v5, 7, v5
    v_add_u32 v5, s46, v5
    v_lshrrev_b32 v3, 1, v3
    v_and_b32 v3, 7, v3
    """)
    for nb in range(2):
        for mb in range(2):
            for hf in range(2):
                b = ACC + (mb*2+nb)*16 + hf*8
                for p in range(4):
                    a(f"v_cvt_pk_bf16_f32 v{192+p}, v{b+2*p}, v{b+2*p+1}")
                a(f"""
                v_add_u32 v6, {mb*4+hf*2}, v4
                v_xor_b32 v6, v6, v3
                v_lshl_add_u32 v6, v6, 4, v5
                buffer_store_dwordx4 v[192:195], v6, s[32:35], 0 offen
                s_nop 1
                """)
        if nb == 0: a("v_add_u32 v5, 4096, v5")
    a("L_k1_end:\ns_endpgm")
    return a.text()
```

```python
from common import *
import struct
def f32bits(x): return struct.unpack("<I", struct.pack("<f", x))[0]
NWG2 = 256
O = 64; S = 128; P = 160; Q = 176; F = 208
KA = 8; VA = 16
VM = 20; VL = 21; VTHR = 22; VDMA = 23
KB = [0, 32768]; VB = [65536, 98304]
def gen_k2():
    a = Asm()
    a(f"""
    s_cmp_ge_u32 s2, {NWG2}
    s_cbranch_scc1 L_k2_end
    s_load_dwordx2 s[4:5], s[0:1], 104
    s_and_b32 s24, s2, 7
    s_lshl_b32 s24, s24, 2
    s_bfe_u32 s3, s2, 0x20003
    s_add_u32 s24, s24, s3
    s_lshr_b32 s25, s2, 5
    v_lshrrev_b32 v1, 6, v0
    s_nop 0
    v_readfirstlane_b32 s26, v1
    v_and_b32 v2, 63, v0
    s_lshr_b32 s27, s26, 2
    s_and_b32 s28, s26, 3
    s_lshl_b32 s34, s26, 12
    s_mov_b32 s35, {hex(f32bits(128**-0.5 * 1.4426950408889634))}
    s_lshl_b32 s3, s24, 19
    s_waitcnt lgkmcnt(0)
    s_add_u32 s6, s4, s3
    s_addc_u32 s7, s5, 0
    """)
    srd_ws(a, 8, 6, WS_K, 0x80000)
    srd_ws(a, 12, 6, WS_V, 0x80000)
    srd_ws(a, 16, 6, WS_Q, 0x80000)
    srd_ws(a, 20, 4, WS_CTXO, 2048*CTX_PITCH)
    a(f"""
    v_and_b32 v3, 31, v2
    v_lshrrev_b32 v4, 5, v2
    v_lshlrev_b32 v{VDMA}, 4, v2
    v_add_u32 v{VDMA}, s34, v{VDMA}
    s_lshl_b32 s3, s27, 14
    v_and_b32 v5, 15, v2
    v_xor_b32 v5, v5, v4
    v_lshlrev_b32 v5, 4, v5
    v_lshl_add_u32 v5, v3, 8, v5
    v_add_u32 v{KA}, s3, v5
    v_bfe_u32 v5, v2, 1, 3
    v_xor_b32 v5, v5, v4
    v_lshlrev_b32 v5, 4, v5
    v_lshl_add_u32 v5, v3, 7, v5
    v_add_u32 v{VA}, s3, v5
    v_add_u32 v{VA}, 0x10000, v{VA}
    s_lshl_b32 s3, s28, 5
    s_lshl_b32 s37, s27, 6
    s_sub_u32 s3, s3, s37
    v_lshlrev_b32 v5, 2, v4
    v_sub_u32 v5, v3, v5
    v_add_u32 v{VTHR}, s3, v5
    s_mov_b32 s36, 0
    """)
    for s in range(1, 8): a(f"v_xor_b32 v{KA+s}, {s*32}, v{KA}")
    for s in range(1, 4): a(f"v_xor_b32 v{VA+s}, {s*32}, v{VA}")

    def dma(srdreg, soff, buf):
        a(f"s_add_u32 m0, s34, {buf}\ns_nop 0")
        for j in range(4):
            a(f"buffer_load_dwordx4 v{VDMA}, s[{srdreg}:{srdreg+3}], {soff} offen offset:{j*1024} lds")
    def QK(par):
        seq = [(s, kb) for s in range(8) for kb in range(2)]
        def rd(i):
            s, kb = seq[i]
            a(f"ds_read_b128 {vr(F+(i%8)*4,4)}, v{KA+s} offset:{KB[par]+kb*8192}")
        for i in range(8): rd(i)
        for i, (s, kb) in enumerate(seq):
            a(f"s_waitcnt lgkmcnt({min(7, 15-i)})")
            acc = vr(S+kb*16, 16)
            a(f"v_mfma_f32_32x32x16_bf16 {acc}, {vr(F+(i%8)*4,4)}, {vr(Q+s*4,4)}, {'0' if s==0 else acc}")
            if i + 8 < 16: rd(i+8)
    def PV(par):
        seq = [(s, db) for s in range(4) for db in range(4)]
        def rd(i):
            s, db = seq[i]
            a(f"ds_read_b128 {vr(F+(i%8)*4,4)}, v{VA+s} offset:{VB[par]-65536+db*4096}")
        for i in range(8): rd(i)
        for i, (s, db) in enumerate(seq):
            a(f"s_waitcnt lgkmcnt({min(7, 15-i)})")
            acc = vr(O+db*16, 16)
            a(f"v_mfma_f32_32x32x16_bf16 {acc}, {vr(F+(i%8)*4,4)}, {vr(P+s*4,4)}, {acc}")
            if i + 8 < 16: rd(i+8)
    def SM(maskcmp):
        lk = a.label("nomask")
        a(maskcmp)
        a(f"s_cbranch_scc0 {lk}")
        a("v_mov_b32 v24, 0xf149f2ca")
        for kb in range(2):
            for r in range(16):
                c = kb*32 + (r//4)*8 + r % 4
                a(f"v_cmp_gt_i32 vcc, {c}, v{VTHR}\ns_nop 1\nv_cndmask_b32 v{S+kb*16+r}, v{S+kb*16+r}, v24, vcc")
        a(f"{lk}:")
        a(f"v_max3_f32 v24, v{S}, v{S+1}, v{S+2}\nv_max3_f32 v25, v{S+16}, v{S+17}, v{S+18}")
        for i in range(3, 15, 2):
            a(f"v_max3_f32 v24, v24, v{S+i}, v{S+i+1}\nv_max3_f32 v25, v25, v{S+16+i}, v{S+16+i+1}")
        a(f"""
        v_max3_f32 v24, v24, v{S+15}, v25
        v_max_f32 v24, v24, v{S+31}
        v_mov_b32 v25, v24
        s_nop 1
        v_permlane32_swap_b32 v24, v25
        s_nop 1
        v_max_f32 v24, v24, v25
        v_mul_f32 v24, s35, v24
        v_max_f32 v25, v{VM}, v24
        v_sub_f32 v26, v{VM}, v25
        v_exp_f32 v26, v26
        v_mov_b32 v{VM}, v25
        """)
        for i in range(32): a(f"v_fma_f32 v{S+i}, v{S+i}, s35, -v25")
        for i in range(32): a(f"v_exp_f32 v{S+i}, v{S+i}")
        a(f"v_mul_f32 v{VL}, v{VL}, v26\nv_add_f32 v27, v{S}, v{S+1}")
        for i in range(2, 32, 2):
            a(f"v_add_f32 v{VL}, v{VL}, v{S+i}\nv_add_f32 v27, v27, v{S+i+1}")
        a(f"v_add_f32 v{VL}, v{VL}, v27")
        for i in range(16): a(f"v_cvt_pk_bf16_f32 v{P+i}, v{S+2*i}, v{S+2*i+1}")
        for i in range(64): a(f"v_mul_f32 v{O+i}, v26, v{O+i}")
    def top(par):
        l1 = a.label("nov"); l2 = a.label("nok")
        a(f"""
        s_waitcnt vmcnt(0)
        s_barrier
        s_add_u32 s3, s31, 1
        s_cmp_ge_u32 s3, s30
        s_cbranch_scc1 {l2}
        s_lshl_b32 s33, s3, 15
        """)
        dma(12, "s33", VB[par ^ 1])
        a(f"""
        s_add_u32 s3, s31, 2
        s_cmp_ge_u32 s3, s30
        s_cbranch_scc1 {l2}
        s_lshl_b32 s32, s3, 15
        """)
        dma(8, "s32", KB[par])
        a(f"{l2}:")

    a("L_k2_pass:")
    a(f"""
    s_sub_u32 s29, 15, s25
    s_cmp_eq_u32 s36, 0
    s_cselect_b32 s29, s29, s25
    s_add_u32 s30, s29, 1
    s_lshl_b32 s3, s29, 7
    s_lshl_b32 s37, s28, 5
    s_add_u32 s3, s3, s37
    v_add_u32 v5, s3, v3
    v_lshlrev_b32 v5, 8, v5
    v_lshl_add_u32 v5, v4, 4, v5
    """)
    for s in range(8): a(f"buffer_load_dwordx4 {vr(Q+s*4,4)}, v5, s[16:19], 0 offen offset:{s*32}")
    dma(8, "0", KB[0]); dma(12, "0", VB[0])
    lk = a.label("nok1")
    a(f"s_cmp_lt_u32 s30, 2\ns_cbranch_scc1 {lk}\ns_mov_b32 s32, 32768")
    dma(8, "s32", KB[1])
    a(f"{lk}:")
    a(f"v_mov_b32 v{VM}, 0xe0ad78ec\nv_mov_b32 v{VL}, 0")
    for i in range(64): a(f"v_mov_b32 v{O+i}, 0")
    a("s_mov_b32 s31, 0\ns_waitcnt vmcnt(0)\ns_barrier")
    QK(0)
    a("s_cmp_eq_u32 s27, 0\ns_cbranch_scc0 L_k2_g1")
    a("L_k2_g0loop:")
    for par in range(2):
        top(par)
        a("s_nop 7")
        SM("s_add_u32 s3, s31, 1\ns_cmp_eq_u32 s3, s30")
        PV(par)
        a("s_add_u32 s31, s31, 1\ns_cmp_ge_u32 s31, s30\ns_cbranch_scc1 L_k2_g0done")
        QK(par ^ 1)
    a("s_branch L_k2_g0loop")
    def merge(g):
        keep = O + (0 if g == 0 else 32); send = O + (32 if g == 0 else 0)
        a(f"""
        s_nop 15
        v_mov_b32 v25, v{VL}
        s_nop 1
        v_permlane32_swap_b32 v{VL}, v25
        s_nop 1
        v_add_f32 v{VL}, v{VL}, v25
        s_mul_i32 s3, s26, 8704
        v_lshlrev_b32 v5, 4, v2
        v_add_u32 v5, s3, v5
        v_lshlrev_b32 v6, 2, v2
        v_add_u32 v6, s3, v6
        s_xor_b32 s37, s26, 4
        s_mul_i32 s37, s37, 8704
        s_barrier
        """)
        for q in range(8): a(f"ds_write_b128 v5, {vr(send+q*4,4)} offset:{q*1024}")
        a(f"""
        ds_write_b32 v6, v{VM} offset:8192
        ds_write_b32 v6, v{VL} offset:8448
        v_lshlrev_b32 v5, 4, v2
        v_add_u32 v5, s37, v5
        v_lshlrev_b32 v6, 2, v2
        v_add_u32 v6, s37, v6
        s_waitcnt lgkmcnt(0)
        s_barrier
        ds_read_b32 v24, v6 offset:8192
        ds_read_b32 v25, v6 offset:8448
        """)
        for q in range(8): a(f"ds_read_b128 {vr(S+q*4,4)}, v5 offset:{q*1024}")
        a(f"""
        s_waitcnt lgkmcnt(8)
        v_max_f32 v26, v{VM}, v24
        v_sub_f32 v27, v{VM}, v26
        v_sub_f32 v28, v24, v26
        v_exp_f32 v27, v27
        v_exp_f32 v28, v28
        s_nop 0
        v_mul_f32 v29, v27, v{VL}
        v_fma_f32 v29, v28, v25, v29
        v_rcp_f32 v29, v29
        s_nop 0
        v_mul_f32 v27, v27, v29
        v_mul_f32 v28, v28, v29
        s_lshl_b32 s3, s29, 7
        s_lshl_b32 s37, s28, 5
        s_add_u32 s3, s3, s37
        v_add_u32 v5, s3, v3
        s_movk_i32 s37, {CTX_PITCH}
        v_mul_lo_u32 v5, v5, s37
        v_lshl_add_u32 v5, v4, 4, v5
        s_lshl_b32 s3, s24, 8
        s_add_u32 s3, s3, {g*128}
        v_add_u32 v5, s3, v5
        s_waitcnt lgkmcnt(0)
        """)
        for i in range(32):
            a(f"v_mul_f32 v{keep+i}, v27, v{keep+i}\nv_fma_f32 v{keep+i}, v28, v{S+i}, v{keep+i}")
        for q in range(4):
            for p in range(4):
                a(f"v_cvt_pk_bf16_f32 v{P+q*4+p}, v{keep+q*8+2*p}, v{keep+q*8+2*p+1}")
            a(f"buffer_store_dwordx4 {vr(P+q*4,4)}, v5, s[20:23], 0 offen offset:{q*32}")
        a("""
        s_barrier
        s_add_u32 s36, s36, 1
        s_cmp_lt_u32 s36, 2
        s_cbranch_scc1 L_k2_pass
        s_branch L_k2_end
        """)
    a("L_k2_g0done:")
    merge(0)
    a("L_k2_g1:")
    a("s_nop 15")
    SM("s_cmp_eq_u32 s30, 1")
    a("L_k2_g1loop:")
    for par in range(2):
        top(par)
        PV(par)
        a("s_add_u32 s31, s31, 1\ns_cmp_ge_u32 s31, s30\ns_cbranch_scc1 L_k2_g1done")
        QK(par ^ 1)
        a("s_nop 15")
        SM("s_add_u32 s3, s31, 1\ns_cmp_eq_u32 s3, s30")
    a("s_branch L_k2_g1loop")
    a("L_k2_g1done:")
    merge(1)
    a("L_k2_end:\ns_endpgm")
    return a.text()
```

```python
from common import *
import struct
def f32bits(x): return struct.unpack("<I", struct.pack("<f", x))[0]
LOG2E = hex(f32bits(1.4426950408889634))

def rnd16(a, T, tmp):
    for i in range(8):
        a(f"v_cvt_pk_bf16_f32 v{tmp}, v{T+2*i}, v{T+2*i+1}\nv_lshlrev_b32 v{T+2*i}, 16, v{tmp}\nv_and_b32 v{T+2*i+1}, 0xffff0000, v{tmp}")

def softmax16(a, T, t0):
    for hb in (0, 8):
        B = T + hb
        a(f"""
        v_max3_f32 v{t0}, v{B}, v{B+1}, v{B+2}
        v_max3_f32 v{t0}, v{t0}, v{B+3}, v{B+4}
        v_max3_f32 v{t0}, v{t0}, v{B+5}, v{B+6}
        v_max_f32 v{t0}, v{t0}, v{B+7}
        v_mov_b32 v{t0+1}, v{t0}
        s_nop 1
        v_permlane32_swap_b32 v{t0}, v{t0+1}
        s_nop 1
        v_max_f32 v{t0}, v{t0}, v{t0+1}
        v_mul_f32 v{t0}, s40, v{t0}
        """)
        for i in range(8): a(f"v_fma_f32 v{B+i}, v{B+i}, s40, -v{t0}")
        for i in range(8): a(f"v_exp_f32 v{B+i}, v{B+i}")
        a(f"s_nop 0\nv_add_f32 v{t0}, v{B}, v{B+1}")
        for i in range(2, 8): a(f"v_add_f32 v{t0}, v{t0}, v{B+i}")
        a(f"""
        v_mov_b32 v{t0+1}, v{t0}
        s_nop 1
        v_permlane32_swap_b32 v{t0}, v{t0+1}
        s_nop 1
        v_add_f32 v{t0}, v{t0}, v{t0+1}
        v_rcp_f32 v{t0}, v{t0}
        s_nop 0
        """)
        for i in range(8): a(f"v_mul_f32 v{B+i}, v{B+i}, v{t0}")

def wphi_frag(a, W):
    a("""
    v_and_b32 v5, 15, v3
    v_lshlrev_b32 v5, 1, v5
    v_lshl_add_u32 v5, v4, 7, v5
    s_lshl_b32 s3, s24, 9
    v_add_u32 v5, s3, v5
    """)
    for j in range(8):
        a(f"buffer_load_ushort v{40+j}, v5, s[8:11], 0 offen offset:{((j//4)*8 + j%4)*32}")
    a("v_cmp_lt_u32 vcc, 15, v3\nv_mov_b32 v6, 0\nv_mov_b32 v7, 0x80008000\ns_nop 0\nv_cndmask_b32 v6, v6, v7, vcc\ns_waitcnt vmcnt(0)")
    for p in range(4):
        a(f"v_lshl_or_b32 v{W+p}, v{41+2*p}, 16, v{40+2*p}\nv_xor_b32 v{W+p}, v{W+p}, v6")

def head_common(a, nwg, endl):
    a(f"""
    s_cmp_ge_u32 s2, {nwg}
    s_cbranch_scc1 {endl}
    s_load_dwordx2 s[4:5], s[0:1], 104
    s_load_dwordx2 s[6:7], s[0:1], 64
    s_load_dwordx2 s[44:45], s[0:1], 0
    s_load_dwordx2 s[46:47], s[0:1], 80
    v_lshrrev_b32 v1, 6, v0
    s_nop 0
    v_readfirstlane_b32 s26, v1
    v_and_b32 v2, 63, v0
    v_and_b32 v3, 31, v2
    v_lshrrev_b32 v4, 5, v2
    s_lshr_b32 s24, s2, 2
    s_and_b32 s25, s2, 3
    s_mov_b32 s40, {LOG2E}
    s_waitcnt lgkmcnt(0)
    """)
    srd(a, 8, "s6", "s7", 16384)
    srd_ws(a, 12, 4, WS_QKVB, 2048*3072)
    srd_ws(a, 16, 4, WS_KVP, 32*4*4096)

def gen_k3a():
    a = Asm()
    head_common(a, 192, "L_k3a_end")
    a("s_cmp_ge_u32 s2, 128\ns_cbranch_scc1 L_k3a_gate")
    W = 8; T = 16; ACC = 64; AF = 32; BF = 36
    wphi_frag(a, W)
    a(f"""
    s_lshl_b32 s3, s25, 9
    s_lshl_b32 s27, s26, 7
    s_add_u32 s3, s3, s27
    v_add_u32 v5, s3, v3
    s_movk_i32 s27, 3072
    v_mul_lo_u32 v5, v5, s27
    v_lshl_add_u32 v5, v4, 4, v5
    s_lshl_b32 s3, s24, 5
    v_add_u32 v12, s3, v5
    s_lshl_b32 s28, s26, 12
    v_lshlrev_b32 v13, 6, v3
    v_add_u32 v13, s28, v13
    v_lshl_add_u32 v14, v4, 3, v13
    v_lshl_add_u32 v13, v4, 4, v13
    v_lshrrev_b32 v6, 5, v2
    v_bfe_u32 v7, v2, 2, 2
    v_lshl_add_u32 v6, v6, 3, v7
    v_lshlrev_b32 v6, 6, v6
    v_and_b32 v7, 3, v2
    v_lshl_add_u32 v6, v7, 3, v6
    v_bfe_u32 v7, v2, 4, 1
    v_lshl_add_u32 v6, v7, 5, v6
    v_add_u32 v15, s28, v6
    v_mov_b32 v40, 0
    v_mov_b32 v41, 0
    v_mov_b32 v42, 0
    v_mov_b32 v43, 0
    v_mov_b32 v7, 0x3f80
    v_cmp_eq_u32 vcc, 0, v4
    s_nop 1
    v_cndmask_b32 v40, v40, v7, vcc
    ds_write_b128 v13, v[40:43] offset:{2048+32}
    s_mov_b32 s29, 0
    """)
    for blk in range(4):
        a(f"""
        buffer_load_dwordx4 v[44:47], v12, s[12:15], s29 offen offset:1024
        buffer_load_dwordx4 v[48:51], v12, s[12:15], s29 offen offset:2048
        s_add_u32 s29, s29, {32*3072}
        s_waitcnt vmcnt(1)
        v_mfma_f32_32x32x16_bf16 {vr(T,16)}, {vr(W,4)}, v[44:47], 0
        s_waitcnt vmcnt(0)
        ds_write_b128 v13, v[48:51] offset:2048
        s_nop 15
        """)
        rnd16(a, T, 40)
        softmax16(a, T, 40)
        for p in range(8): a(f"v_cvt_pk_bf16_f32 v{44+p}, v{T+2*p}, v{T+2*p+1}")
        for q in range(4): a(f"ds_write_b64 v14, {vr(44+2*q,2)} offset:{q*16}")
        a("s_waitcnt lgkmcnt(0)")
        for ks in range(2):
            a(f"""
            ds_read_b64_tr_b16 {vr(AF,2)}, v15 offset:{ks*1024}
            ds_read_b64_tr_b16 {vr(AF+2,2)}, v15 offset:{ks*1024+256}
            ds_read_b64_tr_b16 {vr(BF,2)}, v15 offset:{2048+ks*1024}
            ds_read_b64_tr_b16 {vr(BF+2,2)}, v15 offset:{2048+ks*1024+256}
            s_waitcnt lgkmcnt(0)
            v_mfma_f32_32x32x16_bf16 {vr(ACC,16)}, {vr(AF,4)}, {vr(BF,4)}, {'0' if blk==0 and ks==0 else vr(ACC,16)}
            """)
    a("""
    s_nop 15
    v_lshlrev_b32 v5, 4, v2
    v_add_u32 v6, s28, v5
    """)
    for q in range(4): a(f"ds_write_b128 v6, {vr(ACC+q*4,4)} offset:{16384+q*1024}")
    a("""
    s_waitcnt lgkmcnt(0)
    s_barrier
    s_lshl_b32 s3, s26, 10
    v_add_u32 v5, s3, v5
    """)
    for w in range(4): a(f"ds_read_b128 {vr(16+w*4,4)}, v5 offset:{16384+w*4096}")
    a("s_waitcnt lgkmcnt(0)")
    for i in range(4):
        a(f"v_add_f32 v{16+i}, v{16+i}, v{20+i}\nv_add_f32 v{24+i}, v{24+i}, v{28+i}\nv_add_f32 v{16+i}, v{16+i}, v{24+i}")
    a("""
    s_lshl_b32 s3, s2, 12
    s_lshl_b32 s27, s26, 10
    s_add_u32 s3, s3, s27
    v_lshlrev_b32 v5, 2, v2
    v_add_u32 v5, s3, v5
    """)
    for i in range(4): a(f"buffer_store_dword v{16+i}, v5, s[16:19], 0 offen offset:{i*256}")
    a("s_branch L_k3a_end")
    a("L_k3a_gate:")
    srd(a, 8, "s44", "s45", 0x200000)
    srd(a, 12, "s46", "s47", 1024)
    srd_ws(a, 16, 4, WS_G, 8192)
    a("""
    s_sub_u32 s3, s2, 128
    s_lshl_b32 s3, s3, 5
    s_lshl_b32 s27, s26, 3
    s_add_u32 s3, s3, s27
    v_lshrrev_b32 v5, 3, v2
    v_add_u32 v5, s3, v5
    v_and_b32 v6, 7, v2
    v_lshlrev_b32 v6, 7, v6
    v_lshl_add_u32 v7, v5, 10, v6
    """)
    for j in range(8):
        a(f"buffer_load_dwordx4 {vr(16+j*4,4)}, v7, s[8:11], 0 offen offset:{j*16}")
        a(f"buffer_load_dwordx4 {vr(64+j*4,4)}, v6, s[12:15], 0 offen offset:{j*16}")
    a("v_mov_b32 v8, 0\nv_mov_b32 v9, 0\ns_waitcnt vmcnt(0)")
    for i in range(32):
        a(f"""
        v_lshlrev_b32 v10, 16, v{16+i}
        v_lshlrev_b32 v11, 16, v{64+i}
        v_fmac_f32 v8, v10, v11
        v_and_b32 v10, 0xffff0000, v{16+i}
        v_and_b32 v11, 0xffff0000, v{64+i}
        v_fmac_f32 v9, v10, v11
        """)
    a("v_add_f32 v8, v8, v9")
    for off in (0x041F, 0x081F, 0x101F):
        a(f"ds_swizzle_b32 v9, v8 offset:{hex(off)}\ns_waitcnt lgkmcnt(0)\nv_add_f32 v8, v8, v9")
    a("""
    v_cvt_pk_bf16_f32 v8, v8, v8
    v_and_b32 v8, 0xffff0000, v8
    v_mul_f32 v8, s40, v8
    v_sub_f32 v8, 0, v8
    v_exp_f32 v8, v8
    s_nop 0
    v_add_f32 v8, 1.0, v8
    v_rcp_f32 v8, v8
    s_nop 0
    v_cvt_pk_bf16_f32 v8, v8, v8
    v_and_b32 v8, 0xffff0000, v8
    v_lshlrev_b32 v5, 2, v5
    buffer_store_dword v8, v5, s[16:19], 0 offen
    """)
    a("L_k3a_end:\ns_endpgm")
    return a.text()

def gen_k3b():
    a = Asm()
    head_common(a, 128, "L_k3b_end")
    srd_ws(a, 20, 4, WS_CTXO, 2048*CTX_PITCH)
    W = 8; T = 16; KVF = 32; PF = 52; D2 = 96
    wphi_frag(a, W)
    a("""
    s_lshl_b32 s3, s24, 14
    v_lshlrev_b32 v5, 2, v2
    v_add_u32 v5, s3, v5
    """)
    for c in range(4):
        a(f"s_movk_i32 s27, {c*4096}")
        for r in range(16): a(f"buffer_load_dword v{64+c*16+r}, v5, s[16:19], s27 offen offset:{r*256}")
    a("s_waitcnt vmcnt(0)")
    for r in range(16):
        a(f"v_add_f32 v{64+r}, v{64+r}, v{80+r}\nv_add_f32 v{96+r}, v{96+r}, v{112+r}\nv_add_f32 v{64+r}, v{64+r}, v{96+r}")
    for p in range(8): a(f"v_cvt_pk_bf16_f32 v{KVF+p}, v{64+2*p}, v{64+2*p+1}")
    a(f"""
    s_lshl_b32 s3, s25, 9
    s_lshl_b32 s27, s26, 7
    s_add_u32 s3, s3, s27
    v_add_u32 v5, s3, v3
    s_movk_i32 s27, 3072
    v_mul_lo_u32 v6, v5, s27
    v_lshl_add_u32 v6, v4, 4, v6
    s_lshl_b32 s3, s24, 5
    v_add_u32 v12, s3, v6
    s_movk_i32 s27, {CTX_PITCH}
    v_mul_lo_u32 v6, v5, s27
    v_lshl_add_u32 v6, v4, 4, v6
    s_add_u32 s3, s3, 8192
    v_add_u32 v13, s3, v6
    s_mov_b32 s29, 0
    s_mov_b32 s30, 0
    """)
    for blk in range(4):
        a(f"""
        buffer_load_dwordx4 v[44:47], v12, s[12:15], s29 offen
        s_add_u32 s29, s29, {32*3072}
        s_waitcnt vmcnt(0)
        v_mfma_f32_32x32x16_bf16 {vr(T,16)}, {vr(W,4)}, v[44:47], 0
        s_nop 15
        """)
        rnd16(a, T, 40)
        softmax16(a, T, 40)
        for p in range(8): a(f"v_cvt_pk_bf16_f32 v{PF+p}, v{T+2*p}, v{T+2*p+1}")
        a(f"""
        s_nop 1
        v_mfma_f32_32x32x16_bf16 {vr(D2,16)}, {vr(KVF,4)}, {vr(PF,4)}, 0
        v_mfma_f32_32x32x16_bf16 {vr(D2,16)}, {vr(KVF+4,4)}, {vr(PF+4,4)}, {vr(D2,16)}
        s_nop 15
        v_mov_b32 v40, v{D2+8}
        v_mov_b32 v41, v{D2+8}
        s_nop 1
        v_permlane32_swap_b32 v40, v41
        s_nop 1
        v_cvt_pk_bf16_f32 v40, v40, v40
        v_and_b32 v40, 0xffff0000, v40
        v_add_f32 v40, 0x358637bd, v40
        v_cvt_pk_bf16_f32 v40, v40, v40
        v_and_b32 v40, 0xffff0000, v40
        v_rcp_f32 v40, v40
        """)
        for i in range(4):
            a(f"v_cvt_pk_bf16_f32 v41, v{D2+2*i}, v{D2+2*i+1}\nv_lshlrev_b32 v{D2+2*i}, 16, v41\nv_and_b32 v{D2+2*i+1}, 0xffff0000, v41")
        for i in range(8): a(f"v_mul_f32 v{D2+i}, v{D2+i}, v40")
        for p in range(4): a(f"v_cvt_pk_bf16_f32 v{44+p}, v{D2+2*p}, v{D2+2*p+1}")
        a(f"buffer_store_dwordx4 v[44:47], v13, s[20:23], s30 offen\ns_add_u32 s30, s30, {32*CTX_PITCH}\ns_nop 1")
    a("L_k3b_end:\ns_endpgm")
    return a.text()
```

```python
from common import *
NWG4 = 256
def gen_k4():
    a = Asm()
    AA = 64; AB = 80; XF = 96; WF = 128
    VOX = 8; VOW = 12; RX = 16; RWA = 24; RWB = 25
    a(f"""
    s_cmp_ge_u32 s2, {NWG4}
    s_cbranch_scc1 L_k4_end
    s_load_dwordx2 s[4:5], s[0:1], 104
    s_load_dwordx2 s[6:7], s[0:1], 40
    s_load_dwordx2 s[36:37], s[0:1], 72
    s_load_dwordx2 s[38:39], s[0:1], 88
    s_and_b32 s41, s2, 7
    s_lshl_b32 s41, s41, 2
    s_bfe_u32 s3, s2, 0x20003
    s_add_u32 s41, s41, s3
    s_lshr_b32 s40, s2, 5
    v_lshrrev_b32 v1, 6, v0
    s_nop 0
    v_readfirstlane_b32 s42, v1
    v_and_b32 v2, 63, v0
    s_waitcnt lgkmcnt(0)
    """)
    srd_ws(a, 8, 4, WS_CTXO, 2048*CTX_PITCH)
    srd(a, 12, "s6", "s7", 0x400000)
    srd(a, 16, "s36", "s37", 0x80000)
    srd(a, 20, "s38", "s39", 0x200000)
    srd_ws(a, 24, 4, WS_G, 8192)
    a(f"""
    v_lshrrev_b32 v4, 4, v2
    v_and_b32 v5, 15, v2
    s_lshl_b32 s46, s42, 4
    s_lshl_b32 s47, s41, 6
    s_add_u32 s46, s46, s47
    v_add_u32 v3, s46, v4
    s_movk_i32 s43, {CTX_PITCH}
    """)
    for i in range(4):
        a(f"""
        v_add_u32 v6, {4*i}, v4
        v_xor_b32 v6, v5, v6
        v_lshlrev_b32 v6, 4, v6
        v_add_u32 v7, {4*i}, v3
        v_mul_lo_u32 v7, v7, s43
        v_add_u32 v{VOX+i}, v7, v6
        """)
    a("""
    v_and_b32 v5, 7, v2
    v_bfe_u32 v6, v2, 4, 1
    v_lshlrev_b32 v6, 2, v6
    v_xor_b32 v5, v5, v6
    v_lshlrev_b32 v5, 4, v5
    s_lshl_b32 s46, s40, 7
    v_add_u32 v5, s46, v5
    v_lshrrev_b32 v6, 3, v2
    s_lshl_b32 s46, s42, 5
    v_add_u32 v6, s46, v6
    """)
    for i in range(4):
        a(f"v_add_u32 v7, {8*i}, v6\nv_lshl_add_u32 v{VOW+i}, v7, 10, v5")
    a(f"""
    s_lshr_b32 s48, s42, 1
    s_and_b32 s49, s42, 1
    v_and_b32 v3, 31, v2
    v_lshrrev_b32 v4, 5, v2
    s_lshl_b32 s46, s48, 5
    v_add_u32 v5, s46, v3
    v_and_b32 v6, 15, v2
    v_xor_b32 v6, v6, v4
    v_lshlrev_b32 v6, 4, v6
    v_lshl_add_u32 v{RX}, v5, 8, v6
    """)
    for s in range(1, 8): a(f"v_xor_b32 v{RX+s}, {s*32}, v{RX}")
    a(f"""
    v_bfe_u32 v5, v2, 2, 2
    v_lshrrev_b32 v6, 1, v5
    v_xor_b32 v6, s49, v6
    v_lshlrev_b32 v6, 6, v6
    v_and_b32 v7, 3, v2
    v_lshl_add_u32 v6, v7, 3, v6
    v_bfe_u32 v7, v2, 4, 1
    v_lshl_add_u32 v6, v7, 5, v6
    v_add_u32 v6, 16384, v6
    v_lshl_add_u32 v7, v4, 2, v5
    v_lshl_add_u32 v{RWA}, v7, 7, v6
    v_lshl_add_u32 v7, v4, 3, v5
    v_lshl_add_u32 v{RWB}, v7, 7, v6
    s_mov_b32 s50, 0
    s_mov_b32 s51, 0
    s_lshl_b32 s53, s42, 12
    """)
    NK = 36
    def loads(k):
        st = k % 3
        if k == 32: a("s_mov_b32 s51, 0")
        wsrd = "s[12:15]" if k < 32 else "s[16:19]"
        for i in range(4):
            a(f"s_add_u32 m0, s53, {st*32768 + i*1024}\ns_nop 0\nbuffer_load_dwordx4 v{VOX+i}, s[8:11], s50 offen lds")
        for i in range(4):
            a(f"s_add_u32 m0, s53, {st*32768 + 16384 + i*1024}\ns_nop 0\nbuffer_load_dwordx4 v{VOW+i}, {wsrd}, s51 offen lds")
        a("s_add_u32 s50, s50, 256\ns_add_u32 s51, s51, 0x20000")
    def reads(k, s):
        st = k % 3
        o = st * 32768
        rw = RWA if k < 32 else RWB
        sec = 1024 if k < 32 else 512
        a(f"ds_read_b128 {vr(XF+s*4,4)}, v{RX+s} offset:{o % 65536}" if st < 2 else f"ds_read_b128 {vr(XF+s*4,4)}, v{RX+s+18} offset:0")
        if st < 2:
            a(f"ds_read_b64_tr_b16 {vr(WF+s*4,2)}, v{rw} offset:{o+s*2048}\nds_read_b64_tr_b16 {vr(WF+s*4+2,2)}, v{rw} offset:{o+s*2048+sec}")
        else:
            a(f"ds_read_b64_tr_b16 {vr(WF+s*4,2)}, v{rw+18} offset:{s*2048}\nds_read_b64_tr_b16 {vr(WF+s*4+2,2)}, v{rw+18} offset:{s*2048+sec}")
    for s in range(10): a(f"v_add_u32 v{RX+s+18}, 0x10000, v{RX+s}")
    loads(0); loads(1)
    for k in range(NK):
        a(f"s_waitcnt vmcnt({8 if k < NK-1 else 0})\ns_barrier")
        if k + 2 < NK: loads(k + 2)
        for s in range(5): reads(k, s)
        acc = vr(AA if k < 32 else AB, 16)
        for s in range(8):
            n_iss = min(8, s + 5)
            a(f"s_waitcnt lgkmcnt({(n_iss - s - 1)*3})")
            first = (k in (0, 32)) and s == 0
            a(f"v_mfma_f32_32x32x16_bf16 {acc}, {vr(WF+s*4,4)}, {vr(XF+s*4,4)}, {'0' if first else acc}")
            if s + 5 < 8: reads(k, s + 5)
    a(f"""
    s_lshl_b32 s46, s41, 6
    s_lshl_b32 s47, s48, 5
    s_add_u32 s46, s46, s47
    v_add_u32 v5, s46, v3
    v_lshlrev_b32 v6, 2, v5
    buffer_load_dword v7, v6, s[24:27], 0 offen
    v_lshlrev_b32 v5, 10, v5
    v_lshl_add_u32 v5, v4, 3, v5
    s_lshl_b32 s46, s40, 7
    s_lshl_b32 s47, s49, 6
    s_add_u32 s46, s46, s47
    v_add_u32 v5, s46, v5
    s_nop 7
    s_waitcnt vmcnt(0)
    v_sub_f32 v6, 1.0, v7
    v_cvt_pk_bf16_f32 v6, v6, v6
    v_and_b32 v6, 0xffff0000, v6
    """)
    def rnd(r0, r1):
        a(f"v_cvt_pk_bf16_f32 v8, v{r0}, v{r1}\nv_lshlrev_b32 v{r0}, 16, v8\nv_and_b32 v{r1}, 0xffff0000, v8")
    for i in range(0, 16, 2):
        rnd(AA+i, AA+i+1); rnd(AB+i, AB+i+1)
        for j in (0, 1):
            a(f"v_mul_f32 v{AA+i+j}, v7, v{AA+i+j}\nv_mul_f32 v{AB+i+j}, v6, v{AB+i+j}")
        rnd(AA+i, AA+i+1); rnd(AB+i, AB+i+1)
        for j in (0, 1): a(f"v_add_f32 v{AA+i+j}, v{AA+i+j}, v{AB+i+j}")
        a(f"v_cvt_pk_bf16_f32 v{XF+i//2}, v{AA+i}, v{AA+i+1}")
    for q in range(4):
        a(f"buffer_store_dwordx2 {vr(XF+2*q,2)}, v5, s[20:23], 0 offen offset:{q*16}")
    a("L_k4_end:\ns_endpgm")
    return a.text()
```

```python
import sys
sys.path.insert(0, 'gen')
from common import *
import k1, k2, k3, k4
NAME = "gated_mix__compressed_kv_cla__linear_kernel_hedgehog__prompt"
ref = open(f"cdna_kernels/{NAME}.s.ref").read()
hdr = ref.split("; @launch")[0]
ks = [("proj_kernel", k1.gen_k1(), k1.NWG1, 256, 73728, 240),
      ("bphi_kernel", k3.gen_k3a(), 192, 256, 32768, 128),
      ("bout_kernel", k3.gen_k3b(), 128, 256, 0, 128),
      ("attn_kernel", k2.gen_k2(), k2.NWG2, 512, 131072, 248),
      ("oproj_kernel", k4.gen_k4(), k4.NWG4, 256, 98304, 160)]
out = hdr
for n, t, g, b, l, v in ks:
    out += f"; @launch kernel={n} grid=({g},1,1) block=({b},1,1) lds={l}\n"
out += '.amdgcn_target "amdgcn-amd-amdhsa--gfx950"\n.text\n'
for n, t, g, b, l, v in ks:
    out += kernel_head(n) + t
out += '.section .rodata,"a"\n'
for n, t, g, b, l, v in ks:
    out += kernel_desc(n, v)
open(f"cdna_kernels/{NAME}.s", "w").write(out)
print(len(out))
```

```python
from common import *
NWG1 = 864
STG = 24576
def gen_k1():
    a = Asm()
    ACC = 64
    XF = 192
    WF = 224
    VOX = 8; VOW = 12
    RX = 16; RW = 18
    a(f"""
    s_cmp_ge_u32 s2, {NWG1}
    s_cbranch_scc1 L_k1_end
    s_load_dwordx16 s[4:19], s[0:1], 0
    s_load_dwordx2 s[20:21], s[0:1], 104
    s_and_b32 s3, s2, 7
    s_mul_i32 s3, s3, 108
    s_lshr_b32 s22, s2, 3
    s_add_u32 s3, s3, s22
    s_lshr_b32 s40, s3, 3
    s_and_b32 s41, s3, 7
    v_lshrrev_b32 v1, 6, v0
    s_nop 0
    v_readfirstlane_b32 s42, v1
    v_and_b32 v2, 63, v0
    s_waitcnt lgkmcnt(0)
    s_lshr_b32 s45, s40, 5
    s_and_b32 s44, s40, 31
    s_lshl_b32 s44, s44, 8
    s_mov_b32 s43, 8192
    s_mov_b32 s30, 0x400000
    s_mov_b32 s24, s6
    s_mov_b32 s25, s7
    s_mov_b32 s28, s10
    s_mov_b32 s29, s11
    s_cmp_eq_u32 s45, 2
    s_cselect_b32 s28, s12, s28
    s_cselect_b32 s29, s13, s29
    s_cmp_eq_u32 s45, 0
    s_cselect_b32 s28, s8, s28
    s_cselect_b32 s29, s9, s29
    s_cselect_b32 s24, s4, s24
    s_cselect_b32 s25, s5, s25
    s_cmp_eq_u32 s45, 3
    s_cselect_b32 s28, s18, s28
    s_cselect_b32 s29, s19, s29
    s_cselect_b32 s24, s4, s24
    s_cselect_b32 s25, s5, s25
    s_cselect_b32 s43, 3072, s43
    s_cselect_b32 s30, 0x180000, s30
    s_mov_b32 s26, 0x200000
    s_mov_b32 s27, 0x00020000
    s_mov_b32 s31, 0x00020000
    s_mov_b32 s32, s20
    s_mov_b32 s33, s21
    s_mov_b32 s34, 0x10000000
    s_mov_b32 s35, 0x00020000
    v_lshrrev_b32 v3, 2, v2
    v_bfe_u32 v4, v2, 4, 2
    v_and_b32 v5, 3, v2
    v_xor_b32 v5, v5, v4
    v_lshlrev_b32 v5, 4, v5
    s_lshl_b32 s46, s42, 6
    s_lshl_b32 s47, s41, 8
    s_add_u32 s46, s46, s47
    v_add_u32 v3, s46, v3
    """)
    for i in range(4):
        a(f"v_add_u32 v7, {16*i}, v3\nv_lshl_add_u32 v{VOX+i}, v7, 10, v5")
    a("""
    v_lshrrev_b32 v4, 4, v2
    v_and_b32 v5, 15, v2
    v_lshlrev_b32 v6, 2, v4
    v_xor_b32 v5, v5, v6
    v_lshlrev_b32 v5, 4, v5
    v_add_u32 v5, s44, v5
    s_lshl_b32 s46, s42, 3
    v_add_u32 v4, s46, v4
    """)
    for i in range(2):
        a(f"v_add_u32 v6, {4*i}, v4\nv_mul_lo_u32 v6, v6, s43\nv_add_u32 v{VOW+i}, v6, v5")
    a(f"""
    s_lshr_b32 s48, s42, 1
    s_and_b32 s49, s42, 1
    v_and_b32 v3, 31, v2
    v_lshrrev_b32 v4, 5, v2
    s_lshl_b32 s46, s48, 7
    v_add_u32 v5, s46, v3
    v_bfe_u32 v6, v3, 2, 2
    v_xor_b32 v6, v6, v4
    v_lshlrev_b32 v6, 4, v6
    v_lshl_add_u32 v{RX}, v5, 6, v6
    v_xor_b32 v{RX+1}, 32, v{RX}
    v_bfe_u32 v3, v2, 2, 2
    v_lshl_add_u32 v4, v4, 3, v3
    v_lshlrev_b32 v4, 8, v4
    v_and_b32 v5, 3, v2
    v_lshlrev_b32 v5, 3, v5
    v_bfe_u32 v6, v2, 4, 1
    v_lshl_add_u32 v5, v6, 5, v5
    v_add_u32 v4, v4, v5
    v_add_u32 v4, 0x4000, v4
    s_lshl_b32 s46, s49, 1
    """)
    for nb in range(2):
        a(f"s_add_u32 s47, s46, {nb}\nv_xor_b32 v5, s47, v3\nv_lshl_add_u32 v{RW+nb}, v5, 6, v4")
    for i in range(4): a(f"v_add_u32 v{RX+4+i}, {2*STG}, v{RX+i}")
    a("""
    s_mov_b32 s50, 0
    s_mov_b32 s51, 0
    s_lshl_b32 s52, s43, 5
    s_lshl_b32 s53, s42, 12
    s_lshl_b32 s54, s42, 11
    """)
    def piece(stage, i):
        if i < 4:
            a(f"s_add_u32 m0, s53, {stage*STG + i*1024}\ns_nop 0\nbuffer_load_dwordx4 v{VOX+i}, s[24:27], s50 offen lds")
        else:
            a(f"s_add_u32 m0, s54, {stage*STG + 16384 + (i-4)*1024}\ns_nop 0\nbuffer_load_dwordx4 v{VOW+i-4}, s[28:31], s51 offen lds")
        if i == 5: a("s_add_u32 s50, s50, 64\ns_add_u32 s51, s51, s52")
    def reads(stage, s):
        o = (stage % 2) * STG; e = 4 if stage == 2 else 0
        for mb in range(4):
            a(f"ds_read_b128 {vr(XF+s*16+mb*4,4)}, v{RX+e+s} offset:{o+mb*2048}")
        for nb in range(2):
            b = WF + s*8 + nb*4
            a(f"ds_read_b64_tr_b16 {vr(b,2)}, v{RW+e+nb} offset:{o+s*4096}")
            a(f"ds_read_b64_tr_b16 {vr(b+2,2)}, v{RW+e+nb} offset:{o+s*4096+1024}")
    def mfmas(s, vtype, first, ldstage):
        n = 0
        for mb in range(4):
            for nb in range(2):
                acc = vr(ACC+(mb*2+nb)*16, 16)
                xf = vr(XF+s*16+mb*4, 4); wf = vr(WF+s*8+nb*4, 4)
                c = "0" if first else acc
                if vtype: a(f"v_mfma_f32_32x32x16_bf16 {acc}, {xf}, {wf}, {c}")
                else: a(f"v_mfma_f32_32x32x16_bf16 {acc}, {wf}, {xf}, {c}")
                if ldstage is not None and n in (1, 3, 5): piece(ldstage, s*3 + n//2)
                n += 1
    def mainloop(vtype):
        for kk in range(16):
            st = kk % 3
            ld = ((kk + 2) % 3) if kk < 14 else None
            a(f"s_waitcnt vmcnt({6 if kk < 15 else 0})\ns_barrier")
            reads(st, 0); reads(st, 1)
            a("s_waitcnt lgkmcnt(8)")
            mfmas(0, vtype, kk == 0, ld)
            a("s_waitcnt lgkmcnt(0)")
            mfmas(1, vtype, False, ld)
        a("s_nop 15")
    for i in range(6): piece(0, i)
    for i in range(6): piece(1, i)
    a("s_and_b32 s57, s40, 31\ns_cmp_eq_u32 s45, 2\ns_cbranch_scc1 L_k1_vtype")
    mainloop(False)
    a(f"""
    s_lshl_b32 s46, s57, 19
    s_mov_b32 s54, 256
    s_mov_b32 s55, 0
    s_cmp_eq_u32 s45, 1
    s_cselect_b32 s55, 15, s55
    s_cselect_b32 s47, {hex(WS_K)}, 0
    s_add_u32 s46, s46, s47
    s_add_u32 s47, s44, {hex(WS_QKVB)}
    s_cmp_eq_u32 s45, 3
    s_cselect_b32 s46, s47, s46
    s_cselect_b32 s54, 3072, s54
    v_and_b32 v3, 31, v2
    v_lshrrev_b32 v4, 5, v2
    s_lshl_b32 s47, s41, 8
    s_lshl_b32 s56, s48, 7
    s_add_u32 s47, s47, s56
    v_add_u32 v5, s47, v3
    v_mul_lo_u32 v5, v5, s54
    v_add_u32 v5, s46, v5
    v_and_b32 v3, s55, v3
    s_lshl_b32 s47, s49, 3
    v_add_u32 v4, s47, v4
    s_lshl_b32 s56, s54, 5
    """)
    for mb in range(4):
        for nb in range(2):
            for hf in range(2):
                b = ACC + (mb*2+nb)*16 + hf*8
                t = XF + ((nb*2+hf) & 3)*4
                for p in range(4):
                    a(f"v_cvt_pk_bf16_f32 v{t+p}, v{b+2*p}, v{b+2*p+1}")
                a(f"""
                v_add_u32 v6, {nb*4+hf*2}, v4
                v_xor_b32 v6, v6, v3
                v_lshl_add_u32 v6, v6, 4, v5
                buffer_store_dwordx4 {vr(t,4)}, v6, s[32:35], 0 offen
                """)
        if mb < 3: a("v_add_u32 v5, s56, v5")
    a("s_branch L_k1_end")
    a("L_k1_vtype:")
    mainloop(True)
    a(f"""
    s_lshl_b32 s46, s57, 5
    s_lshl_b32 s47, s41, 2
    s_add_u32 s46, s46, s47
    s_lshl_b32 s47, s48, 1
    s_add_u32 s46, s46, s47
    s_lshl_b32 s46, s46, 14
    s_add_u32 s46, s46, {hex(WS_V)}
    v_and_b32 v3, 31, v2
    v_lshrrev_b32 v4, 5, v2
    s_lshl_b32 s47, s49, 6
    v_add_u32 v5, s47, v3
    v_lshlrev_b32 v5, 7, v5
    v_add_u32 v5, s46, v5
    v_lshrrev_b32 v3, 1, v3
    v_and_b32 v3, 7, v3
    """)
    for mb in range(4):
        for nb in range(2):
            for hf in range(2):
                b = ACC + (mb*2+nb)*16 + hf*8
                t = XF + ((nb*2+hf) & 3)*4
                for p in range(4):
                    a(f"v_cvt_pk_bf16_f32 v{t+p}, v{b+2*p}, v{b+2*p+1}")
                a(f"""
                v_add_u32 v6, {(mb&1)*4+hf*2}, v4
                v_xor_b32 v6, v6, v3
                v_lshl_add_u32 v6, v6, 4, v5
                v_add_u32 v6, {(mb>>1)*16384 + nb*4096}, v6
                buffer_store_dwordx4 {vr(t,4)}, v6, s[32:35], 0 offen
                """)
    a("L_k1_end:\ns_endpgm")
    return a.text()
```

```python
from common import *
import struct, os
def f32bits(x): return struct.unpack("<I", struct.pack("<f", x))[0]
NWG2 = 256
O = 64; SS = [128, 160]; P = 192; Q = 208
FS = [36, 40, 44, 48, 52, 56, 60, 240]
KA = 8; VA = 16
VM = 20; VL = 21; VTHR = 22; VDMA = 23
KB = [0, 32768]; VB = [65536, 98304]
INSTR = os.environ.get("INSTR") == "1"
def gen_k2():
    a = Asm()
    def stamp():
        if INSTR: a("s_memtime s[60:61]\ns_waitcnt lgkmcnt(0)\ns_and_b32 s59, s59, 63\ns_mov_b32 m0, s59\ns_nop 3\nv_writelane_b32 v244, s60, m0\ns_add_u32 s59, s59, 1")
    a(f"""
    s_cmp_ge_u32 s2, {NWG2}
    s_cbranch_scc1 L_k2_end
    s_load_dwordx2 s[4:5], s[0:1], 104
    s_and_b32 s24, s2, 7
    s_lshl_b32 s24, s24, 2
    s_bfe_u32 s3, s2, 0x20003
    s_add_u32 s24, s24, s3
    s_lshr_b32 s25, s2, 5
    v_lshrrev_b32 v1, 6, v0
    s_nop 0
    v_readfirstlane_b32 s26, v1
    v_and_b32 v2, 63, v0
    s_lshr_b32 s27, s26, 2
    s_and_b32 s28, s26, 3
    s_lshl_b32 s34, s26, 12
    s_mov_b32 s35, {hex(f32bits(128**-0.5 * 1.4426950408889634))}
    s_lshl_b32 s3, s24, 19
    s_waitcnt lgkmcnt(0)
    s_add_u32 s6, s4, s3
    s_addc_u32 s7, s5, 0
    """)
    srd_ws(a, 8, 6, WS_K, 0x80000)
    srd_ws(a, 12, 6, WS_V, 0x80000)
    srd_ws(a, 16, 6, WS_Q, 0x80000)
    srd_ws(a, 20, 4, WS_CTXO, 2048*CTX_PITCH)
    a(f"""
    v_and_b32 v3, 31, v2
    v_lshrrev_b32 v4, 5, v2
    v_lshlrev_b32 v{VDMA}, 4, v2
    v_add_u32 v{VDMA}, s34, v{VDMA}
    s_lshl_b32 s3, s27, 14
    v_and_b32 v5, 15, v2
    v_xor_b32 v5, v5, v4
    v_lshlrev_b32 v5, 4, v5
    v_lshl_add_u32 v5, v3, 8, v5
    v_add_u32 v{KA}, s3, v5
    v_bfe_u32 v5, v2, 1, 3
    v_xor_b32 v5, v5, v4
    v_lshlrev_b32 v5, 4, v5
    v_lshl_add_u32 v5, v3, 7, v5
    v_add_u32 v{VA}, s3, v5
    v_add_u32 v{VA}, 0x10000, v{VA}
    s_lshl_b32 s3, s28, 5
    s_lshl_b32 s37, s27, 6
    s_sub_u32 s3, s3, s37
    v_lshlrev_b32 v5, 2, v4
    v_sub_u32 v5, v3, v5
    v_add_u32 v{VTHR}, s3, v5
    s_mov_b32 s36, 0
    s_mov_b32 s59, 0
    """)
    if INSTR: a("v_mov_b32 v244, 0")
    for s in range(1, 8): a(f"v_xor_b32 v{KA+s}, {s*32}, v{KA}")
    for s in range(1, 4): a(f"v_xor_b32 v{VA+s}, {s*32}, v{VA}")

    def dma(srdreg, soff, buf):
        a(f"s_add_u32 m0, s34, {buf}\ns_nop 0")
        for j in range(4):
            a(f"buffer_load_dwordx4 v{VDMA}, s[{srdreg}:{srdreg+3}], {soff} offen offset:{j*1024} lds")
    def dpiece(srdreg, soff, buf, j, need):
        if need:
            l = a.label("nd")
            a(f"s_cmp_lt_u32 s38, {need}\ns_cbranch_scc1 {l}")
        a(f"s_add_u32 m0, s34, {buf}\ns_nop 0\nbuffer_load_dwordx4 v{VDMA}, s[{srdreg}:{srdreg+3}], {soff} offen offset:{j*1024} lds")
        if need: a(f"{l}:")
    def rd_item(it, slot, parv, park):
        k, s, b = it
        if k == "pv": a(f"ds_read_b128 {vr(FS[slot],4)}, v{VA+s} offset:{VB[parv]-65536+b*4096}")
        else: a(f"ds_read_b128 {vr(FS[slot],4)}, v{KA+s} offset:{KB[park]+b*8192}")
    QKI = [("qk", s, kb) for s in range(8) for kb in range(2)]
    PVI = [("pv", s, db) for s in range(4) for db in range(4)]
    def pre(items, parv, park):
        for i in range(8): rd_item(items[i], i, parv, park)
    def MM(items, parv, park, fill=None, ld=True):
        n = len(items); SQ = SS[park]
        for i, it in enumerate(items):
            k, s, b = it
            a(f"s_waitcnt lgkmcnt({min(7, n-1-i)})")
            if k == "pv":
                if fill is not None and s == 0 and b == 0: a("s_nop 1")
                acc = vr(O+b*16, 16)
                a(f"v_mfma_f32_32x32x16_bf16 {acc}, {vr(FS[i%8],4)}, {vr(P+s*4,4)}, {acc}")
            else:
                acc = vr(SQ+b*16, 16)
                a(f"v_mfma_f32_32x32x16_bf16 {acc}, {vr(FS[i%8],4)}, {vr(Q+s*4,4)}, {'0' if s==0 else acc}")
            if i + 8 < n: rd_item(items[i+8], i % 8, parv, park)
            if k == "qk" and fill is not None:
                for x in fill[i]: a(x)
            if ld and i % 4 == 1:
                if k == "pv": dpiece(12, "s33", VB[parv ^ 1], (i % 16) // 4, 0)
                else: dpiece(8, "s32", KB[park ^ 1], (i % 16) // 4, 2)
    def SM_parts(S):
        lr = a.label("noresc")
        A = [f"v_max3_f32 v24, v{S}, v{S+1}, v{S+2}", f"v_max3_f32 v25, v{S+16}, v{S+17}, v{S+18}"]
        for i in range(3, 15, 2):
            A += [f"v_max3_f32 v24, v24, v{S+i}, v{S+i+1}", f"v_max3_f32 v25, v25, v{S+16+i}, v{S+16+i+1}"]
        A2 = f"""v_max3_f32 v24, v24, v{S+15}, v25
        v_max_f32 v24, v24, v{S+31}
        v_mov_b32 v25, v24
        s_nop 1
        v_permlane32_swap_b32 v24, v25
        s_nop 1
        v_max_f32 v24, v24, v25
        v_mul_f32 v24, s35, v24
        v_max_f32 v25, v{VM}, v24
        v_sub_f32 v26, v25, v{VM}
        v_cmp_lt_f32 vcc, 0x41000000, v26
        s_cbranch_vccz {lr}
        v_sub_f32 v26, 0, v26
        v_exp_f32 v26, v26
        v_mov_b32 v{VM}, v25
        s_nop 0
        v_mov_b32 v27, v26
        v_mul_f32 v{VL}, v{VL}, v26
        """ + "\n".join(f"v_pk_mul_f32 {vr(O+i,2)}, {vr(O+i,2)}, v[26:27]" for i in range(0, 64, 2)) + f"\n{lr}:\nv_sub_f32 v28, 0, v{VM}"
        B = []
        for p in range(17):
            if p < 16:
                B += [f"v_fma_f32 v{S+2*p}, v{S+2*p}, s35, v28", f"v_fma_f32 v{S+2*p+1}, v{S+2*p+1}, s35, v28"]
            if p >= 1:
                q = p - 1
                B += [f"v_exp_f32 v{S+2*q}, v{S+2*q}", f"v_exp_f32 v{S+2*q+1}, v{S+2*q+1}"]
            if p >= 2:
                q = p - 2
                B += [f"v_add_f32 v{VL}, v{VL}, v{S+2*q}", f"v_add_f32 v29, v29, v{S+2*q+1}" if q else f"v_mov_b32 v29, v{S+1}",
                      f"v_cvt_pk_bf16_f32 v{P+q}, v{S+2*q}, v{S+2*q+1}"]
        B += ["s_nop 0", f"v_add_f32 v{VL}, v{VL}, v{S+30}", f"v_add_f32 v29, v29, v{S+31}", f"v_cvt_pk_bf16_f32 v{P+15}, v{S+30}, v{S+31}", f"v_add_f32 v{VL}, v{VL}, v29"]
        return A, A2, B
    def mask(S):
        a("v_mov_b32 v24, 0xf149f2ca")
        for kb in range(2):
            for r in range(16):
                c = kb*32 + (r//4)*8 + r % 4
                a(f"v_cmp_gt_i32 vcc, {c}, v{VTHR}\ns_nop 1\nv_cndmask_b32 v{S+kb*16+r}, v{S+kb*16+r}, v24, vcc")
    def top():
        a(f"""
        s_waitcnt vmcnt(0)
        s_barrier
        s_add_u32 s3, s31, 1
        s_lshl_b32 s33, s3, 15
        s_sub_u32 s38, s30, s3
        s_add_u32 s3, s31, 2
        s_lshl_b32 s32, s3, 15
        s_cmp_eq_u32 s38, 0
        """)
    a("L_k2_pass:")
    a(f"""
    s_sub_u32 s29, 15, s25
    s_cmp_eq_u32 s36, 0
    s_cselect_b32 s29, s29, s25
    s_add_u32 s30, s29, 1
    s_lshl_b32 s3, s29, 7
    s_lshl_b32 s37, s28, 5
    s_add_u32 s3, s3, s37
    v_add_u32 v5, s3, v3
    v_lshlrev_b32 v5, 8, v5
    v_lshl_add_u32 v5, v4, 4, v5
    """)
    dma(8, "0", KB[0])
    for s in range(8): a(f"buffer_load_dwordx4 {vr(Q+s*4,4)}, v5, s[16:19], 0 offen offset:{s*32}")
    dma(12, "0", VB[0])
    lk = a.label("nok1")
    a(f"s_cmp_lt_u32 s30, 2\ns_cbranch_scc1 {lk}\ns_mov_b32 s32, 32768")
    dma(8, "s32", KB[1])
    a(f"{lk}:")
    a(f"v_mov_b32 v{VM}, 0xe0ad78ec\nv_mov_b32 v{VL}, 0")
    for i in range(64): a(f"v_mov_b32 v{O+i}, 0")
    a("s_mov_b32 s31, 0\ns_waitcnt vmcnt(0)\ns_barrier")
    pre(QKI, 0, 0)
    MM(QKI, 0, 0, None, False)
    a("L_k2_loop:")
    for par in range(2):
        top()
        a(f"s_cbranch_scc1 L_k2_tail{par}")
        stamp()
        items = QKI + PVI
        pre(items, par, par ^ 1)
        A, A2, B = SM_parts(SS[par])
        for x in A[:8]: a(x)
        fill = [[] for _ in range(16)]
        fill[0] = A[8:12]; fill[1] = A[12:] + [A2]
        per = (len(B) + 13) // 14
        for i in range(14): fill[2+i] = B[i*per:(i+1)*per]
        MM(items, par, par ^ 1, fill)
        a("s_add_u32 s31, s31, 1")
        stamp()
    a("s_branch L_k2_loop")
    for par in range(2):
        a(f"L_k2_tail{par}:")
        pre(PVI, par, par ^ 1)
        a("s_nop 7")
        mask(SS[par])
        A, A2, B = SM_parts(SS[par])
        for x in A: a(x)
        a(A2)
        for x in B: a(x)
        a("s_nop 1")
        MM(PVI, par, par ^ 1, None, False)
        if par == 0: a("s_branch L_k2_merge")
    a("L_k2_merge:")
    S = SS[0]
    a(f"""
    s_nop 15
    v_mov_b32 v25, v{VL}
    s_nop 1
    v_permlane32_swap_b32 v{VL}, v25
    s_nop 1
    v_add_f32 v{VL}, v{VL}, v25
    s_mul_i32 s3, s26, 8704
    v_lshlrev_b32 v5, 4, v2
    v_add_u32 v5, s3, v5
    v_lshlrev_b32 v6, 2, v2
    v_add_u32 v6, s3, v6
    s_xor_b32 s37, s26, 4
    s_mul_i32 s37, s37, 8704
    s_barrier
    ds_write_b32 v6, v{VM} offset:8192
    ds_write_b32 v6, v{VL} offset:8448
    s_cmp_eq_u32 s27, 0
    s_cbranch_scc1 L_k2_m0
    """)
    def merge(g):
        keep = O + (0 if g == 0 else 32); send = O + (32 if g == 0 else 0)
        for q in range(8): a(f"ds_write_b128 v5, {vr(send+q*4,4)} offset:{q*1024}")
        a(f"""
        v_lshlrev_b32 v5, 4, v2
        v_add_u32 v5, s37, v5
        v_lshlrev_b32 v6, 2, v2
        v_add_u32 v6, s37, v6
        s_waitcnt lgkmcnt(0)
        s_barrier
        ds_read_b32 v24, v6 offset:8192
        ds_read_b32 v25, v6 offset:8448
        """)
        for q in range(8): a(f"ds_read_b128 {vr(S+q*4,4)}, v5 offset:{q*1024}")
        a(f"""
        s_waitcnt lgkmcnt(8)
        v_max_f32 v26, v{VM}, v24
        v_sub_f32 v27, v{VM}, v26
        v_sub_f32 v28, v24, v26
        v_exp_f32 v27, v27
        v_exp_f32 v28, v28
        s_nop 0
        v_mul_f32 v29, v27, v{VL}
        v_fma_f32 v29, v28, v25, v29
        v_rcp_f32 v29, v29
        s_nop 0
        v_mul_f32 v27, v27, v29
        v_mul_f32 v28, v28, v29
        s_lshl_b32 s3, s29, 7
        s_lshl_b32 s37, s28, 5
        s_add_u32 s3, s3, s37
        v_add_u32 v5, s3, v3
        s_movk_i32 s37, {CTX_PITCH}
        v_mul_lo_u32 v5, v5, s37
        v_lshl_add_u32 v5, v4, 4, v5
        s_lshl_b32 s3, s24, 8
        s_add_u32 s3, s3, {g*128}
        v_add_u32 v5, s3, v5
        s_waitcnt lgkmcnt(0)
        """)
        for i in range(32):
            a(f"v_mul_f32 v{keep+i}, v27, v{keep+i}\nv_fma_f32 v{keep+i}, v28, v{S+i}, v{keep+i}")
        for q in range(4):
            for p in range(4):
                a(f"v_cvt_pk_bf16_f32 v{P+q*4+p}, v{keep+q*8+2*p}, v{keep+q*8+2*p+1}")
            a(f"buffer_store_dwordx4 {vr(P+q*4,4)}, v5, s[20:23], 0 offen offset:{q*32}")
    merge(1)
    a("s_branch L_k2_mdone\nL_k2_m0:")
    merge(0)
    a("L_k2_mdone:")
    if INSTR:
        a(f"""
        s_cmp_lg_u32 s36, 0
        s_cbranch_scc1 L_nodump
        s_lshl_b32 s3, s2, 3
        s_add_u32 s3, s3, s26
        s_lshl_b32 s3, s3, 8
        v_lshlrev_b32 v5, 2, v2
        v_add_u32 v5, s3, v5
        s_add_u32 s64, s4, {hex(100<<20)}
        s_addc_u32 s65, s5, 0
        s_mov_b32 s66, 0x1000000
        s_mov_b32 s67, 0x00020000
        buffer_store_dword v244, v5, s[64:67], 0 offen
        L_nodump:
        """)
    a("""
    s_barrier
    s_add_u32 s36, s36, 1
    s_cmp_lt_u32 s36, 2
    s_cbranch_scc1 L_k2_pass
    """)
    a("L_k2_end:\ns_endpgm")
    return a.text()
```

```python
from common import *
XB = 32768; WBASE = 98304; WST = 16384
GEMM_LDS = 163840
VOX = 8; VOW = 12; RX = 16; RW = 24
def gemm_setup(a, rowbase_sgpr, xrow_sgpr):
    a(f"""
    v_lshrrev_b32 v3, 3, v2
    v_add_u32 v3, {rowbase_sgpr}, v3
    v_lshrrev_b32 v4, 4, v2
    v_and_b32 v5, 7, v2
    v_xor_b32 v5, v5, v4
    v_xor_b32 v6, 4, v5
    v_lshlrev_b32 v5, 4, v5
    v_lshlrev_b32 v6, 4, v6
    """)
    for i in range(4):
        a(f"v_add_u32 v7, {8*i}, v3\nv_lshl_add_u32 v{VOX+i}, v7, 10, v{5 + (i&1)}")
    a(f"""
    v_and_b32 v3, 31, v2
    v_lshrrev_b32 v4, 5, v2
    v_add_u32 v5, {xrow_sgpr}, v3
    v_bfe_u32 v6, v3, 1, 3
    v_xor_b32 v6, v6, v4
    v_lshlrev_b32 v6, 4, v6
    v_lshl_add_u32 v{RX}, v5, 7, v6
    """)
    for c in range(1, 4): a(f"v_xor_b32 v{RX+c}, {c*32}, v{RX}")
    for c in range(4): a(f"v_add_u32 v{RX+4+c}, {2*XB}, v{RX+c}")
    a(f"""
    v_bfe_u32 v3, v2, 2, 2
    v_lshl_add_u32 v4, v4, 3, v3
    v_lshlrev_b32 v4, 8, v4
    v_and_b32 v5, 3, v2
    v_lshlrev_b32 v5, 3, v5
    v_bfe_u32 v6, v2, 4, 1
    v_lshl_add_u32 v5, v6, 5, v5
    v_add_u32 v4, v4, v5
    v_add_u32 v4, {WBASE}, v4
    s_bfe_u32 s50, s2, 0x20003
    s_lshl_b32 s50, s50, 1
    s_lshr_b32 s51, s2, 5
    s_add_u32 s50, s50, s51
    s_and_b32 s50, s50, 7
    s_lshl_b32 s51, s52, 1
    s_mul_i32 s51, s51, s50
    s_lshl_b32 s50, s50, 7
    s_lshl_b32 s55, s52, 4
    s_lshl_b32 s53, s42, 12
    s_lshl_b32 s54, s42, 11
    """)
def gemm_core(a, nmb, wfr, ACC, XF, WF, swap, extra=None):
    nw = len(wfr)
    def xp(p, i):
        j = (p & 1)*2 + i
        a(f"s_add_u32 m0, s53, {((p>>1)%3)*XB + j*1024}\ns_nop 0\nbuffer_load_dwordx4 v{VOX+j}, s[24:27], s50 offen lds")
        if j == 3: a("s_add_u32 s50, s50, 128\ns_and_b32 s50, s50, 1023")
    def wp(k, i):
        a(f"s_add_u32 m0, s54, {WBASE + (k%4)*WST + i*1024}\ns_nop 0\nbuffer_load_dwordx4 v{VOW+i}, s[28:31], s51 offen lds")
        if i == 1: a("s_add_u32 s51, s51, s52\ns_cmp_eq_u32 s51, s55\ns_cselect_b32 s51, 0, s51")
    nm = nmb*nw
    slots = {0: (0, 0), nm//2: (1, 0), nm//4 if nm == 8 else 1: (0, 1), nm//2 + (nm//4 if nm == 8 else 1): (1, 1)}
    issued = []
    def rd(kk, s, it):
        k, n = it
        b = (kk >> 1) % 3; c = (kk & 1)*2 + s
        if k == "x":
            a(f"ds_read_b128 {vr(XF+(s*nmb+n)*4,4)}, v{RX+(4 if b==2 else 0)+c} offset:{(b%2)*XB+n*4096}")
            issued.append((kk, s, k, n))
        else:
            r, eo = wfr[n]
            d = WF + (s*nw + n)*4
            o = (kk % 4)*WST + s*4096 + eo
            a(f"ds_read_b64_tr_b16 {vr(d,2)}, v{RW+r} offset:{o}")
            a(f"ds_read_b64_tr_b16 {vr(d+2,2)}, v{RW+r} offset:{o+1024}")
            issued.append(None); issued.append((kk, s, k, n))
    if nmb == 4: order = [("w", 0), ("x", 0), ("w", 1), ("x", 1), ("x", 2), ("x", 3)]
    else: order = [("x", 0)] + [("w", n) for n in range(nw)]
    lastw = [99]
    def need(tags):
        i = max(issued.index(t) for t in tags)
        c = min(len(issued) - 1 - i, 15)
        if c < lastw[0]:
            a(f"s_waitcnt lgkmcnt({c})")
        lastw[0] = min(c, lastw[0])
    def half(kk, s, G, nxt, bar):
        n = 0; q = list(order) if nxt else []
        for mb in range(nmb):
            for nb in range(nw):
                acc = vr(ACC+(mb*nw+nb)*16, 16)
                xf = vr(XF+(s*nmb+mb)*4, 4); wf = vr(WF+(s*nw+nb)*4, 4)
                c = "0" if (kk == 0 and s == 0) else acc
                need([(kk, s, "x", mb), (kk, s, "w", nb)])
                if swap: a(f"v_mfma_f32_32x32x16_bf16 {acc}, {xf}, {wf}, {c}")
                else: a(f"v_mfma_f32_32x32x16_bf16 {acc}, {wf}, {xf}, {c}")
                if n == 0 and bar is not None: a(f"s_waitcnt vmcnt({bar})\ns_barrier")
                cnt = 2 if (nmb == 1 and n == 0) else 1
                for _ in range(cnt):
                    if q:
                        rd(nxt[0], nxt[1], q.pop(0)); lastw[0] = 99
                if G and n in slots:
                    i, g = slots[n]
                    l = a.label("sk")
                    a(f"s_cbranch_vcc{'nz' if g == 0 else 'z'} {l}")
                    G[i]()
                    a(f"{l}:")
                if extra is not None: extra(kk, s, n)
                n += 1
    a("s_cmp_ge_u32 s42, 4\ns_cselect_b64 vcc, -1, 0")
    a("s_waitcnt vmcnt(8)\ns_barrier")
    for it in order: rd(0, 0, it)
    for kk in range(16):
        half(kk, 0, [lambda kk=kk: xp(kk+3, 0), lambda kk=kk: xp(kk+3, 1)] if 1 <= kk <= 12 else [], (kk, 1), None)
        half(kk, 1, [lambda kk=kk: wp(kk+3, 0), lambda kk=kk: wp(kk+3, 1)] if kk <= 12 else [],
             (kk+1, 0) if kk < 15 else None, (4 if kk-1 <= 11 else (2 if kk-1 == 12 else 0)) if kk < 15 else None)
    a("s_nop 15")
def gemm_prologue(a):
    def xp(p, i):
        j = (p & 1)*2 + i
        a(f"s_add_u32 m0, s53, {((p>>1)%3)*XB + j*1024}\ns_nop 0\nbuffer_load_dwordx4 v{VOX+j}, s[24:27], s50 offen lds")
        if j == 3: a("s_add_u32 s50, s50, 128\ns_and_b32 s50, s50, 1023")
    def wp(k, i):
        a(f"s_add_u32 m0, s54, {WBASE + (k%4)*WST + i*1024}\ns_nop 0\nbuffer_load_dwordx4 v{VOW+i}, s[28:31], s51 offen lds")
        if i == 1: a("s_add_u32 s51, s51, s52\ns_cmp_eq_u32 s51, s55\ns_cselect_b32 s51, 0, s51")
    for p in (0, 1):
        for i in range(2): xp(p, i)
    for i in range(2): wp(0, i)
    for k in (1, 2):
        for i in range(2): wp(k, i)
        for i in range(2): xp(k+1, i)
```

```python
from common import *
from gemm import *
NWG1 = 256
def gen_k1():
    a = Asm()
    ACC = 64; XF = 192; WF = 224
    a(f"""
    s_cmp_ge_u32 s2, {NWG1}
    s_cbranch_scc1 L_k1_end
    s_load_dwordx8 s[4:11], s[0:1], 8
    s_load_dwordx2 s[20:21], s[0:1], 104
    s_and_b32 s40, s2, 7
    s_lshl_b32 s40, s40, 2
    s_bfe_u32 s3, s2, 0x20003
    s_add_u32 s40, s40, s3
    s_lshr_b32 s41, s2, 5
    v_lshrrev_b32 v1, 6, v0
    s_nop 0
    v_readfirstlane_b32 s42, v1
    v_and_b32 v2, 63, v0
    s_lshr_b32 s45, s40, 4
    s_and_b32 s44, s40, 15
    s_lshl_b32 s44, s44, 9
    s_lshr_b32 s48, s42, 2
    s_and_b32 s49, s42, 3
    s_lshl_b32 s46, s42, 5
    s_lshl_b32 s47, s41, 8
    s_add_u32 s46, s46, s47
    s_lshl_b32 s47, s48, 7
    s_waitcnt lgkmcnt(0)
    s_mov_b32 s24, s4
    s_mov_b32 s25, s5
    s_mov_b32 s26, 0x200000
    s_mov_b32 s27, 0x00020000
    s_cmp_eq_u32 s45, 0
    s_cselect_b32 s28, s8, s10
    s_cselect_b32 s29, s9, s11
    s_mov_b32 s30, 0x400000
    s_mov_b32 s31, 0x00020000
    s_mov_b32 s32, s20
    s_mov_b32 s33, s21
    s_mov_b32 s34, 0x10000000
    s_mov_b32 s35, 0x00020000
    s_mov_b32 s52, {8192*32}
    """)
    gemm_setup(a, "s46", "s47")
    a("""
    s_lshr_b32 s46, s49, 1
    s_lshl_b32 s46, s46, 13
    v_add_u32 v4, s46, v4
    s_and_b32 s46, s49, 1
    s_lshl_b32 s46, s46, 1
    """)
    for nb in range(2):
        a(f"s_add_u32 s47, s46, {nb}\nv_xor_b32 v5, s47, v3\nv_lshl_add_u32 v{RW+nb}, v5, 6, v4")
    a("""
    v_lshrrev_b32 v4, 4, v2
    v_and_b32 v5, 15, v2
    v_lshlrev_b32 v6, 2, v4
    v_xor_b32 v5, v5, v6
    v_lshlrev_b32 v5, 4, v5
    s_lshl_b32 s46, s48, 8
    s_add_u32 s46, s46, s44
    v_add_u32 v5, s46, v5
    s_lshl_b32 s46, s49, 3
    v_add_u32 v4, s46, v4
    """)
    for i in range(2):
        a(f"v_add_u32 v6, {4*i}, v4\nv_lshl_add_u32 v{VOW+i}, v6, 13, v5")
    gemm_prologue(a)
    a("""
    s_and_b32 s57, s40, 15
    s_lshl_b32 s57, s57, 1
    s_lshr_b32 s46, s49, 1
    s_add_u32 s57, s57, s46
    s_and_b32 s49, s49, 1
    s_cmp_eq_u32 s45, 1
    s_cbranch_scc1 L_k1_vtype
    """)
    gemm_core(a, 4, [(0, 0), (1, 0)], ACC, XF, WF, False)
    a(f"""
    s_lshl_b32 s46, s57, 19
    s_add_u32 s46, s46, {hex(WS_K)}
    v_and_b32 v3, 31, v2
    v_lshrrev_b32 v4, 5, v2
    s_lshl_b32 s47, s41, 8
    s_lshl_b32 s56, s48, 7
    s_add_u32 s47, s47, s56
    v_add_u32 v5, s47, v3
    v_lshlrev_b32 v5, 8, v5
    v_add_u32 v5, s46, v5
    v_and_b32 v3, 15, v3
    s_lshl_b32 s47, s49, 3
    v_add_u32 v4, s47, v4
    """)
    for nb in range(2):
        for hf in range(2):
            a(f"v_add_u32 v6, {nb*4+hf*2}, v4\nv_xor_b32 v6, v6, v3\nv_lshl_add_u32 v{8+nb*2+hf}, v6, 4, v5")
    for mb in range(4):
        for nb in range(2):
            for hf in range(2):
                b = ACC + (mb*2+nb)*16 + hf*8
                t = XF + ((mb*4+nb*2+hf) & 7)*4
                for p in range(4):
                    a(f"v_cvt_pk_bf16_f32 v{t+p}, v{b+2*p}, v{b+2*p+1}")
                a(f"s_movk_i32 s46, {mb*8192}\nbuffer_store_dwordx4 {vr(t,4)}, v{8+nb*2+hf}, s[32:35], s46 offen")
    a("s_endpgm")
    a("L_k1_vtype:")
    gemm_core(a, 4, [(0, 0), (1, 0)], ACC, XF, WF, True)
    a(f"""
    s_lshl_b32 s46, s57, 5
    s_lshl_b32 s47, s41, 2
    s_add_u32 s46, s46, s47
    s_lshl_b32 s47, s48, 1
    s_add_u32 s46, s46, s47
    s_lshl_b32 s46, s46, 14
    s_add_u32 s46, s46, {hex(WS_V)}
    v_and_b32 v3, 31, v2
    v_lshrrev_b32 v4, 5, v2
    s_lshl_b32 s47, s49, 6
    v_add_u32 v5, s47, v3
    v_lshlrev_b32 v5, 7, v5
    v_add_u32 v5, s46, v5
    v_lshrrev_b32 v3, 1, v3
    v_and_b32 v3, 7, v3
    """)
    for m1 in range(2):
        for hf in range(2):
            a(f"v_add_u32 v6, {m1*4+hf*2}, v4\nv_xor_b32 v6, v6, v3\nv_lshl_add_u32 v{8+m1*2+hf}, v6, 4, v5")
    for mb in range(4):
        for nb in range(2):
            for hf in range(2):
                b = ACC + (mb*2+nb)*16 + hf*8
                t = XF + ((mb*4+nb*2+hf) & 7)*4
                for p in range(4):
                    a(f"v_cvt_pk_bf16_f32 v{t+p}, v{b+2*p}, v{b+2*p+1}")
                a(f"s_movk_i32 s46, {(mb>>1)*16384 + nb*4096}\nbuffer_store_dwordx4 {vr(t,4)}, v{8+(mb&1)*2+hf}, s[32:35], s46 offen")
    a("L_k1_end:\ns_endpgm")
    return a.text()
```

```python
from common import *
from gemm import *
import k3
import struct, os
def f32bits(x): return struct.unpack("<I", struct.pack("<f", x))[0]
NWG2 = 256
O = 64; SS = [128, 160]; P = 192; Q = 208
FS = [36, 40, 44, 48, 52, 56, 60, 240]
KA = 8; VA = 16
VM = 20; VL = 21; VTHR = 22; VDMA = 23
KB = [0, 32768]; VB = [65536, 98304]
INSTR = os.environ.get("INSTR") == "1"
def qpro(a):
    ACC = 64; XF = 160; WF = 168
    a(f"""
    s_load_dwordx2 s[4:5], s[0:1], 104
    s_load_dwordx2 s[24:25], s[0:1], 0
    s_load_dwordx2 s[28:29], s[0:1], 16
    s_load_dwordx2 s[6:7], s[0:1], 56
    s_load_dwordx2 s[8:9], s[0:1], 64
    s_and_b32 s40, s2, 7
    s_lshl_b32 s40, s40, 2
    s_bfe_u32 s3, s2, 0x20003
    s_add_u32 s40, s40, s3
    s_lshr_b32 s41, s2, 5
    v_lshrrev_b32 v1, 6, v0
    s_nop 0
    v_readfirstlane_b32 s42, v1
    v_and_b32 v2, 63, v0
    s_lshr_b32 s48, s42, 2
    s_and_b32 s49, s42, 3
    s_sub_u32 s46, 15, s41
    s_cmp_eq_u32 s48, 0
    s_cselect_b32 s46, s46, s41
    s_lshl_b32 s46, s46, 7
    s_lshl_b32 s47, s49, 5
    s_add_u32 s43, s46, s47
    s_lshl_b32 s47, s42, 5
    s_waitcnt lgkmcnt(0)
    s_mov_b32 s26, 0x200000
    s_mov_b32 s27, 0x00020000
    s_mov_b32 s30, 0x180000
    s_movk_i32 s44, 3072
    s_cmp_eq_u32 s48, 0
    s_cselect_b32 s28, s28, s6
    s_cselect_b32 s29, s29, s7
    s_cselect_b32 s30, 0x400000, s30
    s_cselect_b32 s44, 8192, s44
    s_mov_b32 s31, 0x00020000
    s_mov_b32 s32, s4
    s_mov_b32 s33, s5
    s_mov_b32 s34, 0x10000000
    s_mov_b32 s35, 0x00020000
    s_lshl_b32 s52, s44, 5
    """)
    gemm_setup(a, "s43", "s47")
    for b in range(4):
        a(f"v_xor_b32 v5, {b}, v3\nv_lshl_add_u32 v{RW+b}, v5, 6, v4")
    a(f"""
    v_lshrrev_b32 v4, 4, v2
    v_and_b32 v5, 15, v2
    v_lshlrev_b32 v6, 2, v4
    v_xor_b32 v5, v5, v6
    v_bfe_u32 v6, v5, 1, 2
    v_min_u32 v6, 2, v6
    v_lshlrev_b32 v6, 10, v6
    v_and_b32 v7, 1, v5
    v_lshl_add_u32 v6, v7, 4, v6
    s_lshl_b32 s46, s40, 5
    v_add_u32 v6, s46, v6
    v_lshlrev_b32 v5, 4, v5
    s_lshl_b32 s46, s40, 8
    v_add_u32 v5, s46, v5
    s_cmp_eq_u32 s48, 0
    s_cselect_b64 vcc, -1, 0
    v_cndmask_b32 v5, v6, v5, vcc
    s_lshl_b32 s46, s49, 3
    v_add_u32 v4, s46, v4
    """)
    for i in range(2):
        a(f"v_add_u32 v6, {4*i}, v4\nv_mul_lo_u32 v6, v6, s44\nv_add_u32 v{VOW+i}, v6, v5")
    srd(a, 8, "s8", "s9", 16384)
    a("""
    v_and_b32 v5, 15, v2
    v_lshlrev_b32 v5, 1, v5
    v_lshrrev_b32 v4, 5, v2
    v_lshl_add_u32 v5, v4, 7, v5
    s_lshl_b32 s3, s40, 9
    v_add_u32 v5, s3, v5
    """)
    for j in range(8):
        a(f"buffer_load_ushort v{40+j}, v5, s[8:11], 0 offen offset:{((j//4)*8 + j%4)*32}")
    gemm_prologue(a)
    gemm_core(a, 1, [(0,0),(1,0),(2,0),(3,0),(0,8192),(1,8192)], ACC, XF, WF, False)
    a(f"""
    v_and_b32 v3, 31, v2
    v_lshrrev_b32 v4, 5, v2
    s_lshl_b32 s46, s42, 13
    s_add_u32 s46, s46, 98304
    v_lshlrev_b32 v5, 4, v2
    v_add_u32 v5, s46, v5
    s_barrier
    """)
    for n in range(8, 11):
        nb, hf = n // 2, n % 2
        b = ACC + nb*16 + hf*8; t = XF + (n-8)*4
        for p in range(4): a(f"v_cvt_pk_bf16_f32 v{t+p}, v{b+2*p}, v{b+2*p+1}")
    W = 28; TK = 128; TQ = 144; AF = 48; BF = 52; KACC = 216
    a("v_cmp_lt_u32 vcc, 15, v3\nv_mov_b32 v6, 0\nv_mov_b32 v7, 0x80008000\ns_nop 0\nv_cndmask_b32 v6, v6, v7, vcc")
    for p in range(4):
        a(f"v_lshl_or_b32 v{W+p}, v{41+2*p}, 16, v{40+2*p}\nv_xor_b32 v{W+p}, v{W+p}, v6")
    a(f"""
    s_nop 1
    v_mfma_f32_32x32x16_bf16 {vr(TK,16)}, {vr(W,4)}, {vr(XF+4,4)}, 0
    v_mfma_f32_32x32x16_bf16 {vr(TQ,16)}, {vr(W,4)}, {vr(XF,4)}, 0
    """)
    for n in range(8):
        nb, hf = n // 2, n % 2
        b = ACC + nb*16 + hf*8; t = Q + n*4
        for p in range(4): a(f"v_cvt_pk_bf16_f32 v{t+p}, v{b+2*p}, v{b+2*p+1}")
        a(f"ds_write_b128 v5, {vr(t,4)} offset:{n*1024}")
    a(f"""
    s_mov_b32 s56, s40
    s_mov_b32 s40, {k3.LOG2E}
    s_lshl_b32 s28, s42, 12
    v_lshlrev_b32 v33, 6, v3
    v_add_u32 v33, s28, v33
    v_lshl_add_u32 v34, v4, 3, v33
    v_lshl_add_u32 v33, v4, 4, v33
    v_bfe_u32 v7, v2, 2, 2
    v_lshl_add_u32 v6, v4, 3, v7
    v_lshlrev_b32 v6, 6, v6
    v_and_b32 v7, 3, v2
    v_lshl_add_u32 v6, v7, 3, v6
    v_bfe_u32 v7, v2, 4, 1
    v_lshl_add_u32 v6, v7, 5, v6
    v_add_u32 v35, s28, v6
    v_mov_b32 v40, 0
    v_mov_b32 v41, 0
    v_mov_b32 v42, 0
    v_mov_b32 v43, 0
    v_mov_b32 v7, 0x3f80
    v_cmp_eq_u32 vcc, 0, v4
    s_nop 1
    v_cndmask_b32 v40, v40, v7, vcc
    ds_write_b128 v33, v[40:43] offset:{2048+32}
    ds_write_b128 v33, {vr(XF+8,4)} offset:2048
    """)
    k3.rnd16(a, TK, 44)
    k3.softmax16(a, TK, 44)
    for p in range(8): a(f"v_cvt_pk_bf16_f32 v{64+p}, v{TK+2*p}, v{TK+2*p+1}")
    for q in range(4): a(f"ds_write_b64 v34, {vr(64+2*q,2)} offset:{q*16}")
    a("s_waitcnt lgkmcnt(0)")
    for ks in range(2):
        a(f"""
        ds_read_b64_tr_b16 {vr(AF+ks*8,2)}, v35 offset:{ks*1024}
        ds_read_b64_tr_b16 {vr(AF+ks*8+2,2)}, v35 offset:{ks*1024+256}
        ds_read_b64_tr_b16 {vr(BF+ks*8,2)}, v35 offset:{2048+ks*1024}
        ds_read_b64_tr_b16 {vr(BF+ks*8+2,2)}, v35 offset:{2048+ks*1024+256}
        """)
    k3.rnd16(a, TQ, 44)
    a("s_waitcnt lgkmcnt(0)")
    for ks in range(2):
        a(f"v_mfma_f32_32x32x16_bf16 {vr(KACC,16)}, {vr(AF+ks*8,4)}, {vr(BF+ks*8,4)}, {'0' if ks==0 else vr(KACC,16)}")
    k3.softmax16(a, TQ, 44)
    for p in range(8): a(f"v_cvt_pk_bf16_f32 v{72+p}, v{TQ+2*p}, v{TQ+2*p+1}")
    a(f"""
    s_lshl_b32 s46, s56, 11
    s_add_u32 s46, s46, s43
    v_add_u32 v6, s46, v3
    v_lshlrev_b32 v6, 6, v6
    v_lshl_add_u32 v6, v4, 5, v6
    s_mov_b32 s47, {hex(WS_QKVB)}
    buffer_store_dwordx4 v[72:75], v6, s[32:35], s47 offen
    buffer_store_dwordx4 v[76:79], v6, s[32:35], s47 offen offset:16
    v_lshlrev_b32 v5, 4, v2
    v_add_u32 v6, s28, v5
    """)
    for q in range(4): a(f"ds_write_b128 v6, {vr(KACC+q*4,4)} offset:{32768+q*1024}")
    a(f"""
    s_waitcnt lgkmcnt(0)
    s_barrier
    s_cmp_ge_u32 s42, 4
    s_cbranch_scc1 L_k2_nored
    s_lshl_b32 s3, s42, 10
    v_add_u32 v5, s3, v5
    """)
    for w in range(8): a(f"ds_read_b128 {vr(64+w*4,4)}, v5 offset:{32768+w*4096}")
    a("s_waitcnt lgkmcnt(0)")
    for i in range(4):
        a(f"""v_add_f32 v{64+i}, v{64+i}, v{68+i}
        v_add_f32 v{72+i}, v{72+i}, v{76+i}
        v_add_f32 v{80+i}, v{80+i}, v{84+i}
        v_add_f32 v{88+i}, v{88+i}, v{92+i}
        v_add_f32 v{64+i}, v{64+i}, v{72+i}
        v_add_f32 v{80+i}, v{80+i}, v{88+i}
        v_add_f32 v{64+i}, v{64+i}, v{80+i}""")
    a(f"""
    s_lshl_b32 s3, s56, 3
    s_add_u32 s3, s3, s41
    s_lshl_b32 s3, s3, 12
    s_add_u32 s3, s3, {hex(WS_KVP)}
    buffer_store_dwordx4 v[64:67], v5, s[32:35], s3 offen
    L_k2_nored:
    s_barrier
    """)
def gen_k2():
    a = Asm()
    def stamp():
        if INSTR: a("s_memtime s[60:61]\ns_waitcnt lgkmcnt(0)\ns_and_b32 s59, s59, 63\ns_mov_b32 m0, s59\ns_nop 3\nv_writelane_b32 v244, s60, m0\ns_add_u32 s59, s59, 1")
    a(f"""
    s_cmp_ge_u32 s2, {NWG2}
    s_cbranch_scc1 L_k2_end
    """)
    qpro(a)
    a(f"""
    s_load_dwordx2 s[4:5], s[0:1], 104
    s_and_b32 s24, s2, 7
    s_lshl_b32 s24, s24, 2
    s_bfe_u32 s3, s2, 0x20003
    s_add_u32 s24, s24, s3
    s_lshr_b32 s25, s2, 5
    v_lshrrev_b32 v1, 6, v0
    s_nop 0
    v_readfirstlane_b32 s26, v1
    v_and_b32 v2, 63, v0
    s_lshr_b32 s27, s26, 2
    s_and_b32 s28, s26, 3
    s_lshl_b32 s34, s26, 12
    s_mov_b32 s35, {hex(f32bits(128**-0.5 * 1.4426950408889634))}
    s_lshl_b32 s3, s24, 19
    s_waitcnt lgkmcnt(0)
    s_add_u32 s6, s4, s3
    s_addc_u32 s7, s5, 0
    """)
    srd_ws(a, 8, 6, WS_K, 0x80000)
    srd_ws(a, 12, 6, WS_V, 0x80000)
    srd_ws(a, 16, 6, WS_Q, 0x80000)
    srd_ws(a, 20, 4, WS_CTXO, 2048*CTX_PITCH)
    a(f"""
    v_and_b32 v3, 31, v2
    v_lshrrev_b32 v4, 5, v2
    v_lshlrev_b32 v{VDMA}, 4, v2
    v_add_u32 v{VDMA}, s34, v{VDMA}
    s_lshl_b32 s3, s27, 14
    v_and_b32 v5, 15, v2
    v_xor_b32 v5, v5, v4
    v_lshlrev_b32 v5, 4, v5
    v_lshl_add_u32 v5, v3, 8, v5
    v_add_u32 v{KA}, s3, v5
    v_bfe_u32 v5, v2, 1, 3
    v_xor_b32 v5, v5, v4
    v_lshlrev_b32 v5, 4, v5
    v_lshl_add_u32 v5, v3, 7, v5
    v_add_u32 v{VA}, s3, v5
    v_add_u32 v{VA}, 0x10000, v{VA}
    s_lshl_b32 s3, s28, 5
    s_lshl_b32 s37, s27, 6
    s_sub_u32 s3, s3, s37
    v_lshlrev_b32 v5, 2, v4
    v_sub_u32 v5, v3, v5
    v_add_u32 v{VTHR}, s3, v5
    s_mov_b32 s36, 0
    s_mov_b32 s59, 0
    """)
    if INSTR: a("v_mov_b32 v244, 0")
    for s in range(1, 8): a(f"v_xor_b32 v{KA+s}, {s*32}, v{KA}")
    for s in range(1, 4): a(f"v_xor_b32 v{VA+s}, {s*32}, v{VA}")

    def dma(srdreg, soff, buf):
        a(f"s_add_u32 m0, s34, {buf}\ns_nop 0")
        for j in range(4):
            a(f"buffer_load_dwordx4 v{VDMA}, s[{srdreg}:{srdreg+3}], {soff} offen offset:{j*1024} lds")
    def dpiece(srdreg, soff, buf, j, need):
        if need:
            l = a.label("nd")
            a(f"s_cmp_lt_u32 s38, {need}\ns_cbranch_scc1 {l}")
        a(f"s_add_u32 m0, s34, {buf}\ns_nop 0\nbuffer_load_dwordx4 v{VDMA}, s[{srdreg}:{srdreg+3}], {soff} offen offset:{j*1024} lds")
        if need: a(f"{l}:")
    def rd_item(it, slot, parv, park):
        k, s, b = it
        if k == "pv": a(f"ds_read_b128 {vr(FS[slot],4)}, v{VA+s} offset:{VB[parv]-65536+b*4096}")
        else: a(f"ds_read_b128 {vr(FS[slot],4)}, v{KA+s} offset:{KB[park]+b*8192}")
    QKI = [("qk", s, kb) for s in range(8) for kb in range(2)]
    PVI = [("pv", s, db) for s in range(4) for db in range(4)]
    def pre(items, parv, park):
        for i in range(8): rd_item(items[i], i, parv, park)
    def MM(items, parv, park, fill=None, ld=True):
        n = len(items); SQ = SS[park]
        for i, it in enumerate(items):
            k, s, b = it
            a(f"s_waitcnt lgkmcnt({min(7, n-1-i)})")
            if k == "pv":
                if fill is not None and s == 0 and b == 0: a("s_nop 1")
                acc = vr(O+b*16, 16)
                a(f"v_mfma_f32_32x32x16_bf16 {acc}, {vr(FS[i%8],4)}, {vr(P+s*4,4)}, {acc}")
            else:
                acc = vr(SQ+b*16, 16)
                a(f"v_mfma_f32_32x32x16_bf16 {acc}, {vr(FS[i%8],4)}, {vr(Q+s*4,4)}, {'0' if s==0 else acc}")
            if i + 8 < n: rd_item(items[i+8], i % 8, parv, park)
            if k == "qk" and fill is not None:
                for x in fill[i]: a(x)
            if ld and i % 4 == 1:
                if k == "pv": dpiece(12, "s33", VB[parv ^ 1], (i % 16) // 4, 0)
                else: dpiece(8, "s32", KB[park ^ 1], (i % 16) // 4, 2)
    def SM_parts(S):
        lr = a.label("noresc")
        A = [f"v_max3_f32 v24, v{S}, v{S+1}, v{S+2}", f"v_max3_f32 v25, v{S+16}, v{S+17}, v{S+18}"]
        for i in range(3, 15, 2):
            A += [f"v_max3_f32 v24, v24, v{S+i}, v{S+i+1}", f"v_max3_f32 v25, v25, v{S+16+i}, v{S+16+i+1}"]
        A2 = f"""v_max3_f32 v24, v24, v{S+15}, v25
        v_max_f32 v24, v24, v{S+31}
        v_mov_b32 v25, v24
        s_nop 1
        v_permlane32_swap_b32 v24, v25
        s_nop 1
        v_max_f32 v24, v24, v25
        v_mul_f32 v24, s35, v24
        v_max_f32 v25, v{VM}, v24
        v_sub_f32 v26, v25, v{VM}
        v_cmp_lt_f32 vcc, 0x41000000, v26
        s_cbranch_vccz {lr}
        v_sub_f32 v26, 0, v26
        v_exp_f32 v26, v26
        v_mov_b32 v{VM}, v25
        s_nop 0
        v_mov_b32 v27, v26
        v_mul_f32 v{VL}, v{VL}, v26
        """ + "\n".join(f"v_pk_mul_f32 {vr(O+i,2)}, {vr(O+i,2)}, v[26:27]" for i in range(0, 64, 2)) + f"\n{lr}:\nv_sub_f32 v28, 0, v{VM}"
        B = []
        for p in range(17):
            if p < 16:
                B += [f"v_fma_f32 v{S+2*p}, v{S+2*p}, s35, v28", f"v_fma_f32 v{S+2*p+1}, v{S+2*p+1}, s35, v28"]
            if p >= 1:
                q = p - 1
                B += [f"v_exp_f32 v{S+2*q}, v{S+2*q}", f"v_exp_f32 v{S+2*q+1}, v{S+2*q+1}"]
            if p >= 2:
                q = p - 2
                B += [f"v_add_f32 v{VL}, v{VL}, v{S+2*q}", f"v_add_f32 v29, v29, v{S+2*q+1}" if q else f"v_mov_b32 v29, v{S+1}",
                      f"v_cvt_pk_bf16_f32 v{P+q}, v{S+2*q}, v{S+2*q+1}"]
        B += ["s_nop 0", f"v_add_f32 v{VL}, v{VL}, v{S+30}", f"v_add_f32 v29, v29, v{S+31}", f"v_cvt_pk_bf16_f32 v{P+15}, v{S+30}, v{S+31}", f"v_add_f32 v{VL}, v{VL}, v29"]
        return A, A2, B
    def mask(S):
        a("v_mov_b32 v24, 0xf149f2ca")
        for kb in range(2):
            for r in range(16):
                c = kb*32 + (r//4)*8 + r % 4
                a(f"v_cmp_gt_i32 vcc, {c}, v{VTHR}\ns_nop 1\nv_cndmask_b32 v{S+kb*16+r}, v{S+kb*16+r}, v24, vcc")
    def top():
        a(f"""
        s_waitcnt vmcnt(0)
        s_barrier
        s_add_u32 s3, s31, 1
        s_lshl_b32 s33, s3, 15
        s_sub_u32 s38, s30, s3
        s_add_u32 s3, s31, 2
        s_lshl_b32 s32, s3, 15
        s_cmp_eq_u32 s38, 0
        """)
    a("L_k2_pass:")
    a(f"""
    s_sub_u32 s29, 15, s25
    s_cmp_eq_u32 s36, 0
    s_cselect_b32 s29, s29, s25
    s_add_u32 s30, s29, 1
    s_lshl_b32 s3, s36, 15
    s_lshl_b32 s37, s28, 13
    s_add_u32 s3, s3, s37
    s_add_u32 s3, s3, 98304
    v_lshlrev_b32 v5, 4, v2
    v_add_u32 v5, s3, v5
    """)
    dma(8, "0", KB[0])
    for s in range(8): a(f"ds_read_b128 {vr(Q+s*4,4)}, v5 offset:{s*1024}")
    dma(12, "0", VB[0])
    lk = a.label("nok1")
    a(f"s_cmp_lt_u32 s30, 2\ns_cbranch_scc1 {lk}\ns_mov_b32 s32, 32768")
    dma(8, "s32", KB[1])
    a(f"{lk}:")
    a(f"v_mov_b32 v{VM}, 0xe0ad78ec\nv_mov_b32 v{VL}, 0")
    for i in range(64): a(f"v_mov_b32 v{O+i}, 0")
    a("s_mov_b32 s31, 0\ns_waitcnt vmcnt(0) lgkmcnt(0)\ns_barrier")
    pre(QKI, 0, 0)
    MM(QKI, 0, 0, None, False)
    a("L_k2_loop:")
    for par in range(2):
        top()
        a(f"s_cbranch_scc1 L_k2_tail{par}")
        stamp()
        items = QKI + PVI
        pre(items, par, par ^ 1)
        A, A2, B = SM_parts(SS[par])
        for x in A[:8]: a(x)
        fill = [[] for _ in range(16)]
        fill[0] = A[8:12]; fill[1] = A[12:] + [A2]
        per = (len(B) + 13) // 14
        for i in range(14): fill[2+i] = B[i*per:(i+1)*per]
        MM(items, par, par ^ 1, fill)
        a("s_add_u32 s31, s31, 1")
        stamp()
    a("s_branch L_k2_loop")
    for par in range(2):
        a(f"L_k2_tail{par}:")
        pre(PVI, par, par ^ 1)
        a("s_nop 7")
        mask(SS[par])
        A, A2, B = SM_parts(SS[par])
        for x in A: a(x)
        a(A2)
        for x in B: a(x)
        a("s_nop 1")
        MM(PVI, par, par ^ 1, None, False)
        if par == 0: a("s_branch L_k2_merge")
    a("L_k2_merge:")
    S = SS[0]
    a(f"""
    s_nop 15
    v_mov_b32 v25, v{VL}
    s_nop 1
    v_permlane32_swap_b32 v{VL}, v25
    s_nop 1
    v_add_f32 v{VL}, v{VL}, v25
    s_mul_i32 s3, s26, 8704
    v_lshlrev_b32 v5, 4, v2
    v_add_u32 v5, s3, v5
    v_lshlrev_b32 v6, 2, v2
    v_add_u32 v6, s3, v6
    s_xor_b32 s37, s26, 4
    s_mul_i32 s37, s37, 8704
    s_barrier
    ds_write_b32 v6, v{VM} offset:8192
    ds_write_b32 v6, v{VL} offset:8448
    s_cmp_eq_u32 s27, 0
    s_cbranch_scc1 L_k2_m0
    """)
    def merge(g):
        keep = O + (0 if g == 0 else 32); send = O + (32 if g == 0 else 0)
        for q in range(8): a(f"ds_write_b128 v5, {vr(send+q*4,4)} offset:{q*1024}")
        a(f"""
        v_lshlrev_b32 v5, 4, v2
        v_add_u32 v5, s37, v5
        v_lshlrev_b32 v6, 2, v2
        v_add_u32 v6, s37, v6
        s_waitcnt lgkmcnt(0)
        s_barrier
        ds_read_b32 v24, v6 offset:8192
        ds_read_b32 v25, v6 offset:8448
        """)
        for q in range(8): a(f"ds_read_b128 {vr(S+q*4,4)}, v5 offset:{q*1024}")
        a(f"""
        s_waitcnt lgkmcnt(8)
        v_max_f32 v26, v{VM}, v24
        v_sub_f32 v27, v{VM}, v26
        v_sub_f32 v28, v24, v26
        v_exp_f32 v27, v27
        v_exp_f32 v28, v28
        s_nop 0
        v_mul_f32 v29, v27, v{VL}
        v_fma_f32 v29, v28, v25, v29
        v_rcp_f32 v29, v29
        s_nop 0
        v_mul_f32 v27, v27, v29
        v_mul_f32 v28, v28, v29
        s_lshl_b32 s3, s29, 7
        s_lshl_b32 s37, s28, 5
        s_add_u32 s3, s3, s37
        v_add_u32 v5, s3, v3
        s_movk_i32 s37, {CTX_PITCH}
        v_mul_lo_u32 v5, v5, s37
        v_lshl_add_u32 v5, v4, 4, v5
        s_lshl_b32 s3, s24, 8
        s_add_u32 s3, s3, {g*128}
        v_add_u32 v5, s3, v5
        s_waitcnt lgkmcnt(0)
        """)
        for i in range(32):
            a(f"v_mul_f32 v{keep+i}, v27, v{keep+i}\nv_fma_f32 v{keep+i}, v28, v{S+i}, v{keep+i}")
        for q in range(4):
            for p in range(4):
                a(f"v_cvt_pk_bf16_f32 v{P+q*4+p}, v{keep+q*8+2*p}, v{keep+q*8+2*p+1}")
            a(f"buffer_store_dwordx4 {vr(P+q*4,4)}, v5, s[20:23], 0 offen offset:{q*32}")
    merge(1)
    a("s_branch L_k2_mdone\nL_k2_m0:")
    merge(0)
    a("L_k2_mdone:")
    if INSTR:
        a(f"""
        s_cmp_lg_u32 s36, 0
        s_cbranch_scc1 L_nodump
        s_lshl_b32 s3, s2, 3
        s_add_u32 s3, s3, s26
        s_lshl_b32 s3, s3, 8
        v_lshlrev_b32 v5, 2, v2
        v_add_u32 v5, s3, v5
        s_add_u32 s64, s4, {hex(100<<20)}
        s_addc_u32 s65, s5, 0
        s_mov_b32 s66, 0x1000000
        s_mov_b32 s67, 0x00020000
        buffer_store_dword v244, v5, s[64:67], 0 offen
        L_nodump:
        """)
    a("""
    s_barrier
    s_add_u32 s36, s36, 1
    s_cmp_lt_u32 s36, 2
    s_cbranch_scc1 L_k2_pass
    """)
    a("L_k2_end:\ns_endpgm")
    return a.text()
```

```python
from common import *
import struct
def f32bits(x): return struct.unpack("<I", struct.pack("<f", x))[0]
LOG2E = hex(f32bits(1.4426950408889634))

def rnd16(a, T, tmp):
    for i in range(8):
        a(f"v_cvt_pk_bf16_f32 v{tmp}, v{T+2*i}, v{T+2*i+1}\nv_lshlrev_b32 v{T+2*i}, 16, v{tmp}\nv_and_b32 v{T+2*i+1}, 0xffff0000, v{tmp}")

def softmax16(a, T, t0):
    for hb in (0, 8):
        B = T + hb
        a(f"""
        v_max3_f32 v{t0}, v{B}, v{B+1}, v{B+2}
        v_max3_f32 v{t0}, v{t0}, v{B+3}, v{B+4}
        v_max3_f32 v{t0}, v{t0}, v{B+5}, v{B+6}
        v_max_f32 v{t0}, v{t0}, v{B+7}
        v_mov_b32 v{t0+1}, v{t0}
        s_nop 1
        v_permlane32_swap_b32 v{t0}, v{t0+1}
        s_nop 1
        v_max_f32 v{t0}, v{t0}, v{t0+1}
        v_mul_f32 v{t0}, s40, v{t0}
        """)
        for i in range(8): a(f"v_fma_f32 v{B+i}, v{B+i}, s40, -v{t0}")
        for i in range(8): a(f"v_exp_f32 v{B+i}, v{B+i}")
        a(f"s_nop 0\nv_add_f32 v{t0}, v{B}, v{B+1}")
        for i in range(2, 8): a(f"v_add_f32 v{t0}, v{t0}, v{B+i}")
        a(f"""
        v_mov_b32 v{t0+1}, v{t0}
        s_nop 1
        v_permlane32_swap_b32 v{t0}, v{t0+1}
        s_nop 1
        v_add_f32 v{t0}, v{t0}, v{t0+1}
        v_rcp_f32 v{t0}, v{t0}
        s_nop 0
        """)
        for i in range(8): a(f"v_mul_f32 v{B+i}, v{B+i}, v{t0}")

def wphi_frag(a, W):
    a("""
    v_and_b32 v5, 15, v3
    v_lshlrev_b32 v5, 1, v5
    v_lshl_add_u32 v5, v4, 7, v5
    s_lshl_b32 s3, s24, 9
    v_add_u32 v5, s3, v5
    """)
    for j in range(8):
        a(f"buffer_load_ushort v{40+j}, v5, s[8:11], 0 offen offset:{((j//4)*8 + j%4)*32}")
    a("v_cmp_lt_u32 vcc, 15, v3\nv_mov_b32 v6, 0\nv_mov_b32 v7, 0x80008000\ns_nop 0\nv_cndmask_b32 v6, v6, v7, vcc\ns_waitcnt vmcnt(0)")
    for p in range(4):
        a(f"v_lshl_or_b32 v{W+p}, v{41+2*p}, 16, v{40+2*p}\nv_xor_b32 v{W+p}, v{W+p}, v6")

def head_common(a, nwg, endl):
    a(f"""
    s_cmp_ge_u32 s2, {nwg}
    s_cbranch_scc1 {endl}
    s_load_dwordx2 s[4:5], s[0:1], 104
    s_load_dwordx2 s[6:7], s[0:1], 64
    s_load_dwordx2 s[44:45], s[0:1], 0
    s_load_dwordx2 s[46:47], s[0:1], 80
    v_lshrrev_b32 v1, 6, v0
    s_nop 0
    v_readfirstlane_b32 s26, v1
    v_and_b32 v2, 63, v0
    v_and_b32 v3, 31, v2
    v_lshrrev_b32 v4, 5, v2
    s_lshr_b32 s24, s2, 2
    s_and_b32 s25, s2, 3
    s_mov_b32 s40, {LOG2E}
    s_waitcnt lgkmcnt(0)
    """)
    srd(a, 8, "s6", "s7", 16384)
    srd_ws(a, 12, 4, WS_QKVB, 2048*3072)
    srd_ws(a, 16, 4, WS_KVP, 32*4*4096)

def gen_k3a():
    a = Asm()
    head_common(a, 192, "L_k3a_end")
    a("s_cmp_ge_u32 s2, 128\ns_cbranch_scc1 L_k3a_gate")
    W = 8; T = 16; ACC = 64; AF = 32; BF = 36
    wphi_frag(a, W)
    a(f"""
    s_lshl_b32 s3, s25, 9
    s_lshl_b32 s27, s26, 7
    s_add_u32 s3, s3, s27
    v_add_u32 v5, s3, v3
    s_movk_i32 s27, 3072
    v_mul_lo_u32 v5, v5, s27
    v_lshl_add_u32 v5, v4, 4, v5
    s_lshl_b32 s3, s24, 5
    v_add_u32 v12, s3, v5
    s_lshl_b32 s28, s26, 12
    v_lshlrev_b32 v13, 6, v3
    v_add_u32 v13, s28, v13
    v_lshl_add_u32 v14, v4, 3, v13
    v_lshl_add_u32 v13, v4, 4, v13
    v_lshrrev_b32 v6, 5, v2
    v_bfe_u32 v7, v2, 2, 2
    v_lshl_add_u32 v6, v6, 3, v7
    v_lshlrev_b32 v6, 6, v6
    v_and_b32 v7, 3, v2
    v_lshl_add_u32 v6, v7, 3, v6
    v_bfe_u32 v7, v2, 4, 1
    v_lshl_add_u32 v6, v7, 5, v6
    v_add_u32 v15, s28, v6
    v_mov_b32 v40, 0
    v_mov_b32 v41, 0
    v_mov_b32 v42, 0
    v_mov_b32 v43, 0
    v_mov_b32 v7, 0x3f80
    v_cmp_eq_u32 vcc, 0, v4
    s_nop 1
    v_cndmask_b32 v40, v40, v7, vcc
    ds_write_b128 v13, v[40:43] offset:{2048+32}
    s_mov_b32 s29, 0
    """)
    for blk in range(4):
        a(f"""
        buffer_load_dwordx4 v[44:47], v12, s[12:15], s29 offen offset:1024
        buffer_load_dwordx4 v[48:51], v12, s[12:15], s29 offen offset:2048
        s_add_u32 s29, s29, {32*3072}
        s_waitcnt vmcnt(1)
        v_mfma_f32_32x32x16_bf16 {vr(T,16)}, {vr(W,4)}, v[44:47], 0
        s_waitcnt vmcnt(0)
        ds_write_b128 v13, v[48:51] offset:2048
        s_nop 15
        """)
        rnd16(a, T, 40)
        softmax16(a, T, 40)
        for p in range(8): a(f"v_cvt_pk_bf16_f32 v{44+p}, v{T+2*p}, v{T+2*p+1}")
        for q in range(4): a(f"ds_write_b64 v14, {vr(44+2*q,2)} offset:{q*16}")
        a("s_waitcnt lgkmcnt(0)")
        for ks in range(2):
            a(f"""
            ds_read_b64_tr_b16 {vr(AF,2)}, v15 offset:{ks*1024}
            ds_read_b64_tr_b16 {vr(AF+2,2)}, v15 offset:{ks*1024+256}
            ds_read_b64_tr_b16 {vr(BF,2)}, v15 offset:{2048+ks*1024}
            ds_read_b64_tr_b16 {vr(BF+2,2)}, v15 offset:{2048+ks*1024+256}
            s_waitcnt lgkmcnt(0)
            v_mfma_f32_32x32x16_bf16 {vr(ACC,16)}, {vr(AF,4)}, {vr(BF,4)}, {'0' if blk==0 and ks==0 else vr(ACC,16)}
            """)
    a("""
    s_nop 15
    v_lshlrev_b32 v5, 4, v2
    v_add_u32 v6, s28, v5
    """)
    for q in range(4): a(f"ds_write_b128 v6, {vr(ACC+q*4,4)} offset:{16384+q*1024}")
    a("""
    s_waitcnt lgkmcnt(0)
    s_barrier
    s_lshl_b32 s3, s26, 10
    v_add_u32 v5, s3, v5
    """)
    for w in range(4): a(f"ds_read_b128 {vr(16+w*4,4)}, v5 offset:{16384+w*4096}")
    a("s_waitcnt lgkmcnt(0)")
    for i in range(4):
        a(f"v_add_f32 v{16+i}, v{16+i}, v{20+i}\nv_add_f32 v{24+i}, v{24+i}, v{28+i}\nv_add_f32 v{16+i}, v{16+i}, v{24+i}")
    a("""
    s_lshl_b32 s3, s2, 12
    s_lshl_b32 s27, s26, 10
    s_add_u32 s3, s3, s27
    v_lshlrev_b32 v5, 2, v2
    v_add_u32 v5, s3, v5
    """)
    for i in range(4): a(f"buffer_store_dword v{16+i}, v5, s[16:19], 0 offen offset:{i*256}")
    a("s_branch L_k3a_end")
    a("L_k3a_gate:")
    srd(a, 8, "s44", "s45", 0x200000)
    srd(a, 12, "s46", "s47", 1024)
    srd_ws(a, 16, 4, WS_G, 8192)
    a("""
    s_sub_u32 s3, s2, 128
    s_lshl_b32 s3, s3, 5
    s_lshl_b32 s27, s26, 3
    s_add_u32 s3, s3, s27
    v_lshrrev_b32 v5, 3, v2
    v_add_u32 v5, s3, v5
    v_and_b32 v6, 7, v2
    v_lshlrev_b32 v6, 7, v6
    v_lshl_add_u32 v7, v5, 10, v6
    """)
    for j in range(8):
        a(f"buffer_load_dwordx4 {vr(16+j*4,4)}, v7, s[8:11], 0 offen offset:{j*16}")
        a(f"buffer_load_dwordx4 {vr(64+j*4,4)}, v6, s[12:15], 0 offen offset:{j*16}")
    a("v_mov_b32 v8, 0\nv_mov_b32 v9, 0\ns_waitcnt vmcnt(0)")
    for i in range(32):
        a(f"""
        v_lshlrev_b32 v10, 16, v{16+i}
        v_lshlrev_b32 v11, 16, v{64+i}
        v_fmac_f32 v8, v10, v11
        v_and_b32 v10, 0xffff0000, v{16+i}
        v_and_b32 v11, 0xffff0000, v{64+i}
        v_fmac_f32 v9, v10, v11
        """)
    a("v_add_f32 v8, v8, v9")
    for off in (0x041F, 0x081F, 0x101F):
        a(f"ds_swizzle_b32 v9, v8 offset:{hex(off)}\ns_waitcnt lgkmcnt(0)\nv_add_f32 v8, v8, v9")
    a("""
    v_cvt_pk_bf16_f32 v8, v8, v8
    v_and_b32 v8, 0xffff0000, v8
    v_mul_f32 v8, s40, v8
    v_sub_f32 v8, 0, v8
    v_exp_f32 v8, v8
    s_nop 0
    v_add_f32 v8, 1.0, v8
    v_rcp_f32 v8, v8
    s_nop 0
    v_cvt_pk_bf16_f32 v8, v8, v8
    v_and_b32 v8, 0xffff0000, v8
    v_lshlrev_b32 v5, 2, v5
    buffer_store_dword v8, v5, s[16:19], 0 offen
    """)
    a("L_k3a_end:\ns_endpgm")
    return a.text()

def gen_k3c():
    a = Asm()
    head_common(a, 576, "L_k3c_end")
    a("s_cmp_ge_u32 s2, 512\ns_cbranch_scc1 L_k3c_gate")
    srd_ws(a, 16, 4, WS_KVP, 32*8*4096)
    srd_ws(a, 20, 4, WS_CTXO, 2048*CTX_PITCH)
    KVF = 32; PF = 52; D2 = 16
    a("""
    s_lshr_b32 s24, s2, 4
    s_and_b32 s25, s2, 15
    s_lshl_b32 s3, s25, 7
    s_lshl_b32 s27, s26, 5
    s_add_u32 s28, s3, s27
    s_lshl_b32 s3, s24, 11
    s_add_u32 s3, s3, s28
    v_add_u32 v6, s3, v3
    v_lshlrev_b32 v6, 6, v6
    v_lshl_add_u32 v6, v4, 5, v6
    buffer_load_dwordx4 v[52:55], v6, s[12:15], 0 offen
    buffer_load_dwordx4 v[56:59], v6, s[12:15], 0 offen offset:16
    s_lshl_b32 s3, s24, 15
    v_lshlrev_b32 v5, 4, v2
    v_add_u32 v5, s3, v5
    """)
    for c in range(8):
        a(f"s_movk_i32 s27, {c*4096}")
        for q in range(4): a(f"buffer_load_dwordx4 {vr(64+c*16+q*4,4)}, v5, s[16:19], s27 offen offset:{q*1024}")
    a(f"""
    v_add_u32 v5, s28, v3
    s_movk_i32 s27, {CTX_PITCH}
    v_mul_lo_u32 v6, v5, s27
    v_lshl_add_u32 v6, v4, 4, v6
    s_lshl_b32 s3, s24, 5
    s_add_u32 s3, s3, 8192
    v_add_u32 v13, s3, v6
    s_waitcnt vmcnt(0)
    """)
    for r in range(16):
        a(f"""v_add_f32 v{64+r}, v{64+r}, v{80+r}
        v_add_f32 v{96+r}, v{96+r}, v{112+r}
        v_add_f32 v{128+r}, v{128+r}, v{144+r}
        v_add_f32 v{160+r}, v{160+r}, v{176+r}
        v_add_f32 v{64+r}, v{64+r}, v{96+r}
        v_add_f32 v{128+r}, v{128+r}, v{160+r}
        v_add_f32 v{64+r}, v{64+r}, v{128+r}""")
    for p in range(8): a(f"v_cvt_pk_bf16_f32 v{KVF+p}, v{64+2*p}, v{64+2*p+1}")
    a(f"""
    s_nop 1
    v_mfma_f32_32x32x16_bf16 {vr(D2,16)}, {vr(KVF,4)}, {vr(PF,4)}, 0
    v_mfma_f32_32x32x16_bf16 {vr(D2,16)}, {vr(KVF+4,4)}, {vr(PF+4,4)}, {vr(D2,16)}
    s_nop 15
    s_nop 3
    v_mov_b32 v40, v{D2+8}
    v_mov_b32 v41, v{D2+8}
    s_nop 1
    v_permlane32_swap_b32 v40, v41
    s_nop 1
    v_cvt_pk_bf16_f32 v40, v40, v40
    v_and_b32 v40, 0xffff0000, v40
    v_add_f32 v40, 0x358637bd, v40
    v_cvt_pk_bf16_f32 v40, v40, v40
    v_and_b32 v40, 0xffff0000, v40
    v_rcp_f32 v40, v40
    """)
    for i in range(4):
        a(f"v_cvt_pk_bf16_f32 v41, v{D2+2*i}, v{D2+2*i+1}\nv_lshlrev_b32 v{D2+2*i}, 16, v41\nv_and_b32 v{D2+2*i+1}, 0xffff0000, v41")
    for i in range(8): a(f"v_mul_f32 v{D2+i}, v{D2+i}, v40")
    for p in range(4): a(f"v_cvt_pk_bf16_f32 v{44+p}, v{D2+2*p}, v{D2+2*p+1}")
    a("buffer_store_dwordx4 v[44:47], v13, s[20:23], 0 offen\ns_endpgm")
    t = gen_k3a()
    g = t[t.index("L_k3a_gate:"):].replace("L_k3a_gate", "L_k3c_gate").replace("L_k3a_end", "L_k3c_end").replace("s_sub_u32 s3, s2, 128", "s_sub_u32 s3, s2, 512")
    return a.text() + g
```

```python
from common import *
NWG4 = 256
def gen_k4():
    a = Asm()
    AA = 64; AB = 80; XF = 96; WF = 128
    VOX = 8; VOW = 12; RX = 16; RWA = 24; RWB = 25
    a(f"""
    s_cmp_ge_u32 s2, {NWG4}
    s_cbranch_scc1 L_k4_end
    s_load_dwordx2 s[4:5], s[0:1], 104
    s_load_dwordx2 s[6:7], s[0:1], 40
    s_load_dwordx2 s[36:37], s[0:1], 72
    s_load_dwordx2 s[38:39], s[0:1], 88
    s_and_b32 s41, s2, 7
    s_lshl_b32 s41, s41, 2
    s_bfe_u32 s3, s2, 0x20003
    s_add_u32 s41, s41, s3
    s_lshr_b32 s40, s2, 5
    v_lshrrev_b32 v1, 6, v0
    s_nop 0
    v_readfirstlane_b32 s42, v1
    v_and_b32 v2, 63, v0
    s_waitcnt lgkmcnt(0)
    """)
    srd_ws(a, 8, 4, WS_CTXO, 2048*CTX_PITCH)
    srd(a, 12, "s6", "s7", 0x400000)
    srd(a, 16, "s36", "s37", 0x80000)
    srd(a, 20, "s38", "s39", 0x200000)
    srd_ws(a, 24, 4, WS_G, 8192)
    a(f"""
    v_lshrrev_b32 v4, 4, v2
    v_and_b32 v5, 15, v2
    s_lshl_b32 s46, s42, 4
    s_lshl_b32 s47, s41, 6
    s_add_u32 s46, s46, s47
    v_add_u32 v3, s46, v4
    s_movk_i32 s43, {CTX_PITCH}
    """)
    for i in range(4):
        a(f"""
        v_add_u32 v6, {4*i}, v4
        v_xor_b32 v6, v5, v6
        v_lshlrev_b32 v6, 4, v6
        v_add_u32 v7, {4*i}, v3
        v_mul_lo_u32 v7, v7, s43
        v_add_u32 v{VOX+i}, v7, v6
        """)
    a("""
    v_and_b32 v5, 7, v2
    v_bfe_u32 v6, v2, 4, 1
    v_lshlrev_b32 v6, 2, v6
    v_xor_b32 v5, v5, v6
    v_lshlrev_b32 v5, 4, v5
    s_lshl_b32 s46, s40, 7
    v_add_u32 v5, s46, v5
    v_lshrrev_b32 v6, 3, v2
    s_lshl_b32 s46, s42, 5
    v_add_u32 v6, s46, v6
    """)
    for i in range(4):
        a(f"v_add_u32 v7, {8*i}, v6\nv_lshl_add_u32 v{VOW+i}, v7, 10, v5")
    a(f"""
    s_lshr_b32 s48, s42, 1
    s_and_b32 s49, s42, 1
    v_and_b32 v3, 31, v2
    v_lshrrev_b32 v4, 5, v2
    s_lshl_b32 s46, s48, 5
    v_add_u32 v5, s46, v3
    v_and_b32 v6, 15, v2
    v_xor_b32 v6, v6, v4
    v_lshlrev_b32 v6, 4, v6
    v_lshl_add_u32 v{RX}, v5, 8, v6
    """)
    for s in range(1, 8): a(f"v_xor_b32 v{RX+s}, {s*32}, v{RX}")
    a(f"""
    v_bfe_u32 v5, v2, 2, 2
    v_lshrrev_b32 v6, 1, v5
    v_xor_b32 v6, s49, v6
    v_lshlrev_b32 v6, 6, v6
    v_and_b32 v7, 3, v2
    v_lshl_add_u32 v6, v7, 3, v6
    v_bfe_u32 v7, v2, 4, 1
    v_lshl_add_u32 v6, v7, 5, v6
    v_add_u32 v6, 16384, v6
    v_lshl_add_u32 v7, v4, 2, v5
    v_lshl_add_u32 v{RWA}, v7, 7, v6
    v_lshl_add_u32 v7, v4, 3, v5
    v_lshl_add_u32 v{RWB}, v7, 7, v6
    s_mov_b32 s50, 0
    s_mov_b32 s51, 0
    s_lshl_b32 s53, s42, 12
    """)
    NK = 36; NS = 5
    def loads(k):
        st = k % NS
        if k == 32: a("s_mov_b32 s51, 0")
        wsrd = "s[12:15]" if k < 32 else "s[16:19]"
        for i in range(4):
            a(f"s_add_u32 m0, s53, {st*32768 + i*1024}\ns_nop 0\nbuffer_load_dwordx4 v{VOX+i}, s[8:11], s50 offen lds")
        for i in range(4):
            a(f"s_add_u32 m0, s53, {st*32768 + 16384 + i*1024}\ns_nop 0\nbuffer_load_dwordx4 v{VOW+i}, {wsrd}, s51 offen lds")
        a("s_add_u32 s50, s50, 256\ns_add_u32 s51, s51, 0x20000")
    def reads(k, s):
        st = k % NS
        o = (st % 2) * 32768; e = (st // 2) * 18
        rw = RWA if k < 32 else RWB
        sec = 1024 if k < 32 else 512
        a(f"ds_read_b128 {vr(XF+s*4,4)}, v{RX+s+e} offset:{o}")
        a(f"ds_read_b64_tr_b16 {vr(WF+s*4,2)}, v{rw+e} offset:{o+s*2048}\nds_read_b64_tr_b16 {vr(WF+s*4+2,2)}, v{rw+e} offset:{o+s*2048+sec}")
    for s in range(10): a(f"v_add_u32 v{RX+s+18}, 0x10000, v{RX+s}\nv_add_u32 v{RX+s+36}, 0x20000, v{RX+s}")
    for k in range(NS-1): loads(k)
    for k in range(NK):
        a(f"s_waitcnt vmcnt({8*min(NS-2, NK-1-k)})\ns_barrier")
        if k + NS-1 < NK: loads(k + NS-1)
        for s in range(5): reads(k, s)
        acc = vr(AA if k < 32 else AB, 16)
        for s in range(8):
            n_iss = min(8, s + 5)
            a(f"s_waitcnt lgkmcnt({(n_iss - s - 1)*3})")
            first = (k in (0, 32)) and s == 0
            a(f"v_mfma_f32_32x32x16_bf16 {acc}, {vr(WF+s*4,4)}, {vr(XF+s*4,4)}, {'0' if first else acc}")
            if s + 5 < 8: reads(k, s + 5)
    a(f"""
    s_lshl_b32 s46, s41, 6
    s_lshl_b32 s47, s48, 5
    s_add_u32 s46, s46, s47
    v_add_u32 v5, s46, v3
    v_lshlrev_b32 v6, 2, v5
    buffer_load_dword v7, v6, s[24:27], 0 offen
    v_lshlrev_b32 v5, 10, v5
    v_lshl_add_u32 v5, v4, 3, v5
    s_lshl_b32 s46, s40, 7
    s_lshl_b32 s47, s49, 6
    s_add_u32 s46, s46, s47
    v_add_u32 v5, s46, v5
    s_nop 7
    s_waitcnt vmcnt(0)
    v_sub_f32 v6, 1.0, v7
    v_cvt_pk_bf16_f32 v6, v6, v6
    v_and_b32 v6, 0xffff0000, v6
    """)
    def rnd(r0, r1):
        a(f"v_cvt_pk_bf16_f32 v8, v{r0}, v{r1}\nv_lshlrev_b32 v{r0}, 16, v8\nv_and_b32 v{r1}, 0xffff0000, v8")
    for i in range(0, 16, 2):
        rnd(AA+i, AA+i+1); rnd(AB+i, AB+i+1)
        for j in (0, 1):
            a(f"v_mul_f32 v{AA+i+j}, v7, v{AA+i+j}\nv_mul_f32 v{AB+i+j}, v6, v{AB+i+j}")
        rnd(AA+i, AA+i+1); rnd(AB+i, AB+i+1)
        for j in (0, 1): a(f"v_add_f32 v{AA+i+j}, v{AA+i+j}, v{AB+i+j}")
        a(f"v_cvt_pk_bf16_f32 v{XF+i//2}, v{AA+i}, v{AA+i+1}")
    for q in range(4):
        a(f"buffer_store_dwordx2 {vr(XF+2*q,2)}, v5, s[20:23], 0 offen offset:{q*16}")
    a("L_k4_end:\ns_endpgm")
    return a.text()
```

```python
import sys
sys.path.insert(0, 'gen')
from common import *
import k1, k2, k3, k4
NAME = "gated_mix__compressed_kv_cla__linear_kernel_hedgehog__prompt"
ref = open(f"cdna_kernels/{NAME}.s.ref").read()
hdr = ref.split("; @launch")[0]
ks = [("proj_kernel", k1.gen_k1(), k1.NWG1, 512, 163840, 256),
      ("attn_kernel", k2.gen_k2(), k2.NWG2, 512, 163840, 248),
      ("oproj_kernel", k4.gen_k4(), k4.NWG4, 256, 163840, 160)]
out = hdr
for n, t, g, b, l, v in ks:
    out += f"; @launch kernel={n} grid=({g},1,1) block=({b},1,1) lds={l}\n"
out += '.amdgcn_target "amdgcn-amd-amdhsa--gfx950"\n.text\n'
for n, t, g, b, l, v in ks:
    out += kernel_head(n) + t
out += '.section .rodata,"a"\n'
for n, t, g, b, l, v in ks:
    out += kernel_desc(n, v)
open(f"cdna_kernels/{NAME}.s", "w").write(out)
print(len(out))
```

```python
from common import *
from gemm import *
NWG1 = 256
def gen_k1():
    a = Asm()
    ACC = 64; XF = 192; WF = 224
    a(f"""
    s_cmp_ge_u32 s2, {NWG1}
    s_cbranch_scc1 L_k1_end
    s_load_dwordx8 s[4:11], s[0:1], 8
    s_load_dwordx2 s[20:21], s[0:1], 104
    s_and_b32 s40, s2, 7
    s_lshl_b32 s40, s40, 2
    s_bfe_u32 s3, s2, 0x20003
    s_add_u32 s40, s40, s3
    s_lshr_b32 s41, s2, 5
    v_lshrrev_b32 v1, 6, v0
    s_nop 0
    v_readfirstlane_b32 s42, v1
    v_and_b32 v2, 63, v0
    s_lshr_b32 s45, s40, 4
    s_and_b32 s44, s40, 15
    s_lshl_b32 s44, s44, 9
    s_lshr_b32 s48, s42, 2
    s_and_b32 s49, s42, 3
    s_lshl_b32 s46, s42, 5
    s_lshl_b32 s47, s41, 8
    s_add_u32 s46, s46, s47
    s_lshl_b32 s47, s48, 7
    s_waitcnt lgkmcnt(0)
    s_mov_b32 s24, s4
    s_mov_b32 s25, s5
    s_mov_b32 s26, 0x200000
    s_mov_b32 s27, 0x00020000
    s_cmp_eq_u32 s45, 0
    s_cselect_b32 s28, s8, s10
    s_cselect_b32 s29, s9, s11
    s_mov_b32 s30, 0x400000
    s_mov_b32 s31, 0x00020000
    s_mov_b32 s32, s20
    s_mov_b32 s33, s21
    s_mov_b32 s34, 0x10000000
    s_mov_b32 s35, 0x00020000
    s_mov_b32 s52, {8192*32}
    """)
    gemm_setup(a, "s46", "s47")
    a("""
    s_lshr_b32 s46, s49, 1
    s_lshl_b32 s46, s46, 13
    v_add_u32 v4, s46, v4
    s_and_b32 s46, s49, 1
    s_lshl_b32 s46, s46, 1
    """)
    for nb in range(2):
        a(f"s_add_u32 s47, s46, {nb}\nv_xor_b32 v5, s47, v3\nv_lshl_add_u32 v{RW+nb}, v5, 6, v4")
    a("""
    v_lshrrev_b32 v4, 4, v2
    v_and_b32 v5, 15, v2
    v_lshlrev_b32 v6, 2, v4
    v_xor_b32 v5, v5, v6
    v_lshlrev_b32 v5, 4, v5
    s_lshl_b32 s46, s48, 8
    s_add_u32 s46, s46, s44
    v_add_u32 v5, s46, v5
    s_lshl_b32 s46, s49, 3
    v_add_u32 v4, s46, v4
    """)
    for i in range(2):
        a(f"v_add_u32 v6, {4*i}, v4\nv_lshl_add_u32 v{VOW+i}, v6, 13, v5")
    gemm_prologue(a)
    a("""
    s_and_b32 s57, s40, 15
    s_lshl_b32 s57, s57, 1
    s_lshr_b32 s46, s49, 1
    s_add_u32 s57, s57, s46
    s_and_b32 s49, s49, 1
    s_cmp_eq_u32 s45, 1
    s_cbranch_scc1 L_k1_vtype
    """)
    gemm_core(a, 4, [(0, 0), (1, 0)], ACC, XF, WF, False)
    a(f"""
    s_lshl_b32 s46, s57, 19
    s_add_u32 s46, s46, {hex(WS_K)}
    s_lshl_b32 s47, s41, 16
    s_add_u32 s46, s46, s47
    s_lshl_b32 s47, s48, 15
    s_add_u32 s46, s46, s47
    s_lshl_b32 s47, s49, 12
    s_add_u32 s46, s46, s47
    v_lshlrev_b32 v5, 4, v2
    """)
    for mb in range(4):
        for nb in range(2):
            for hf in range(2):
                b = ACC + (mb*2+nb)*16 + hf*8
                t = XF + ((mb*4+nb*2+hf) & 7)*4
                for p in range(4):
                    a(f"v_cvt_pk_bf16_f32 v{t+p}, v{b+2*p}, v{b+2*p+1}")
                a(f"buffer_store_dwordx4 {vr(t,4)}, v5, s[32:35], s46 offen offset:{(nb*2+hf)*1024}")
        a("s_add_u32 s46, s46, 8192")
    a("s_endpgm")
    a("L_k1_vtype:")
    gemm_core(a, 4, [(0, 0), (1, 0)], ACC, XF, WF, True)
    a(f"""
    s_lshl_b32 s46, s57, 19
    s_add_u32 s46, s46, {hex(WS_V)}
    s_lshl_b32 s47, s41, 16
    s_add_u32 s46, s46, s47
    s_lshl_b32 s47, s48, 15
    s_add_u32 s46, s46, s47
    s_lshl_b32 s47, s49, 11
    s_add_u32 s46, s46, s47
    v_lshlrev_b32 v5, 4, v2
    """)
    for mb in range(4):
        for hf in range(2):
            for nb in range(2):
                b = ACC + (mb*2+nb)*16 + hf*8
                t = XF + ((mb*4+nb+hf*2) & 7)*4
                for p in range(4):
                    a(f"v_cvt_pk_bf16_f32 v{t+p}, v{b+2*p}, v{b+2*p+1}")
                a(f"buffer_store_dwordx4 {vr(t,4)}, v5, s[32:35], s46 offen offset:{nb*1024}")
            a("s_add_u32 s46, s46, 4096")
    a("L_k1_end:\ns_endpgm")
    return a.text()
```

```python
from common import *
from gemm import *
import k3
import struct, os
def f32bits(x): return struct.unpack("<I", struct.pack("<f", x))[0]
NWG2 = 256
O = 64; SS = [128, 160]; P = 192; Q = 208
FS = [36, 40, 44, 48, 52, 56, 60, 240]
KA = 8; VA = 16
VM = 20; VL = 21; VTHR = 22; VDMA = 23
KB = [0, 32768]; VB = [65536, 98304]
INSTR = os.environ.get("INSTR") == "1"
G0S = int(os.environ.get("G0S", "16"))
def qpro(a):
    ACC = 64; XF = 160; WF = 168
    a(f"""
    s_load_dwordx2 s[4:5], s[0:1], 104
    s_load_dwordx2 s[24:25], s[0:1], 0
    s_load_dwordx2 s[28:29], s[0:1], 16
    s_load_dwordx2 s[6:7], s[0:1], 56
    s_load_dwordx2 s[8:9], s[0:1], 64
    s_and_b32 s40, s2, 7
    s_lshl_b32 s40, s40, 2
    s_bfe_u32 s3, s2, 0x20003
    s_add_u32 s40, s40, s3
    s_lshr_b32 s41, s2, 5
    v_lshrrev_b32 v1, 6, v0
    s_nop 0
    v_readfirstlane_b32 s42, v1
    v_and_b32 v2, 63, v0
    s_lshr_b32 s48, s42, 2
    s_and_b32 s49, s42, 3
    s_sub_u32 s46, 15, s41
    s_cmp_eq_u32 s48, 0
    s_cselect_b32 s46, s46, s41
    s_lshl_b32 s46, s46, 7
    s_lshl_b32 s47, s49, 5
    s_add_u32 s43, s46, s47
    s_lshl_b32 s47, s42, 5
    s_waitcnt lgkmcnt(0)
    s_mov_b32 s26, 0x200000
    s_mov_b32 s27, 0x00020000
    s_mov_b32 s30, 0x180000
    s_movk_i32 s44, 3072
    s_cmp_eq_u32 s48, 0
    s_cselect_b32 s28, s28, s6
    s_cselect_b32 s29, s29, s7
    s_cselect_b32 s30, 0x400000, s30
    s_cselect_b32 s44, 8192, s44
    s_mov_b32 s31, 0x00020000
    s_mov_b32 s32, s4
    s_mov_b32 s33, s5
    s_mov_b32 s34, 0x10000000
    s_mov_b32 s35, 0x00020000
    s_lshl_b32 s52, s44, 5
    """)
    gemm_setup(a, "s43", "s47")
    for b in range(4):
        a(f"v_xor_b32 v5, {b}, v3\nv_lshl_add_u32 v{RW+b}, v5, 6, v4")
    a(f"""
    v_lshrrev_b32 v4, 4, v2
    v_and_b32 v5, 15, v2
    v_lshlrev_b32 v6, 2, v4
    v_xor_b32 v5, v5, v6
    v_bfe_u32 v6, v5, 1, 2
    v_min_u32 v6, 2, v6
    v_lshlrev_b32 v6, 10, v6
    v_and_b32 v7, 1, v5
    v_lshl_add_u32 v6, v7, 4, v6
    s_lshl_b32 s46, s40, 5
    v_add_u32 v6, s46, v6
    v_lshlrev_b32 v5, 4, v5
    s_lshl_b32 s46, s40, 8
    v_add_u32 v5, s46, v5
    s_cmp_eq_u32 s48, 0
    s_cselect_b64 vcc, -1, 0
    v_cndmask_b32 v5, v6, v5, vcc
    s_lshl_b32 s46, s49, 3
    v_add_u32 v4, s46, v4
    """)
    for i in range(2):
        a(f"v_add_u32 v6, {4*i}, v4\nv_mul_lo_u32 v6, v6, s44\nv_add_u32 v{VOW+i}, v6, v5")
    srd(a, 8, "s8", "s9", 16384)
    a("""
    v_and_b32 v5, 15, v2
    v_lshlrev_b32 v5, 1, v5
    v_lshrrev_b32 v4, 5, v2
    v_lshl_add_u32 v5, v4, 7, v5
    s_lshl_b32 s3, s40, 9
    v_add_u32 v5, s3, v5
    """)
    for j in range(8):
        a(f"buffer_load_ushort v{40+j}, v5, s[8:11], 0 offen offset:{((j//4)*8 + j%4)*32}")
    gemm_prologue(a)
    gemm_core(a, 1, [(0,0),(1,0),(2,0),(3,0),(0,8192),(1,8192)], ACC, XF, WF, False)
    a(f"""
    v_and_b32 v3, 31, v2
    v_lshrrev_b32 v4, 5, v2
    s_lshl_b32 s46, s42, 13
    s_add_u32 s46, s46, 98304
    v_lshlrev_b32 v5, 4, v2
    v_add_u32 v5, s46, v5
    s_barrier
    """)
    for n in range(8, 11):
        nb, hf = n // 2, n % 2
        b = ACC + nb*16 + hf*8; t = XF + (n-8)*4
        for p in range(4): a(f"v_cvt_pk_bf16_f32 v{t+p}, v{b+2*p}, v{b+2*p+1}")
    W = 28; TK = 128; TQ = 144; AF = 48; BF = 52; KACC = 216
    a("v_cmp_lt_u32 vcc, 15, v3\nv_mov_b32 v6, 0\nv_mov_b32 v7, 0x80008000\ns_nop 0\nv_cndmask_b32 v6, v6, v7, vcc")
    for p in range(4):
        a(f"v_lshl_or_b32 v{W+p}, v{41+2*p}, 16, v{40+2*p}\nv_xor_b32 v{W+p}, v{W+p}, v6")
    a(f"""
    s_nop 1
    v_mfma_f32_32x32x16_bf16 {vr(TK,16)}, {vr(W,4)}, {vr(XF+4,4)}, 0
    v_mfma_f32_32x32x16_bf16 {vr(TQ,16)}, {vr(W,4)}, {vr(XF,4)}, 0
    """)
    for n in range(8):
        nb, hf = n // 2, n % 2
        b = ACC + nb*16 + hf*8; t = Q + n*4
        for p in range(4): a(f"v_cvt_pk_bf16_f32 v{t+p}, v{b+2*p}, v{b+2*p+1}")
        a(f"ds_write_b128 v5, {vr(t,4)} offset:{n*1024}")
    a(f"""
    s_mov_b32 s56, s40
    s_mov_b32 s40, {k3.LOG2E}
    s_lshl_b32 s28, s42, 12
    v_lshlrev_b32 v33, 6, v3
    v_add_u32 v33, s28, v33
    v_lshl_add_u32 v34, v4, 3, v33
    v_lshl_add_u32 v33, v4, 4, v33
    v_bfe_u32 v7, v2, 2, 2
    v_lshl_add_u32 v6, v4, 3, v7
    v_lshlrev_b32 v6, 6, v6
    v_and_b32 v7, 3, v2
    v_lshl_add_u32 v6, v7, 3, v6
    v_bfe_u32 v7, v2, 4, 1
    v_lshl_add_u32 v6, v7, 5, v6
    v_add_u32 v35, s28, v6
    v_mov_b32 v40, 0
    v_mov_b32 v41, 0
    v_mov_b32 v42, 0
    v_mov_b32 v43, 0
    v_mov_b32 v7, 0x3f80
    v_cmp_eq_u32 vcc, 0, v4
    s_nop 1
    v_cndmask_b32 v40, v40, v7, vcc
    ds_write_b128 v33, v[40:43] offset:{2048+32}
    ds_write_b128 v33, {vr(XF+8,4)} offset:2048
    """)
    k3.rnd16(a, TK, 44)
    k3.softmax16(a, TK, 44)
    for p in range(8): a(f"v_cvt_pk_bf16_f32 v{64+p}, v{TK+2*p}, v{TK+2*p+1}")
    for q in range(4): a(f"ds_write_b64 v34, {vr(64+2*q,2)} offset:{q*16}")
    a("s_waitcnt lgkmcnt(0)")
    for ks in range(2):
        a(f"""
        ds_read_b64_tr_b16 {vr(AF+ks*8,2)}, v35 offset:{ks*1024}
        ds_read_b64_tr_b16 {vr(AF+ks*8+2,2)}, v35 offset:{ks*1024+256}
        ds_read_b64_tr_b16 {vr(BF+ks*8,2)}, v35 offset:{2048+ks*1024}
        ds_read_b64_tr_b16 {vr(BF+ks*8+2,2)}, v35 offset:{2048+ks*1024+256}
        """)
    k3.rnd16(a, TQ, 44)
    a("s_waitcnt lgkmcnt(0)")
    for ks in range(2):
        a(f"v_mfma_f32_32x32x16_bf16 {vr(KACC,16)}, {vr(AF+ks*8,4)}, {vr(BF+ks*8,4)}, {'0' if ks==0 else vr(KACC,16)}")
    k3.softmax16(a, TQ, 44)
    for p in range(8): a(f"v_cvt_pk_bf16_f32 v{72+p}, v{TQ+2*p}, v{TQ+2*p+1}")
    a(f"""
    s_lshl_b32 s46, s56, 11
    s_add_u32 s46, s46, s43
    v_add_u32 v6, s46, v3
    v_lshlrev_b32 v6, 6, v6
    v_lshl_add_u32 v6, v4, 5, v6
    s_mov_b32 s47, {hex(WS_QKVB)}
    buffer_store_dwordx4 v[72:75], v6, s[32:35], s47 offen
    buffer_store_dwordx4 v[76:79], v6, s[32:35], s47 offen offset:16
    v_lshlrev_b32 v5, 4, v2
    v_add_u32 v6, s28, v5
    """)
    for q in range(4): a(f"ds_write_b128 v6, {vr(KACC+q*4,4)} offset:{32768+q*1024}")
    a(f"""
    s_waitcnt lgkmcnt(0)
    s_barrier
    s_cmp_ge_u32 s42, 4
    s_cbranch_scc1 L_k2_nored
    s_lshl_b32 s3, s42, 10
    v_add_u32 v5, s3, v5
    """)
    for w in range(8): a(f"ds_read_b128 {vr(64+w*4,4)}, v5 offset:{32768+w*4096}")
    a("s_waitcnt lgkmcnt(0)")
    for i in range(4):
        a(f"""v_add_f32 v{64+i}, v{64+i}, v{68+i}
        v_add_f32 v{72+i}, v{72+i}, v{76+i}
        v_add_f32 v{80+i}, v{80+i}, v{84+i}
        v_add_f32 v{88+i}, v{88+i}, v{92+i}
        v_add_f32 v{64+i}, v{64+i}, v{72+i}
        v_add_f32 v{80+i}, v{80+i}, v{88+i}
        v_add_f32 v{64+i}, v{64+i}, v{80+i}""")
    a(f"""
    s_lshl_b32 s3, s56, 3
    s_add_u32 s3, s3, s41
    s_lshl_b32 s3, s3, 12
    s_add_u32 s3, s3, {hex(WS_KVP)}
    buffer_store_dwordx4 v[64:67], v5, s[32:35], s3 offen
    L_k2_nored:
    s_barrier
    """)
def gen_k2():
    a = Asm()
    def stamp():
        if INSTR: a("s_memtime s[60:61]\ns_waitcnt lgkmcnt(0)\ns_and_b32 s59, s59, 63\ns_mov_b32 m0, s59\ns_nop 3\nv_writelane_b32 v244, s60, m0\ns_add_u32 s59, s59, 1")
    a(f"""
    s_cmp_ge_u32 s2, {NWG2}
    s_cbranch_scc1 L_k2_end
    """)
    qpro(a)
    a(f"""
    s_load_dwordx2 s[4:5], s[0:1], 104
    s_and_b32 s24, s2, 7
    s_lshl_b32 s24, s24, 2
    s_bfe_u32 s3, s2, 0x20003
    s_add_u32 s24, s24, s3
    s_lshr_b32 s25, s2, 5
    v_lshrrev_b32 v1, 6, v0
    s_nop 0
    v_readfirstlane_b32 s26, v1
    v_and_b32 v2, 63, v0
    s_lshr_b32 s27, s26, 2
    s_and_b32 s28, s26, 3
    s_lshl_b32 s34, s26, 12
    s_mov_b32 s35, {hex(f32bits(128**-0.5 * 1.4426950408889634))}
    s_lshl_b32 s3, s24, 19
    s_waitcnt lgkmcnt(0)
    s_add_u32 s6, s4, s3
    s_addc_u32 s7, s5, 0
    """)
    srd_ws(a, 8, 6, WS_K, 0x80000)
    srd_ws(a, 12, 6, WS_V, 0x80000)
    srd_ws(a, 16, 6, WS_Q, 0x80000)
    srd_ws(a, 20, 4, WS_CTXO, 2048*CTX_PITCH)
    a(f"""
    v_and_b32 v3, 31, v2
    v_lshrrev_b32 v4, 5, v2
    v_lshlrev_b32 v{VDMA}, 4, v2
    v_add_u32 v{VDMA}, s34, v{VDMA}
    s_lshl_b32 s3, s27, 14
    v_lshlrev_b32 v5, 4, v2
    v_add_u32 v{KA}, s3, v5
    v_add_u32 v{VA}, 0x10000, v{KA}
    s_lshl_b32 s3, s28, 5
    s_lshl_b32 s37, s27, 6
    s_sub_u32 s3, s3, s37
    v_lshlrev_b32 v5, 2, v4
    v_sub_u32 v5, v3, v5
    v_add_u32 v{VTHR}, s3, v5
    s_mov_b32 s36, 0
    s_mov_b32 s59, 0
    """)
    if INSTR: a("v_mov_b32 v244, 0")

    def dma(srdreg, soff, buf):
        a(f"s_add_u32 m0, s34, {buf}\ns_nop 0")
        for j in range(4):
            a(f"buffer_load_dwordx4 v{VDMA}, s[{srdreg}:{srdreg+3}], {soff} offen offset:{j*1024} lds")
    def dpiece(srdreg, soff, buf, j, need):
        if need:
            l = a.label("nd")
            a(f"s_cmp_lt_u32 s38, {need}\ns_cbranch_scc1 {l}")
        a(f"s_add_u32 m0, s34, {buf}\ns_nop 0\nbuffer_load_dwordx4 v{VDMA}, s[{srdreg}:{srdreg+3}], {soff} offen offset:{j*1024} lds")
        if need: a(f"{l}:")
    def rd_item(it, slot, parv, park):
        k, s, b = it
        if k == "pv": a(f"ds_read_b128 {vr(FS[slot],4)}, v{VA} offset:{VB[parv]-65536+s*4096+b*1024}")
        else: a(f"ds_read_b128 {vr(FS[slot],4)}, v{KA} offset:{KB[park]+b*8192+s*1024}")
    QKI = [("qk", s, kb) for s in range(8) for kb in range(2)]
    PVI = [("pv", s, db) for s in range(4) for db in range(4)]
    def pre(items, parv, park):
        for i in range(8): rd_item(items[i], i, parv, park)
    def MM(items, parv, park, fill=None, ld=True, g1=False, mid=None, pre_mid=None):
        n = len(items); SQ = SS[park]; qi = 0
        for i, it in enumerate(items):
            k, s, b = it
            if mid is not None and i == 16:
                a(f"{mid}:")
                for x in pre_mid: a(x)
            a(f"s_waitcnt lgkmcnt({min(7, n-1-i)})")
            if k == "pv":
                if fill is not None and s == 0 and b == 0 and not g1: a("s_nop 1")
                acc = vr(O+b*16, 16)
                a(f"v_mfma_f32_32x32x16_bf16 {acc}, {vr(FS[i%8],4)}, {vr(P+s*4,4)}, {acc}")
            else:
                acc = vr(SQ+b*16, 16)
                a(f"v_mfma_f32_32x32x16_bf16 {acc}, {vr(FS[i%8],4)}, {vr(Q+s*4,4)}, {'0' if s==0 else acc}")
            if i + 8 < n: rd_item(items[i+8], i % 8, parv, park)
            if k == "qk" and fill is not None:
                for x in fill[qi]: a(x)
                qi += 1
            i0 = i - (G0S if not g1 else 0)
            if ld and 0 <= i0 < 16 and i0 % 2 == 1:
                j = i0 // 2
                if j < 4: dpiece(12, "s39" if g1 else "s33", VB[parv ^ 1], j, 0)
                else: dpiece(8, "s32", KB[park ^ 1], j - 4, 2)
    def SM_parts(S):
        lr = a.label("noresc")
        A = [f"v_max3_f32 v24, v{S}, v{S+1}, v{S+2}", f"v_max3_f32 v25, v{S+16}, v{S+17}, v{S+18}"]
        for i in range(3, 15, 2):
            A += [f"v_max3_f32 v24, v24, v{S+i}, v{S+i+1}", f"v_max3_f32 v25, v25, v{S+16+i}, v{S+16+i+1}"]
        A2 = f"""v_max3_f32 v24, v24, v{S+15}, v25
        v_max_f32 v24, v24, v{S+31}
        v_mov_b32 v25, v24
        s_nop 1
        v_permlane32_swap_b32 v24, v25
        s_nop 1
        v_max_f32 v24, v24, v25
        v_mul_f32 v24, s35, v24
        v_max_f32 v25, v{VM}, v24
        v_sub_f32 v26, v25, v{VM}
        v_cmp_lt_f32 vcc, 0x41000000, v26
        s_cbranch_vccz {lr}
        v_sub_f32 v26, 0, v26
        v_exp_f32 v26, v26
        v_mov_b32 v{VM}, v25
        s_nop 0
        v_mov_b32 v27, v26
        v_mul_f32 v{VL}, v{VL}, v26
        """ + "\n".join(f"v_pk_mul_f32 {vr(O+i,2)}, {vr(O+i,2)}, v[26:27]" for i in range(0, 64, 2)) + f"\n{lr}:\nv_sub_f32 v28, 0, v{VM}"
        B = []
        for p in range(17):
            if p < 16:
                B += [f"v_fma_f32 v{S+2*p}, v{S+2*p}, s35, v28", f"v_fma_f32 v{S+2*p+1}, v{S+2*p+1}, s35, v28"]
            if p >= 1:
                q = p - 1
                B += [f"v_exp_f32 v{S+2*q}, v{S+2*q}", f"v_exp_f32 v{S+2*q+1}, v{S+2*q+1}"]
            if p >= 2:
                q = p - 2
                B += [f"v_add_f32 v{VL}, v{VL}, v{S+2*q}", f"v_add_f32 v29, v29, v{S+2*q+1}" if q else f"v_mov_b32 v29, v{S+1}",
                      f"v_cvt_pk_bf16_f32 v{P+q}, v{S+2*q}, v{S+2*q+1}"]
        B += ["s_nop 0", f"v_add_f32 v{VL}, v{VL}, v{S+30}", f"v_add_f32 v29, v29, v{S+31}", f"v_cvt_pk_bf16_f32 v{P+15}, v{S+30}, v{S+31}", f"v_add_f32 v{VL}, v{VL}, v29"]
        return A, A2, B
    def mask(S):
        a("v_mov_b32 v24, 0xf149f2ca")
        for kb in range(2):
            for r in range(16):
                c = kb*32 + (r//4)*8 + r % 4
                a(f"v_cmp_gt_i32 vcc, {c}, v{VTHR}\ns_nop 1\nv_cndmask_b32 v{S+kb*16+r}, v{S+kb*16+r}, v24, vcc")
    def top():
        a(f"""
        s_waitcnt vmcnt(0)
        s_barrier
        s_add_u32 s3, s31, 1
        s_lshl_b32 s33, s3, 15
        s_sub_u32 s38, s30, s3
        s_add_u32 s3, s31, 2
        s_lshl_b32 s32, s3, 15
        s_lshl_b32 s39, s31, 15
        s_cmp_eq_u32 s38, 0
        """)
    a("L_k2_pass:")
    a(f"""
    s_sub_u32 s29, 15, s25
    s_cmp_eq_u32 s36, 0
    s_cselect_b32 s29, s29, s25
    s_add_u32 s30, s29, 1
    s_lshl_b32 s3, s36, 15
    s_lshl_b32 s37, s28, 13
    s_add_u32 s3, s3, s37
    s_add_u32 s3, s3, 98304
    v_lshlrev_b32 v5, 4, v2
    v_add_u32 v5, s3, v5
    """)
    dma(8, "0", KB[0])
    for s in range(8): a(f"ds_read_b128 {vr(Q+s*4,4)}, v5 offset:{s*1024}")
    dma(12, "0", VB[0])
    lk = a.label("nok1")
    a(f"s_cmp_lt_u32 s30, 2\ns_cbranch_scc1 {lk}\ns_mov_b32 s32, 32768")
    dma(8, "s32", KB[1])
    a(f"{lk}:")
    a(f"v_mov_b32 v{VM}, 0xe0ad78ec\nv_mov_b32 v{VL}, 0")
    for i in range(64): a(f"v_mov_b32 v{O+i}, 0")
    a("s_mov_b32 s31, 0\ns_waitcnt vmcnt(0) lgkmcnt(0)\ns_barrier")
    pre(QKI, 0, 0)
    MM(QKI, 0, 0, None, False)
    a("s_cmp_lg_u32 s27, 0\ns_cbranch_scc1 L_k2_g1loop")
    a("L_k2_loop:")
    def mkfill(A, A2, B):
        fill = [[] for _ in range(16)]
        fill[0] = A[8:12]; fill[1] = A[12:] + [A2]
        per = (len(B) + 13) // 14
        for i in range(14): fill[2+i] = B[i*per:(i+1)*per]
        return fill
    for par in range(2):
        top()
        a(f"s_cbranch_scc1 L_k2_tail{par}")
        stamp()
        items = QKI + PVI
        pre(items, par, par ^ 1)
        A, A2, B = SM_parts(SS[par])
        for x in A[:8]: a(x)
        MM(items, par, par ^ 1, mkfill(A, A2, B))
        a("s_add_u32 s31, s31, 1")
        stamp()
    a("s_branch L_k2_loop")
    for par in range(2):
        a(f"L_k2_tail{par}:")
        pre(PVI, par, par ^ 1)
        a("s_nop 7")
        mask(SS[par])
        A, A2, B = SM_parts(SS[par])
        for x in A: a(x)
        a(A2)
        for x in B: a(x)
        a("s_nop 1")
        MM(PVI, par, par ^ 1, None, False)
        a("s_barrier\ns_branch L_k2_merge")
    a("L_k2_g1first:")
    pre(QKI, 1, 1)
    for j in range(4): dpiece(8, "s32", KB[0], j, 2)
    a("s_branch L_k2_g1qk0")
    a("L_k2_g1loop:")
    for par in range(2):
        top()
        a(f"s_cbranch_scc1 L_k2_g1tail{par}")
        stamp()
        if par == 0: a("s_cmp_eq_u32 s31, 0\ns_cbranch_scc1 L_k2_g1first")
        items = PVI + QKI
        pre(items, par ^ 1, par ^ 1)
        A, A2, B = SM_parts(SS[par])
        MM(items, par ^ 1, par ^ 1, mkfill(A, A2, B), True, True, f"L_k2_g1qk{par}", A[:8])
        a("s_add_u32 s31, s31, 1")
        stamp()
    a("s_branch L_k2_g1loop")
    for par in range(2):
        a(f"L_k2_g1tail{par}:")
        for j in range(4): dpiece(12, "s39", VB[par], j, 0)
        if par == 0: a("s_cmp_eq_u32 s31, 0\ns_cbranch_scc1 L_k2_g1t0")
        pre(PVI, par ^ 1, par ^ 1)
        MM(PVI, par ^ 1, par ^ 1, None, False)
        if par == 0: a("L_k2_g1t0:")
        a("s_nop 7")
        mask(SS[par])
        A, A2, B = SM_parts(SS[par])
        for x in A: a(x)
        a(A2)
        for x in B: a(x)
        a("s_waitcnt vmcnt(0)\ns_barrier")
        pre(PVI, par, par ^ 1)
        MM(PVI, par, par ^ 1, None, False)
        if par == 0: a("s_branch L_k2_merge")
    a("L_k2_merge:")
    S = SS[0]
    a(f"""
    s_nop 15
    v_mov_b32 v25, v{VL}
    s_nop 1
    v_permlane32_swap_b32 v{VL}, v25
    s_nop 1
    v_add_f32 v{VL}, v{VL}, v25
    s_mul_i32 s3, s26, 8704
    v_lshlrev_b32 v5, 4, v2
    v_add_u32 v5, s3, v5
    v_lshlrev_b32 v6, 2, v2
    v_add_u32 v6, s3, v6
    s_xor_b32 s37, s26, 4
    s_mul_i32 s37, s37, 8704
    s_barrier
    ds_write_b32 v6, v{VM} offset:8192
    ds_write_b32 v6, v{VL} offset:8448
    s_cmp_eq_u32 s27, 0
    s_cbranch_scc1 L_k2_m0
    """)
    def merge(g):
        keep = O + (0 if g == 0 else 32); send = O + (32 if g == 0 else 0)
        for q in range(8): a(f"ds_write_b128 v5, {vr(send+q*4,4)} offset:{q*1024}")
        a(f"""
        v_lshlrev_b32 v5, 4, v2
        v_add_u32 v5, s37, v5
        v_lshlrev_b32 v6, 2, v2
        v_add_u32 v6, s37, v6
        s_waitcnt lgkmcnt(0)
        s_barrier
        ds_read_b32 v24, v6 offset:8192
        ds_read_b32 v25, v6 offset:8448
        """)
        for q in range(8): a(f"ds_read_b128 {vr(S+q*4,4)}, v5 offset:{q*1024}")
        a(f"""
        s_waitcnt lgkmcnt(8)
        v_max_f32 v26, v{VM}, v24
        v_sub_f32 v27, v{VM}, v26
        v_sub_f32 v28, v24, v26
        v_exp_f32 v27, v27
        v_exp_f32 v28, v28
        s_nop 0
        v_mul_f32 v29, v27, v{VL}
        v_fma_f32 v29, v28, v25, v29
        v_rcp_f32 v29, v29
        s_nop 0
        v_mul_f32 v27, v27, v29
        v_mul_f32 v28, v28, v29
        s_lshl_b32 s3, s29, 2
        s_add_u32 s3, s3, s28
        s_mul_i32 s3, s3, {36*8192}
        s_lshl_b32 s37, s24, 13
        s_add_u32 s3, s3, s37
        s_add_u32 s3, s3, {g*4096}
        v_lshlrev_b32 v5, 4, v2
        s_waitcnt lgkmcnt(0)
        """)
        for i in range(32):
            a(f"v_mul_f32 v{keep+i}, v27, v{keep+i}\nv_fma_f32 v{keep+i}, v28, v{S+i}, v{keep+i}")
        for q in range(4):
            for p in range(4):
                a(f"v_cvt_pk_bf16_f32 v{P+q*4+p}, v{keep+q*8+2*p}, v{keep+q*8+2*p+1}")
            a(f"buffer_store_dwordx4 {vr(P+q*4,4)}, v5, s[20:23], s3 offen offset:{q*1024}")
    merge(1)
    a("s_branch L_k2_mdone\nL_k2_m0:")
    merge(0)
    a("L_k2_mdone:")
    if INSTR:
        a(f"""
        s_cmp_lg_u32 s36, 0
        s_cbranch_scc1 L_nodump
        s_lshl_b32 s3, s2, 3
        s_add_u32 s3, s3, s26
        s_lshl_b32 s3, s3, 8
        v_lshlrev_b32 v5, 2, v2
        v_add_u32 v5, s3, v5
        s_add_u32 s64, s4, {hex(100<<20)}
        s_addc_u32 s65, s5, 0
        s_mov_b32 s66, 0x1000000
        s_mov_b32 s67, 0x00020000
        buffer_store_dword v244, v5, s[64:67], 0 offen
        L_nodump:
        """)
    a("""
    s_barrier
    s_add_u32 s36, s36, 1
    s_cmp_lt_u32 s36, 2
    s_cbranch_scc1 L_k2_pass
    """)
    a("L_k2_end:\ns_endpgm")
    return a.text()
```

```python
from common import *
import struct
def f32bits(x): return struct.unpack("<I", struct.pack("<f", x))[0]
LOG2E = hex(f32bits(1.4426950408889634))

def rnd16(a, T, tmp):
    for i in range(8):
        a(f"v_cvt_pk_bf16_f32 v{tmp}, v{T+2*i}, v{T+2*i+1}\nv_lshlrev_b32 v{T+2*i}, 16, v{tmp}\nv_and_b32 v{T+2*i+1}, 0xffff0000, v{tmp}")

def softmax16(a, T, t0):
    for hb in (0, 8):
        B = T + hb
        a(f"""
        v_max3_f32 v{t0}, v{B}, v{B+1}, v{B+2}
        v_max3_f32 v{t0}, v{t0}, v{B+3}, v{B+4}
        v_max3_f32 v{t0}, v{t0}, v{B+5}, v{B+6}
        v_max_f32 v{t0}, v{t0}, v{B+7}
        v_mov_b32 v{t0+1}, v{t0}
        s_nop 1
        v_permlane32_swap_b32 v{t0}, v{t0+1}
        s_nop 1
        v_max_f32 v{t0}, v{t0}, v{t0+1}
        v_mul_f32 v{t0}, s40, v{t0}
        """)
        for i in range(8): a(f"v_fma_f32 v{B+i}, v{B+i}, s40, -v{t0}")
        for i in range(8): a(f"v_exp_f32 v{B+i}, v{B+i}")
        a(f"s_nop 0\nv_add_f32 v{t0}, v{B}, v{B+1}")
        for i in range(2, 8): a(f"v_add_f32 v{t0}, v{t0}, v{B+i}")
        a(f"""
        v_mov_b32 v{t0+1}, v{t0}
        s_nop 1
        v_permlane32_swap_b32 v{t0}, v{t0+1}
        s_nop 1
        v_add_f32 v{t0}, v{t0}, v{t0+1}
        v_rcp_f32 v{t0}, v{t0}
        s_nop 0
        """)
        for i in range(8): a(f"v_mul_f32 v{B+i}, v{B+i}, v{t0}")

def wphi_frag(a, W):
    a("""
    v_and_b32 v5, 15, v3
    v_lshlrev_b32 v5, 1, v5
    v_lshl_add_u32 v5, v4, 7, v5
    s_lshl_b32 s3, s24, 9
    v_add_u32 v5, s3, v5
    """)
    for j in range(8):
        a(f"buffer_load_ushort v{40+j}, v5, s[8:11], 0 offen offset:{((j//4)*8 + j%4)*32}")
    a("v_cmp_lt_u32 vcc, 15, v3\nv_mov_b32 v6, 0\nv_mov_b32 v7, 0x80008000\ns_nop 0\nv_cndmask_b32 v6, v6, v7, vcc\ns_waitcnt vmcnt(0)")
    for p in range(4):
        a(f"v_lshl_or_b32 v{W+p}, v{41+2*p}, 16, v{40+2*p}\nv_xor_b32 v{W+p}, v{W+p}, v6")

def head_common(a, nwg, endl):
    a(f"""
    s_cmp_ge_u32 s2, {nwg}
    s_cbranch_scc1 {endl}
    s_load_dwordx2 s[4:5], s[0:1], 104
    s_load_dwordx2 s[6:7], s[0:1], 64
    s_load_dwordx2 s[44:45], s[0:1], 0
    s_load_dwordx2 s[46:47], s[0:1], 80
    v_lshrrev_b32 v1, 6, v0
    s_nop 0
    v_readfirstlane_b32 s26, v1
    v_and_b32 v2, 63, v0
    v_and_b32 v3, 31, v2
    v_lshrrev_b32 v4, 5, v2
    s_lshr_b32 s24, s2, 2
    s_and_b32 s25, s2, 3
    s_mov_b32 s40, {LOG2E}
    s_waitcnt lgkmcnt(0)
    """)
    srd(a, 8, "s6", "s7", 16384)
    srd_ws(a, 12, 4, WS_QKVB, 2048*3072)
    srd_ws(a, 16, 4, WS_KVP, 32*4*4096)

def gen_k3a():
    a = Asm()
    head_common(a, 192, "L_k3a_end")
    a("s_cmp_ge_u32 s2, 128\ns_cbranch_scc1 L_k3a_gate")
    W = 8; T = 16; ACC = 64; AF = 32; BF = 36
    wphi_frag(a, W)
    a(f"""
    s_lshl_b32 s3, s25, 9
    s_lshl_b32 s27, s26, 7
    s_add_u32 s3, s3, s27
    v_add_u32 v5, s3, v3
    s_movk_i32 s27, 3072
    v_mul_lo_u32 v5, v5, s27
    v_lshl_add_u32 v5, v4, 4, v5
    s_lshl_b32 s3, s24, 5
    v_add_u32 v12, s3, v5
    s_lshl_b32 s28, s26, 12
    v_lshlrev_b32 v13, 6, v3
    v_add_u32 v13, s28, v13
    v_lshl_add_u32 v14, v4, 3, v13
    v_lshl_add_u32 v13, v4, 4, v13
    v_lshrrev_b32 v6, 5, v2
    v_bfe_u32 v7, v2, 2, 2
    v_lshl_add_u32 v6, v6, 3, v7
    v_lshlrev_b32 v6, 6, v6
    v_and_b32 v7, 3, v2
    v_lshl_add_u32 v6, v7, 3, v6
    v_bfe_u32 v7, v2, 4, 1
    v_lshl_add_u32 v6, v7, 5, v6
    v_add_u32 v15, s28, v6
    v_mov_b32 v40, 0
    v_mov_b32 v41, 0
    v_mov_b32 v42, 0
    v_mov_b32 v43, 0
    v_mov_b32 v7, 0x3f80
    v_cmp_eq_u32 vcc, 0, v4
    s_nop 1
    v_cndmask_b32 v40, v40, v7, vcc
    ds_write_b128 v13, v[40:43] offset:{2048+32}
    s_mov_b32 s29, 0
    """)
    for blk in range(4):
        a(f"""
        buffer_load_dwordx4 v[44:47], v12, s[12:15], s29 offen offset:1024
        buffer_load_dwordx4 v[48:51], v12, s[12:15], s29 offen offset:2048
        s_add_u32 s29, s29, {32*3072}
        s_waitcnt vmcnt(1)
        v_mfma_f32_32x32x16_bf16 {vr(T,16)}, {vr(W,4)}, v[44:47], 0
        s_waitcnt vmcnt(0)
        ds_write_b128 v13, v[48:51] offset:2048
        s_nop 15
        """)
        rnd16(a, T, 40)
        softmax16(a, T, 40)
        for p in range(8): a(f"v_cvt_pk_bf16_f32 v{44+p}, v{T+2*p}, v{T+2*p+1}")
        for q in range(4): a(f"ds_write_b64 v14, {vr(44+2*q,2)} offset:{q*16}")
        a("s_waitcnt lgkmcnt(0)")
        for ks in range(2):
            a(f"""
            ds_read_b64_tr_b16 {vr(AF,2)}, v15 offset:{ks*1024}
            ds_read_b64_tr_b16 {vr(AF+2,2)}, v15 offset:{ks*1024+256}
            ds_read_b64_tr_b16 {vr(BF,2)}, v15 offset:{2048+ks*1024}
            ds_read_b64_tr_b16 {vr(BF+2,2)}, v15 offset:{2048+ks*1024+256}
            s_waitcnt lgkmcnt(0)
            v_mfma_f32_32x32x16_bf16 {vr(ACC,16)}, {vr(AF,4)}, {vr(BF,4)}, {'0' if blk==0 and ks==0 else vr(ACC,16)}
            """)
    a("""
    s_nop 15
    v_lshlrev_b32 v5, 4, v2
    v_add_u32 v6, s28, v5
    """)
    for q in range(4): a(f"ds_write_b128 v6, {vr(ACC+q*4,4)} offset:{16384+q*1024}")
    a("""
    s_waitcnt lgkmcnt(0)
    s_barrier
    s_lshl_b32 s3, s26, 10
    v_add_u32 v5, s3, v5
    """)
    for w in range(4): a(f"ds_read_b128 {vr(16+w*4,4)}, v5 offset:{16384+w*4096}")
    a("s_waitcnt lgkmcnt(0)")
    for i in range(4):
        a(f"v_add_f32 v{16+i}, v{16+i}, v{20+i}\nv_add_f32 v{24+i}, v{24+i}, v{28+i}\nv_add_f32 v{16+i}, v{16+i}, v{24+i}")
    a("""
    s_lshl_b32 s3, s2, 12
    s_lshl_b32 s27, s26, 10
    s_add_u32 s3, s3, s27
    v_lshlrev_b32 v5, 2, v2
    v_add_u32 v5, s3, v5
    """)
    for i in range(4): a(f"buffer_store_dword v{16+i}, v5, s[16:19], 0 offen offset:{i*256}")
    a("s_branch L_k3a_end")
    a("L_k3a_gate:")
    srd(a, 8, "s44", "s45", 0x200000)
    srd(a, 12, "s46", "s47", 1024)
    srd_ws(a, 16, 4, WS_G, 8192)
    a("""
    s_sub_u32 s3, s2, 128
    s_lshl_b32 s3, s3, 5
    s_lshl_b32 s27, s26, 3
    s_add_u32 s3, s3, s27
    v_lshrrev_b32 v5, 3, v2
    v_add_u32 v5, s3, v5
    v_and_b32 v6, 7, v2
    v_lshlrev_b32 v6, 7, v6
    v_lshl_add_u32 v7, v5, 10, v6
    """)
    for j in range(8):
        a(f"buffer_load_dwordx4 {vr(16+j*4,4)}, v7, s[8:11], 0 offen offset:{j*16}")
        a(f"buffer_load_dwordx4 {vr(64+j*4,4)}, v6, s[12:15], 0 offen offset:{j*16}")
    a("v_mov_b32 v8, 0\nv_mov_b32 v9, 0\ns_waitcnt vmcnt(0)")
    for i in range(32):
        a(f"""
        v_lshlrev_b32 v10, 16, v{16+i}
        v_lshlrev_b32 v11, 16, v{64+i}
        v_fmac_f32 v8, v10, v11
        v_and_b32 v10, 0xffff0000, v{16+i}
        v_and_b32 v11, 0xffff0000, v{64+i}
        v_fmac_f32 v9, v10, v11
        """)
    a("v_add_f32 v8, v8, v9")
    for off in (0x041F, 0x081F, 0x101F):
        a(f"ds_swizzle_b32 v9, v8 offset:{hex(off)}\ns_waitcnt lgkmcnt(0)\nv_add_f32 v8, v8, v9")
    a("""
    v_cvt_pk_bf16_f32 v8, v8, v8
    v_and_b32 v8, 0xffff0000, v8
    v_mul_f32 v8, s40, v8
    v_sub_f32 v8, 0, v8
    v_exp_f32 v8, v8
    s_nop 0
    v_add_f32 v8, 1.0, v8
    v_rcp_f32 v8, v8
    s_nop 0
    v_cvt_pk_bf16_f32 v8, v8, v8
    v_and_b32 v8, 0xffff0000, v8
    v_lshlrev_b32 v5, 2, v5
    buffer_store_dword v8, v5, s[16:19], 0 offen
    """)
    a("L_k3a_end:\ns_endpgm")
    return a.text()

def gen_k3c():
    a = Asm()
    head_common(a, 576, "L_k3c_end")
    a("s_cmp_ge_u32 s2, 512\ns_cbranch_scc1 L_k3c_gate")
    srd_ws(a, 16, 4, WS_KVP, 32*8*4096)
    srd_ws(a, 20, 4, WS_CTXO, 2048*CTX_PITCH)
    KVF = 32; PF = 52; D2 = 16
    a("""
    s_lshr_b32 s24, s2, 4
    s_and_b32 s25, s2, 15
    s_lshl_b32 s3, s25, 7
    s_lshl_b32 s27, s26, 5
    s_add_u32 s28, s3, s27
    s_lshl_b32 s3, s24, 11
    s_add_u32 s3, s3, s28
    v_add_u32 v6, s3, v3
    v_lshlrev_b32 v6, 6, v6
    v_lshl_add_u32 v6, v4, 5, v6
    buffer_load_dwordx4 v[52:55], v6, s[12:15], 0 offen
    buffer_load_dwordx4 v[56:59], v6, s[12:15], 0 offen offset:16
    s_lshl_b32 s3, s24, 15
    v_lshlrev_b32 v5, 4, v2
    v_add_u32 v5, s3, v5
    """)
    for c in range(8):
        a(f"s_movk_i32 s27, {c*4096}")
        for q in range(4): a(f"buffer_load_dwordx4 {vr(64+c*16+q*4,4)}, v5, s[16:19], s27 offen offset:{q*1024}")
    a(f"""
    s_lshr_b32 s3, s28, 5
    s_mul_i32 s3, s3, {36*8192}
    s_lshl_b32 s27, s24, 10
    s_add_u32 s3, s3, s27
    s_add_u32 s3, s3, {32*8192}
    v_lshlrev_b32 v13, 4, v2
    v_add_u32 v13, s3, v13
    s_waitcnt vmcnt(0)
    """)
    for r in range(16):
        a(f"""v_add_f32 v{64+r}, v{64+r}, v{80+r}
        v_add_f32 v{96+r}, v{96+r}, v{112+r}
        v_add_f32 v{128+r}, v{128+r}, v{144+r}
        v_add_f32 v{160+r}, v{160+r}, v{176+r}
        v_add_f32 v{64+r}, v{64+r}, v{96+r}
        v_add_f32 v{128+r}, v{128+r}, v{160+r}
        v_add_f32 v{64+r}, v{64+r}, v{128+r}""")
    for p in range(8): a(f"v_cvt_pk_bf16_f32 v{KVF+p}, v{64+2*p}, v{64+2*p+1}")
    a(f"""
    s_nop 1
    v_mfma_f32_32x32x16_bf16 {vr(D2,16)}, {vr(KVF,4)}, {vr(PF,4)}, 0
    v_mfma_f32_32x32x16_bf16 {vr(D2,16)}, {vr(KVF+4,4)}, {vr(PF+4,4)}, {vr(D2,16)}
    s_nop 15
    s_nop 3
    v_mov_b32 v40, v{D2+8}
    v_mov_b32 v41, v{D2+8}
    s_nop 1
    v_permlane32_swap_b32 v40, v41
    s_nop 1
    v_cvt_pk_bf16_f32 v40, v40, v40
    v_and_b32 v40, 0xffff0000, v40
    v_add_f32 v40, 0x358637bd, v40
    v_cvt_pk_bf16_f32 v40, v40, v40
    v_and_b32 v40, 0xffff0000, v40
    v_rcp_f32 v40, v40
    """)
    for i in range(4):
        a(f"v_cvt_pk_bf16_f32 v41, v{D2+2*i}, v{D2+2*i+1}\nv_lshlrev_b32 v{D2+2*i}, 16, v41\nv_and_b32 v{D2+2*i+1}, 0xffff0000, v41")
    for i in range(8): a(f"v_mul_f32 v{D2+i}, v{D2+i}, v40")
    for p in range(4): a(f"v_cvt_pk_bf16_f32 v{44+p}, v{D2+2*p}, v{D2+2*p+1}")
    a("buffer_store_dwordx4 v[44:47], v13, s[20:23], 0 offen\ns_endpgm")
    t = gen_k3a()
    g = t[t.index("L_k3a_gate:"):].replace("L_k3a_gate", "L_k3c_gate").replace("L_k3a_end", "L_k3c_end").replace("s_sub_u32 s3, s2, 128", "s_sub_u32 s3, s2, 512")
    return a.text() + g
```

```python
from common import *
NWG4 = 256
def gen_k4():
    a = Asm()
    AA = 64; AB = 80; XF = 96; WF = 128
    VOX = 8; VOW = 12; RX = 16; RWA = 24; RWB = 25
    a(f"""
    s_cmp_ge_u32 s2, {NWG4}
    s_cbranch_scc1 L_k4_end
    s_load_dwordx2 s[4:5], s[0:1], 104
    s_load_dwordx2 s[6:7], s[0:1], 40
    s_load_dwordx2 s[36:37], s[0:1], 72
    s_load_dwordx2 s[38:39], s[0:1], 88
    s_and_b32 s41, s2, 7
    s_lshl_b32 s41, s41, 2
    s_bfe_u32 s3, s2, 0x20003
    s_add_u32 s41, s41, s3
    s_lshr_b32 s40, s2, 5
    v_lshrrev_b32 v1, 6, v0
    s_nop 0
    v_readfirstlane_b32 s42, v1
    v_and_b32 v2, 63, v0
    s_waitcnt lgkmcnt(0)
    """)
    srd_ws(a, 8, 4, WS_CTXO, 2048*CTX_PITCH)
    srd(a, 12, "s6", "s7", 0x400000)
    srd(a, 16, "s36", "s37", 0x80000)
    srd(a, 20, "s38", "s39", 0x200000)
    srd_ws(a, 24, 4, WS_G, 8192)
    a(f"""
    s_lshl_b32 s46, s41, 1
    s_lshr_b32 s47, s42, 1
    s_add_u32 s46, s46, s47
    s_mul_i32 s46, s46, {36*8192}
    s_and_b32 s47, s42, 1
    s_lshl_b32 s47, s47, 12
    s_add_u32 s46, s46, s47
    v_lshlrev_b32 v5, 4, v2
    v_add_u32 v{VOX}, s46, v5
    """)
    a("""
    v_and_b32 v5, 7, v2
    v_bfe_u32 v6, v2, 4, 1
    v_lshlrev_b32 v6, 2, v6
    v_xor_b32 v5, v5, v6
    v_lshlrev_b32 v5, 4, v5
    s_lshl_b32 s46, s40, 7
    v_add_u32 v5, s46, v5
    v_lshrrev_b32 v6, 3, v2
    s_lshl_b32 s46, s42, 5
    v_add_u32 v6, s46, v6
    """)
    for i in range(4):
        a(f"v_add_u32 v7, {8*i}, v6\nv_lshl_add_u32 v{VOW+i}, v7, 10, v5")
    a(f"""
    s_lshr_b32 s48, s42, 1
    s_and_b32 s49, s42, 1
    v_and_b32 v3, 31, v2
    v_lshrrev_b32 v4, 5, v2
    s_lshl_b32 s46, s48, 13
    v_lshlrev_b32 v5, 4, v2
    v_add_u32 v{RX}, s46, v5
    """)
    a(f"""
    v_bfe_u32 v5, v2, 2, 2
    v_lshrrev_b32 v6, 1, v5
    v_xor_b32 v6, s49, v6
    v_lshlrev_b32 v6, 6, v6
    v_and_b32 v7, 3, v2
    v_lshl_add_u32 v6, v7, 3, v6
    v_bfe_u32 v7, v2, 4, 1
    v_lshl_add_u32 v6, v7, 5, v6
    v_add_u32 v6, 16384, v6
    v_lshl_add_u32 v7, v4, 2, v5
    v_lshl_add_u32 v{RWA}, v7, 7, v6
    v_lshl_add_u32 v7, v4, 3, v5
    v_lshl_add_u32 v{RWB}, v7, 7, v6
    s_mov_b32 s50, 0
    s_mov_b32 s51, 0
    s_lshl_b32 s53, s42, 12
    """)
    NK = 36; NS = 5
    def loads(k):
        st = k % NS
        if k == 32: a("s_mov_b32 s51, 0")
        wsrd = "s[12:15]" if k < 32 else "s[16:19]"
        a(f"s_add_u32 m0, s53, {st*32768}\ns_nop 0")
        for i in range(4):
            a(f"buffer_load_dwordx4 v{VOX}, s[8:11], s50 offen offset:{i*1024} lds")
        for i in range(4):
            a(f"s_add_u32 m0, s53, {st*32768 + 16384 + i*1024}\ns_nop 0\nbuffer_load_dwordx4 v{VOW+i}, {wsrd}, s51 offen lds")
        a("s_add_u32 s50, s50, 8192\ns_add_u32 s51, s51, 0x20000")
    def reads(k, s):
        st = k % NS
        o = (st % 2) * 32768; e = (st // 2) * 18
        rw = RWA if k < 32 else RWB
        sec = 1024 if k < 32 else 512
        a(f"ds_read_b128 {vr(XF+s*4,4)}, v{RX+e} offset:{o+s*1024}")
        a(f"ds_read_b64_tr_b16 {vr(WF+s*4,2)}, v{rw+e} offset:{o+s*2048}\nds_read_b64_tr_b16 {vr(WF+s*4+2,2)}, v{rw+e} offset:{o+s*2048+sec}")
    for s in range(10): a(f"v_add_u32 v{RX+s+18}, 0x10000, v{RX+s}\nv_add_u32 v{RX+s+36}, 0x20000, v{RX+s}")
    for k in range(NS-1): loads(k)
    for k in range(NK):
        a(f"s_waitcnt vmcnt({8*min(NS-2, NK-1-k)})\ns_barrier")
        if k + NS-1 < NK: loads(k + NS-1)
        for s in range(5): reads(k, s)
        acc = vr(AA if k < 32 else AB, 16)
        for s in range(8):
            n_iss = min(8, s + 5)
            a(f"s_waitcnt lgkmcnt({(n_iss - s - 1)*3})")
            first = (k in (0, 32)) and s == 0
            a(f"v_mfma_f32_32x32x16_bf16 {acc}, {vr(WF+s*4,4)}, {vr(XF+s*4,4)}, {'0' if first else acc}")
            if s + 5 < 8: reads(k, s + 5)
    a(f"""
    s_lshl_b32 s46, s41, 6
    s_lshl_b32 s47, s48, 5
    s_add_u32 s46, s46, s47
    v_add_u32 v5, s46, v3
    v_lshlrev_b32 v6, 2, v5
    buffer_load_dword v7, v6, s[24:27], 0 offen
    v_lshlrev_b32 v5, 10, v5
    v_lshl_add_u32 v5, v4, 3, v5
    s_lshl_b32 s46, s40, 7
    s_lshl_b32 s47, s49, 6
    s_add_u32 s46, s46, s47
    v_add_u32 v5, s46, v5
    s_nop 7
    s_waitcnt vmcnt(0)
    v_sub_f32 v6, 1.0, v7
    v_cvt_pk_bf16_f32 v6, v6, v6
    v_and_b32 v6, 0xffff0000, v6
    """)
    def rnd(r0, r1):
        a(f"v_cvt_pk_bf16_f32 v8, v{r0}, v{r1}\nv_lshlrev_b32 v{r0}, 16, v8\nv_and_b32 v{r1}, 0xffff0000, v8")
    for i in range(0, 16, 2):
        rnd(AA+i, AA+i+1); rnd(AB+i, AB+i+1)
        for j in (0, 1):
            a(f"v_mul_f32 v{AA+i+j}, v7, v{AA+i+j}\nv_mul_f32 v{AB+i+j}, v6, v{AB+i+j}")
        rnd(AA+i, AA+i+1); rnd(AB+i, AB+i+1)
        for j in (0, 1): a(f"v_add_f32 v{AA+i+j}, v{AA+i+j}, v{AB+i+j}")
        a(f"v_cvt_pk_bf16_f32 v{XF+i//2}, v{AA+i}, v{AA+i+1}")
    for q in range(4):
        a(f"buffer_store_dwordx2 {vr(XF+2*q,2)}, v5, s[20:23], 0 offen offset:{q*16}")
    a("L_k4_end:\ns_endpgm")
    return a.text()
```

```python
from common import *
XB = 32768; WBASE = 98304; WST = 16384
GEMM_LDS = 163840
VOX = 8; VOW = 12; RX = 16; RW = 24
def gemm_setup(a, rowbase_sgpr, xrow_sgpr):
    a(f"""
    v_lshrrev_b32 v3, 3, v2
    v_add_u32 v3, {rowbase_sgpr}, v3
    v_lshrrev_b32 v4, 4, v2
    v_and_b32 v5, 7, v2
    v_xor_b32 v5, v5, v4
    v_xor_b32 v6, 4, v5
    v_lshlrev_b32 v5, 4, v5
    v_lshlrev_b32 v6, 4, v6
    """)
    for i in range(4):
        a(f"v_add_u32 v7, {8*i}, v3\nv_lshl_add_u32 v{VOX+i}, v7, 10, v{5 + (i&1)}")
    a(f"""
    v_and_b32 v3, 31, v2
    v_lshrrev_b32 v4, 5, v2
    v_add_u32 v5, {xrow_sgpr}, v3
    v_bfe_u32 v6, v3, 1, 3
    v_xor_b32 v6, v6, v4
    v_lshlrev_b32 v6, 4, v6
    v_lshl_add_u32 v{RX}, v5, 7, v6
    """)
    for c in range(1, 4): a(f"v_xor_b32 v{RX+c}, {c*32}, v{RX}")
    for c in range(4): a(f"v_add_u32 v{RX+4+c}, {2*XB}, v{RX+c}")
    a(f"""
    v_bfe_u32 v3, v2, 2, 2
    v_lshl_add_u32 v4, v4, 3, v3
    v_lshlrev_b32 v4, 8, v4
    v_and_b32 v5, 3, v2
    v_lshlrev_b32 v5, 3, v5
    v_bfe_u32 v6, v2, 4, 1
    v_lshl_add_u32 v5, v6, 5, v5
    v_add_u32 v4, v4, v5
    v_add_u32 v4, {WBASE}, v4
    s_bfe_u32 s50, s2, 0x20003
    s_lshl_b32 s50, s50, 1
    s_lshr_b32 s51, s2, 5
    s_add_u32 s50, s50, s51
    s_and_b32 s50, s50, 7
    s_lshl_b32 s51, s52, 1
    s_mul_i32 s51, s51, s50
    s_lshl_b32 s50, s50, 7
    s_lshl_b32 s55, s52, 4
    s_lshl_b32 s53, s42, 12
    s_lshl_b32 s54, s42, 11
    """)
ADV = "s_add_u32 s51, s51, s52\ns_cmp_eq_u32 s51, s55\ns_cselect_b32 s51, 0, s51"
def vwait(a, n0, n1):
    if n0 == n1:
        a(f"s_waitcnt vmcnt({n0})")
        return
    l1 = a.label("vw"); l2 = a.label("vw")
    a(f"s_cbranch_vccnz {l1}\ns_waitcnt vmcnt({n0})\ns_branch {l2}\n{l1}:\ns_waitcnt vmcnt({n1})\n{l2}:")
def gemm_core(a, nmb, wfr, ACC, XF, WF, swap, extra=None, compact=False, nst=None):
    nw = len(wfr)
    def xp(p, i):
        j = (p & 1)*2 + i
        a(f"s_add_u32 m0, s53, {((p>>1)%3)*XB + j*1024}\ns_nop 0\nbuffer_load_dwordx4 v{VOX+j}, s[24:27], s50 offen lds")
        if j == 3: a("s_add_u32 s50, s50, 128\ns_and_b32 s50, s50, 1023")
    def wp(k, i, g=0):
        if compact and g == 1 and i == 1: return
        a(f"s_add_u32 m0, s54, {WBASE + (k%4)*WST + i*1024}\ns_nop 0\nbuffer_load_dwordx4 v{VOW+i}, s[28:31], s51 offen lds")
        if i == 1 or (compact and g == 1): a(ADV)
    nm = nmb*nw
    slots = {0: (0, 0), nm//2: (1, 0), nm//4 if nm == 8 else 1: (0, 1), nm//2 + (nm//4 if nm == 8 else 1): (1, 1)}
    issued = []
    def rd(kk, s, it):
        k, n = it
        b = (kk >> 1) % 3; c = (kk & 1)*2 + s
        if k == "x":
            a(f"ds_read_b128 {vr(XF+(s*nmb+n)*4,4)}, v{RX+(4 if b==2 else 0)+c} offset:{(b%2)*XB+n*4096}")
            issued.append((kk, s, k, n))
        else:
            r, eo = wfr[n][:2]; ss, sec = wfr[n][2:] if len(wfr[n]) > 2 else (4096, 1024)
            d = WF + (s*nw + n)*4
            o = (kk % 4)*WST + s*ss + eo
            a(f"ds_read_b64_tr_b16 {vr(d,2)}, v{RW+r} offset:{o}")
            a(f"ds_read_b64_tr_b16 {vr(d+2,2)}, v{RW+r} offset:{o+sec}")
            issued.append(None); issued.append((kk, s, k, n))
    if nmb == 4: order = [("w", 0), ("x", 0), ("w", 1), ("x", 1), ("x", 2), ("x", 3)]
    else: order = [("x", 0)] + [("w", n) for n in range(nw)]
    lastw = [99]
    def need(tags):
        i = max(issued.index(t) for t in tags)
        c = min(len(issued) - 1 - i, 15)
        if c < lastw[0]:
            a(f"s_waitcnt lgkmcnt({c})")
        lastw[0] = min(c, lastw[0])
    def half(kk, s, G, nxt, bar):
        n = 0; q = list(order) if nxt else []
        for mb in range(nmb):
            for nb in range(nw):
                acc = vr(ACC+(mb*nw+nb)*16, 16)
                xf = vr(XF+(s*nmb+mb)*4, 4); wf = vr(WF+(s*nw+nb)*4, 4)
                c = "0" if (kk == 0 and s == 0) else acc
                need([(kk, s, "x", mb), (kk, s, "w", nb)])
                if swap: a(f"v_mfma_f32_32x32x16_bf16 {acc}, {xf}, {wf}, {c}")
                else: a(f"v_mfma_f32_32x32x16_bf16 {acc}, {wf}, {xf}, {c}")
                if n == 0 and bar is not None:
                    ex = (nst(kk-1, 1) + nst(kk, 0)) if nst else 0
                    vwait(a, bar + ex, ((bar - 1 if bar else 0) if compact else bar) + ex)
                    a("s_barrier")
                cnt = 2 if (nmb == 1 and n == 0) else 1
                for _ in range(cnt):
                    if q:
                        rd(nxt[0], nxt[1], q.pop(0)); lastw[0] = 99
                if G and n in slots:
                    i, g = slots[n]
                    if not (compact and s == 1 and g == 1 and i == 1):
                        l = a.label("sk")
                        a(f"s_cbranch_vcc{'nz' if g == 0 else 'z'} {l}")
                        G[i](g)
                        a(f"{l}:")
                if extra is not None: extra(kk, s, n)
                n += 1
    vwait(a, 8, 6 if compact else 8)
    a("s_barrier")
    for it in order: rd(0, 0, it)
    for kk in range(16):
        half(kk, 0, [lambda g, kk=kk: xp(kk+3, 0), lambda g, kk=kk: xp(kk+3, 1)] if 1 <= kk <= 12 else [], (kk, 1), None)
        half(kk, 1, [lambda g, kk=kk: wp(kk+3, 0, g), lambda g, kk=kk: wp(kk+3, 1, g)] if kk <= 12 else [],
             (kk+1, 0) if kk < 15 else None, (4 if kk-1 <= 11 else (2 if kk-1 == 12 else 0)) if kk < 15 else None)
    a("s_nop 15")
def gemm_prologue(a, compact=False):
    a("s_cmp_ge_u32 s42, 4\ns_cselect_b64 vcc, -1, 0")
    def xp(p, i):
        j = (p & 1)*2 + i
        a(f"s_add_u32 m0, s53, {((p>>1)%3)*XB + j*1024}\ns_nop 0\nbuffer_load_dwordx4 v{VOX+j}, s[24:27], s50 offen lds")
        if j == 3: a("s_add_u32 s50, s50, 128\ns_and_b32 s50, s50, 1023")
    def wp(k, i):
        if compact and i == 1:
            l = a.label("pw"); a(f"s_cbranch_vccnz {l}")
        a(f"s_add_u32 m0, s54, {WBASE + (k%4)*WST + i*1024}\ns_nop 0\nbuffer_load_dwordx4 v{VOW+i}, s[28:31], s51 offen lds")
        if compact and i == 1: a(f"{l}:")
        if i == 1: a(ADV)
    for p in (0, 1):
        for i in range(2): xp(p, i)
    for i in range(2): wp(0, i)
    for k in (1, 2):
        for i in range(2): wp(k, i)
        for i in range(2): xp(k+1, i)
```

```python
from common import *
from gemm import *
import k3
import struct, os
def f32bits(x): return struct.unpack("<I", struct.pack("<f", x))[0]
NWG2 = 256
O = 64; SS = [128, 160]; P = 192; Q = 208
FS = [36, 40, 44, 48, 52, 56, 60, 240]
KA = 8; VA = 16
VM = 20; VL = 21; VTHR = 22; VDMA = 23
KB = [0, 32768]; VB = [65536, 98304]
INSTR = os.environ.get("INSTR") == "1"
G0S = int(os.environ.get("G0S", "16"))
def qpro(a):
    ACC = 64; XF = 160; WF = 168
    a(f"""
    s_load_dwordx2 s[4:5], s[0:1], 104
    s_load_dwordx2 s[24:25], s[0:1], 0
    s_load_dwordx2 s[28:29], s[0:1], 16
    s_load_dwordx2 s[6:7], s[0:1], 56
    s_load_dwordx2 s[8:9], s[0:1], 64
    s_and_b32 s40, s2, 7
    s_lshl_b32 s40, s40, 2
    s_bfe_u32 s3, s2, 0x20003
    s_add_u32 s40, s40, s3
    s_lshr_b32 s41, s2, 5
    v_lshrrev_b32 v1, 6, v0
    s_nop 0
    v_readfirstlane_b32 s42, v1
    v_and_b32 v2, 63, v0
    s_lshr_b32 s48, s42, 2
    s_and_b32 s49, s42, 3
    s_sub_u32 s46, 15, s41
    s_cmp_eq_u32 s48, 0
    s_cselect_b32 s46, s46, s41
    s_lshl_b32 s46, s46, 7
    s_lshl_b32 s47, s49, 5
    s_add_u32 s43, s46, s47
    s_lshl_b32 s47, s42, 5
    s_waitcnt lgkmcnt(0)
    s_mov_b32 s26, 0x200000
    s_mov_b32 s27, 0x00020000
    s_mov_b32 s30, 0x180000
    s_movk_i32 s44, 3072
    s_cmp_eq_u32 s48, 0
    s_cselect_b32 s28, s28, s6
    s_cselect_b32 s29, s29, s7
    s_cselect_b32 s30, 0x400000, s30
    s_cselect_b32 s44, 8192, s44
    s_mov_b32 s31, 0x00020000
    s_mov_b32 s32, s4
    s_mov_b32 s33, s5
    s_mov_b32 s34, 0x10000000
    s_mov_b32 s35, 0x00020000
    s_lshl_b32 s52, s44, 5
    """)
    gemm_setup(a, "s43", "s47")
    for b in range(4):
        a(f"v_xor_b32 v5, {b}, v3\nv_lshl_add_u32 v{RW+b}, v5, 6, v4")
    a(f"""
    v_lshrrev_b32 v5, 5, v2
    v_lshl_add_u32 v5, v5, 3, v3
    v_lshlrev_b32 v5, 7, v5
    v_and_b32 v6, 3, v2
    v_lshl_add_u32 v5, v6, 3, v5
    v_bfe_u32 v6, v2, 4, 1
    v_lshl_add_u32 v5, v6, 5, v5
    v_add_u32 v5, {WBASE + 8192}, v5
    v_lshrrev_b32 v6, 1, v3
    v_lshl_add_u32 v{RW+4}, v6, 6, v5
    v_xor_b32 v{RW+5}, 64, v{RW+4}
    s_cmp_eq_u32 s48, 0
    s_cbranch_scc1 L_k2_wq
    v_lshrrev_b32 v4, 3, v2
    v_bfe_u32 v6, v2, 4, 1
    v_lshlrev_b32 v6, 2, v6
    v_and_b32 v5, 7, v2
    v_xor_b32 v5, v5, v6
    v_lshrrev_b32 v6, 1, v5
    v_min_u32 v6, 2, v6
    v_lshlrev_b32 v6, 10, v6
    v_and_b32 v7, 1, v5
    v_lshl_add_u32 v6, v7, 4, v6
    s_lshl_b32 s46, s40, 5
    v_add_u32 v5, s46, v6
    s_lshl_b32 s46, s49, 3
    v_add_u32 v4, s46, v4
    v_mul_lo_u32 v6, v4, s44
    v_add_u32 v{VOW}, v6, v5
    v_mov_b32 v{VOW+1}, v{VOW}
    s_lshl_b32 s54, s49, 10
    s_add_u32 s54, s54, 8192
    s_branch L_k2_wdone
    L_k2_wq:
    v_lshrrev_b32 v4, 4, v2
    v_and_b32 v5, 15, v2
    v_lshlrev_b32 v6, 2, v4
    v_xor_b32 v5, v5, v6
    v_lshlrev_b32 v5, 4, v5
    s_lshl_b32 s46, s40, 8
    v_add_u32 v5, s46, v5
    s_lshl_b32 s46, s49, 3
    v_add_u32 v4, s46, v4
    """)
    for i in range(2):
        a(f"v_add_u32 v6, {4*i}, v4\nv_mul_lo_u32 v6, v6, s44\nv_add_u32 v{VOW+i}, v6, v5")
    a("L_k2_wdone:")
    srd(a, 8, "s8", "s9", 16384)
    a("""
    v_and_b32 v5, 15, v2
    v_lshlrev_b32 v5, 1, v5
    v_lshrrev_b32 v4, 5, v2
    v_lshl_add_u32 v5, v4, 7, v5
    s_lshl_b32 s3, s40, 9
    v_add_u32 v5, s3, v5
    """)
    for j in range(8):
        a(f"buffer_load_ushort v{40+j}, v5, s[8:11], 0 offen offset:{((j//4)*8 + j%4)*32}")
    gemm_prologue(a, True)
    gemm_core(a, 1, [(0,0),(1,0),(2,0),(3,0),(4,0,2048,512),(5,0,2048,512)], ACC, XF, WF, False, None, True)
    a(f"""
    v_and_b32 v3, 31, v2
    v_lshrrev_b32 v4, 5, v2
    s_lshl_b32 s46, s42, 13
    s_add_u32 s46, s46, 98304
    v_lshlrev_b32 v5, 4, v2
    v_add_u32 v5, s46, v5
    s_lshl_b32 s46, s40, 19
    s_add_u32 s46, s46, {hex(WS_K)}
    s_add_u32 s12, s4, s46
    s_addc_u32 s13, s5, 0
    s_mov_b32 s14, 0x80000
    s_mov_b32 s15, 0x00020000
    v_lshlrev_b32 v6, 4, v2
    v_add_u32 v6, s53, v6
    s_mov_b32 m0, s53
    s_barrier
    """)
    for j in range(4): a(f"buffer_load_dwordx4 v6, s[12:15], 0 offen offset:{j*1024} lds")
    for n in range(8, 11):
        nb, hf = n // 2, n % 2
        b = ACC + nb*16 + hf*8; t = XF + (n-8)*4
        for p in range(4): a(f"v_cvt_pk_bf16_f32 v{t+p}, v{b+2*p}, v{b+2*p+1}")
    W = 28; TK = 128; TQ = 144; AF = 48; BF = 52; KACC = 216
    a("v_cmp_lt_u32 vcc, 15, v3\nv_mov_b32 v6, 0\nv_mov_b32 v7, 0x80008000\ns_nop 0\nv_cndmask_b32 v6, v6, v7, vcc")
    for p in range(4):
        a(f"v_lshl_or_b32 v{W+p}, v{41+2*p}, 16, v{40+2*p}\nv_xor_b32 v{W+p}, v{W+p}, v6")
    a(f"""
    s_nop 1
    v_mfma_f32_32x32x16_bf16 {vr(TK,16)}, {vr(W,4)}, {vr(XF+4,4)}, 0
    """)
    for n in range(8):
        nb, hf = n // 2, n % 2
        b = ACC + nb*16 + hf*8; t = Q + n*4
        for p in range(4): a(f"v_cvt_pk_bf16_f32 v{t+p}, v{b+2*p}, v{b+2*p+1}")
        a(f"ds_write_b128 v5, {vr(t,4)} offset:{n*1024}")
    a(f"""
    s_mov_b32 s56, s40
    s_mov_b32 s40, {k3.LOG2E}
    s_lshl_b32 s28, s42, 12
    s_add_u32 s28, s28, 32768
    v_lshlrev_b32 v33, 6, v3
    v_add_u32 v33, s28, v33
    v_lshl_add_u32 v34, v4, 3, v33
    v_lshl_add_u32 v33, v4, 4, v33
    v_bfe_u32 v7, v2, 2, 2
    v_lshl_add_u32 v6, v4, 3, v7
    v_lshlrev_b32 v6, 6, v6
    v_and_b32 v7, 3, v2
    v_lshl_add_u32 v6, v7, 3, v6
    v_bfe_u32 v7, v2, 4, 1
    v_lshl_add_u32 v6, v7, 5, v6
    v_add_u32 v35, s28, v6
    v_mov_b32 v40, 0
    v_mov_b32 v41, 0
    v_mov_b32 v42, 0
    v_mov_b32 v43, 0
    v_mov_b32 v7, 0x3f80
    v_cmp_eq_u32 vcc, 0, v4
    s_nop 1
    v_cndmask_b32 v40, v40, v7, vcc
    ds_write_b128 v33, v[40:43] offset:{2048+32}
    ds_write_b128 v33, {vr(XF+8,4)} offset:2048
    """)
    k3.rnd16(a, TK, 44)
    k3.softmax16(a, TK, 44)
    for p in range(8): a(f"v_cvt_pk_bf16_f32 v{64+p}, v{TK+2*p}, v{TK+2*p+1}")
    for q in range(4): a(f"ds_write_b64 v34, {vr(64+2*q,2)} offset:{q*16}")
    a("s_waitcnt lgkmcnt(0)")
    for ks in range(2):
        a(f"""
        ds_read_b64_tr_b16 {vr(AF+ks*8,2)}, v35 offset:{ks*1024}
        ds_read_b64_tr_b16 {vr(AF+ks*8+2,2)}, v35 offset:{ks*1024+256}
        ds_read_b64_tr_b16 {vr(BF+ks*8,2)}, v35 offset:{2048+ks*1024}
        ds_read_b64_tr_b16 {vr(BF+ks*8+2,2)}, v35 offset:{2048+ks*1024+256}
        """)
    a("s_waitcnt lgkmcnt(0)")
    for ks in range(2):
        a(f"v_mfma_f32_32x32x16_bf16 {vr(KACC,16)}, {vr(AF+ks*8,4)}, {vr(BF+ks*8,4)}, {'0' if ks==0 else vr(KACC,16)}")
    a(f"""
    s_lshl_b32 s46, s56, 11
    s_add_u32 s46, s46, s43
    v_add_u32 v6, s46, v3
    v_lshlrev_b32 v6, 5, v6
    v_lshl_add_u32 v6, v4, 4, v6
    s_mov_b32 s47, {hex(WS_QKVB)}
    buffer_store_dwordx4 {vr(XF,4)}, v6, s[32:35], s47 offen
    s_nop 7
    s_nop 7
    v_lshlrev_b32 v5, 4, v2
    v_add_u32 v6, s28, v5
    """)
    for q in range(4): a(f"ds_write_b128 v6, {vr(KACC+q*4,4)} offset:{32768+q*1024}")
    a(f"""
    s_waitcnt lgkmcnt(0)
    s_barrier
    s_cmp_ge_u32 s42, 4
    s_cbranch_scc1 L_k2_nored
    s_lshl_b32 s3, s42, 10
    v_add_u32 v5, s3, v5
    v_add_u32 v7, 0x8000, v5
    """)
    for w in range(8): a(f"ds_read_b128 {vr(64+w*4,4)}, v7 offset:{32768+w*4096}")
    a("s_waitcnt lgkmcnt(0)")
    for i in range(4):
        a(f"""v_add_f32 v{64+i}, v{64+i}, v{68+i}
        v_add_f32 v{72+i}, v{72+i}, v{76+i}
        v_add_f32 v{80+i}, v{80+i}, v{84+i}
        v_add_f32 v{88+i}, v{88+i}, v{92+i}
        v_add_f32 v{64+i}, v{64+i}, v{72+i}
        v_add_f32 v{80+i}, v{80+i}, v{88+i}
        v_add_f32 v{64+i}, v{64+i}, v{80+i}""")
    a(f"""
    s_lshl_b32 s3, s56, 3
    s_add_u32 s3, s3, s41
    s_lshl_b32 s3, s3, 12
    s_add_u32 s3, s3, {hex(WS_KVP)}
    buffer_store_dwordx4 v[64:67], v5, s[32:35], s3 offen
    L_k2_nored:
    s_barrier
    """)
def gen_k2():
    a = Asm()
    def stamp():
        if INSTR: a("s_memtime s[60:61]\ns_waitcnt lgkmcnt(0)\ns_and_b32 s59, s59, 63\ns_mov_b32 m0, s59\ns_nop 3\nv_writelane_b32 v244, s60, m0\ns_add_u32 s59, s59, 1")
    a(f"""
    s_cmp_ge_u32 s2, {NWG2}
    s_cbranch_scc1 L_k2_end
    """)
    qpro(a)
    a(f"""
    s_load_dwordx2 s[4:5], s[0:1], 104
    s_and_b32 s24, s2, 7
    s_lshl_b32 s24, s24, 2
    s_bfe_u32 s3, s2, 0x20003
    s_add_u32 s24, s24, s3
    s_lshr_b32 s25, s2, 5
    v_lshrrev_b32 v1, 6, v0
    s_nop 0
    v_readfirstlane_b32 s26, v1
    v_and_b32 v2, 63, v0
    s_lshr_b32 s27, s26, 2
    s_and_b32 s28, s26, 3
    s_lshl_b32 s34, s26, 12
    s_mov_b32 s35, {hex(f32bits(128**-0.5 * 1.4426950408889634))}
    s_lshl_b32 s3, s24, 19
    s_waitcnt lgkmcnt(0)
    s_add_u32 s6, s4, s3
    s_addc_u32 s7, s5, 0
    """)
    srd_ws(a, 8, 6, WS_K, 0x80000)
    srd_ws(a, 12, 6, WS_V, 0x80000)
    srd_ws(a, 16, 6, WS_Q, 0x80000)
    srd_ws(a, 20, 4, WS_CTXO, 2048*CTX_PITCH)
    a(f"""
    v_and_b32 v3, 31, v2
    v_lshrrev_b32 v4, 5, v2
    v_lshlrev_b32 v{VDMA}, 4, v2
    v_add_u32 v{VDMA}, s34, v{VDMA}
    s_lshl_b32 s3, s27, 14
    v_lshlrev_b32 v5, 4, v2
    v_add_u32 v{KA}, s3, v5
    v_add_u32 v{VA}, 0x10000, v{KA}
    s_lshl_b32 s3, s28, 5
    s_lshl_b32 s37, s27, 6
    s_sub_u32 s3, s3, s37
    v_lshlrev_b32 v5, 2, v4
    v_sub_u32 v5, v3, v5
    v_add_u32 v{VTHR}, s3, v5
    s_mov_b32 s36, 0
    s_mov_b32 s59, 0
    """)
    if INSTR: a("v_mov_b32 v244, 0")

    def dma(srdreg, soff, buf):
        a(f"s_add_u32 m0, s34, {buf}\ns_nop 0")
        for j in range(4):
            a(f"buffer_load_dwordx4 v{VDMA}, s[{srdreg}:{srdreg+3}], {soff} offen offset:{j*1024} lds")
    def dpiece(srdreg, soff, buf, j, need):
        if need:
            l = a.label("nd")
            a(f"s_cmp_lt_u32 s38, {need}\ns_cbranch_scc1 {l}")
        a(f"s_add_u32 m0, s34, {buf}\ns_nop 0\nbuffer_load_dwordx4 v{VDMA}, s[{srdreg}:{srdreg+3}], {soff} offen offset:{j*1024} lds")
        if need: a(f"{l}:")
    def rd_item(it, slot, parv, park):
        k, s, b = it
        if k == "pv": a(f"ds_read_b128 {vr(FS[slot],4)}, v{VA} offset:{VB[parv]-65536+s*4096+b*1024}")
        else: a(f"ds_read_b128 {vr(FS[slot],4)}, v{KA} offset:{KB[park]+b*8192+s*1024}")
    QKI = [("qk", s, kb) for s in range(8) for kb in range(2)]
    PVI = [("pv", s, db) for s in range(4) for db in range(4)]
    def pre(items, parv, park):
        for i in range(8): rd_item(items[i], i, parv, park)
    def MM(items, parv, park, fill=None, ld=True, g1=False, mid=None, pre_mid=None):
        n = len(items); SQ = SS[park]; qi = 0
        for i, it in enumerate(items):
            k, s, b = it
            if mid is not None and i == 16:
                a(f"{mid}:")
                for x in pre_mid: a(x)
            a(f"s_waitcnt lgkmcnt({min(7, n-1-i)})")
            if k == "pv":
                if fill is not None and s == 0 and b == 0 and not g1: a("s_nop 1")
                acc = vr(O+b*16, 16)
                a(f"v_mfma_f32_32x32x16_bf16 {acc}, {vr(FS[i%8],4)}, {vr(P+s*4,4)}, {acc}")
            else:
                acc = vr(SQ+b*16, 16)
                a(f"v_mfma_f32_32x32x16_bf16 {acc}, {vr(FS[i%8],4)}, {vr(Q+s*4,4)}, {'0' if s==0 else acc}")
            if i + 8 < n: rd_item(items[i+8], i % 8, parv, park)
            if k == "qk" and fill is not None:
                for x in fill[qi]: a(x)
                qi += 1
            i0 = i - (G0S if not g1 else 0)
            if ld and 0 <= i0 < 16 and i0 % 2 == 1:
                j = i0 // 2
                if j < 4: dpiece(12, "s39" if g1 else "s33", VB[parv ^ 1], j, 0)
                else: dpiece(8, "s32", KB[park ^ 1], j - 4, 2)
    def SM_parts(S):
        lr = a.label("noresc")
        A = [f"v_max3_f32 v24, v{S}, v{S+1}, v{S+2}", f"v_max3_f32 v25, v{S+16}, v{S+17}, v{S+18}"]
        for i in range(3, 15, 2):
            A += [f"v_max3_f32 v24, v24, v{S+i}, v{S+i+1}", f"v_max3_f32 v25, v25, v{S+16+i}, v{S+16+i+1}"]
        A2 = f"""v_max3_f32 v24, v24, v{S+15}, v25
        v_max_f32 v24, v24, v{S+31}
        v_mov_b32 v25, v24
        s_nop 1
        v_permlane32_swap_b32 v24, v25
        s_nop 1
        v_max_f32 v24, v24, v25
        v_mul_f32 v24, s35, v24
        v_max_f32 v25, v{VM}, v24
        v_sub_f32 v26, v25, v{VM}
        v_cmp_lt_f32 vcc, 0x41000000, v26
        s_cbranch_vccz {lr}
        v_sub_f32 v26, 0, v26
        v_exp_f32 v26, v26
        v_mov_b32 v{VM}, v25
        s_nop 0
        v_mov_b32 v27, v26
        v_mul_f32 v{VL}, v{VL}, v26
        """ + "\n".join(f"v_pk_mul_f32 {vr(O+i,2)}, {vr(O+i,2)}, v[26:27]" for i in range(0, 64, 2)) + f"\n{lr}:\nv_sub_f32 v28, 0, v{VM}"
        B = []
        for p in range(17):
            if p < 16:
                B += [f"v_fma_f32 v{S+2*p}, v{S+2*p}, s35, v28", f"v_fma_f32 v{S+2*p+1}, v{S+2*p+1}, s35, v28"]
            if p >= 1:
                q = p - 1
                B += [f"v_exp_f32 v{S+2*q}, v{S+2*q}", f"v_exp_f32 v{S+2*q+1}, v{S+2*q+1}"]
            if p >= 2:
                q = p - 2
                B += [f"v_add_f32 v{VL}, v{VL}, v{S+2*q}", f"v_add_f32 v29, v29, v{S+2*q+1}" if q else f"v_mov_b32 v29, v{S+1}",
                      f"v_cvt_pk_bf16_f32 v{P+q}, v{S+2*q}, v{S+2*q+1}"]
        B += ["s_nop 0", f"v_add_f32 v{VL}, v{VL}, v{S+30}", f"v_add_f32 v29, v29, v{S+31}", f"v_cvt_pk_bf16_f32 v{P+15}, v{S+30}, v{S+31}", f"v_add_f32 v{VL}, v{VL}, v29"]
        return A, A2, B
    def mask(S):
        a("v_mov_b32 v24, 0xf149f2ca")
        for kb in range(2):
            for r in range(16):
                c = kb*32 + (r//4)*8 + r % 4
                a(f"v_cmp_gt_i32 vcc, {c}, v{VTHR}\ns_nop 1\nv_cndmask_b32 v{S+kb*16+r}, v{S+kb*16+r}, v24, vcc")
    def top():
        a(f"""
        s_waitcnt vmcnt(0)
        s_barrier
        s_add_u32 s3, s31, 1
        s_lshl_b32 s33, s3, 15
        s_sub_u32 s38, s30, s3
        s_add_u32 s3, s31, 2
        s_lshl_b32 s32, s3, 15
        s_lshl_b32 s39, s31, 15
        s_cmp_eq_u32 s38, 0
        """)
    a("L_k2_pass:")
    a(f"""
    s_sub_u32 s29, 15, s25
    s_cmp_eq_u32 s36, 0
    s_cselect_b32 s29, s29, s25
    s_add_u32 s30, s29, 1
    s_lshl_b32 s3, s36, 15
    s_lshl_b32 s37, s28, 13
    s_add_u32 s3, s3, s37
    s_add_u32 s3, s3, 98304
    v_lshlrev_b32 v5, 4, v2
    v_add_u32 v5, s3, v5
    """)
    for s in range(8): a(f"ds_read_b128 {vr(Q+s*4,4)}, v5 offset:{s*1024}")
    dma(12, "0", VB[0])
    a(f"v_mov_b32 v{VM}, 0xe0ad78ec\nv_mov_b32 v{VL}, 0")
    for i in range(64): a(f"v_mov_b32 v{O+i}, 0")
    lk = a.label("nok1"); lk2 = a.label("nok1b")
    a(f"s_cmp_lt_u32 s30, 2\ns_cbranch_scc1 {lk}\ns_mov_b32 s32, 32768")
    dma(8, "s32", KB[1])
    a(f"s_waitcnt vmcnt(8)\ns_branch {lk2}\n{lk}:\ns_waitcnt vmcnt(4)\n{lk2}:")
    a("s_mov_b32 s31, 0\ns_waitcnt lgkmcnt(0)\ns_barrier")
    pre(QKI, 0, 0)
    MM(QKI, 0, 0, None, False)
    a("s_cmp_lg_u32 s27, 0\ns_cbranch_scc1 L_k2_g1loop")
    a("L_k2_loop:")
    def k0pf():
        l = a.label("k0pf")
        a(f"s_cmp_lg_u32 s36, 0\ns_cbranch_scc1 {l}")
        dma(8, "0", KB[0])
        a(f"{l}:")
    def mkfill(A, A2, B):
        fill = [[] for _ in range(16)]
        fill[0] = A[8:12]; fill[1] = A[12:] + [A2]
        per = (len(B) + 13) // 14
        for i in range(14): fill[2+i] = B[i*per:(i+1)*per]
        return fill
    for par in range(2):
        top()
        a(f"s_cbranch_scc1 L_k2_tail{par}")
        stamp()
        items = QKI + PVI
        pre(items, par, par ^ 1)
        A, A2, B = SM_parts(SS[par])
        for x in A[:8]: a(x)
        MM(items, par, par ^ 1, mkfill(A, A2, B))
        a("s_add_u32 s31, s31, 1")
        stamp()
    a("s_branch L_k2_loop")
    for par in range(2):
        a(f"L_k2_tail{par}:")
        pre(PVI, par, par ^ 1)
        k0pf()
        a("s_nop 7")
        mask(SS[par])
        A, A2, B = SM_parts(SS[par])
        for x in A: a(x)
        a(A2)
        for x in B: a(x)
        a("s_nop 1")
        MM(PVI, par, par ^ 1, None, False)
        a("s_barrier\ns_branch L_k2_merge")
    a("L_k2_g1first:")
    pre(QKI, 1, 1)
    for j in range(4): dpiece(8, "s32", KB[0], j, 2)
    a("s_branch L_k2_g1qk0")
    a("L_k2_g1loop:")
    for par in range(2):
        top()
        a(f"s_cbranch_scc1 L_k2_g1tail{par}")
        stamp()
        if par == 0: a("s_cmp_eq_u32 s31, 0\ns_cbranch_scc1 L_k2_g1first")
        items = PVI + QKI
        pre(items, par ^ 1, par ^ 1)
        A, A2, B = SM_parts(SS[par])
        MM(items, par ^ 1, par ^ 1, mkfill(A, A2, B), True, True, f"L_k2_g1qk{par}", A[:8])
        a("s_add_u32 s31, s31, 1")
        stamp()
    a("s_branch L_k2_g1loop")
    for par in range(2):
        a(f"L_k2_g1tail{par}:")
        for j in range(4): dpiece(12, "s39", VB[par], j, 0)
        k0pf()
        if par == 0: a("s_cmp_eq_u32 s31, 0\ns_cbranch_scc1 L_k2_g1t0")
        pre(PVI, par ^ 1, par ^ 1)
        MM(PVI, par ^ 1, par ^ 1, None, False)
        if par == 0: a("L_k2_g1t0:")
        a("s_nop 7")
        mask(SS[par])
        A, A2, B = SM_parts(SS[par])
        for x in A: a(x)
        a(A2)
        for x in B: a(x)
        a("s_waitcnt vmcnt(0)\ns_barrier")
        pre(PVI, par, par ^ 1)
        MM(PVI, par, par ^ 1, None, False)
        if par == 0: a("s_branch L_k2_merge")
    a("L_k2_merge:")
    S = SS[0]
    a(f"""
    s_nop 15
    v_mov_b32 v25, v{VL}
    s_nop 1
    v_permlane32_swap_b32 v{VL}, v25
    s_nop 1
    v_add_f32 v{VL}, v{VL}, v25
    s_lshl_b32 s3, s26, 13
    s_add_u32 s3, s3, 65536
    v_lshlrev_b32 v5, 4, v2
    v_add_u32 v5, s3, v5
    s_lshl_b32 s3, s26, 9
    v_lshlrev_b32 v6, 2, v2
    v_add_u32 v6, s3, v6
    s_xor_b32 s37, s26, 4
    s_barrier
    ds_write_b32 v6, v{VM} offset:32768
    ds_write_b32 v6, v{VL} offset:33024
    s_cmp_eq_u32 s27, 0
    s_cbranch_scc1 L_k2_m0
    """)
    def merge(g):
        keep = O + (0 if g == 0 else 32); send = O + (32 if g == 0 else 0)
        for q in range(8): a(f"ds_write_b128 v5, {vr(send+q*4,4)} offset:{q*1024}")
        a(f"""
        v_xor_b32 v5, 0x8000, v5
        v_xor_b32 v6, 0x800, v6
        s_waitcnt lgkmcnt(0)
        s_barrier
        ds_read_b32 v24, v6 offset:32768
        ds_read_b32 v25, v6 offset:33024
        """)
        for q in range(8): a(f"ds_read_b128 {vr(S+q*4,4)}, v5 offset:{q*1024}")
        a(f"""
        s_waitcnt lgkmcnt(8)
        v_max_f32 v26, v{VM}, v24
        v_sub_f32 v27, v{VM}, v26
        v_sub_f32 v28, v24, v26
        v_exp_f32 v27, v27
        v_exp_f32 v28, v28
        s_nop 0
        v_mul_f32 v29, v27, v{VL}
        v_fma_f32 v29, v28, v25, v29
        v_rcp_f32 v29, v29
        s_nop 0
        v_mul_f32 v27, v27, v29
        v_mul_f32 v28, v28, v29
        s_lshl_b32 s3, s29, 2
        s_add_u32 s3, s3, s28
        s_mul_i32 s3, s3, {36*8192}
        s_lshl_b32 s37, s24, 13
        s_add_u32 s3, s3, s37
        s_add_u32 s3, s3, {g*4096}
        v_lshlrev_b32 v5, 4, v2
        s_waitcnt lgkmcnt(0)
        """)
        for i in range(32):
            a(f"v_mul_f32 v{keep+i}, v27, v{keep+i}\nv_fma_f32 v{keep+i}, v28, v{S+i}, v{keep+i}")
        for q in range(4):
            for p in range(4):
                a(f"v_cvt_pk_bf16_f32 v{P+q*4+p}, v{keep+q*8+2*p}, v{keep+q*8+2*p+1}")
            a(f"buffer_store_dwordx4 {vr(P+q*4,4)}, v5, s[20:23], s3 offen offset:{q*1024}")
    merge(1)
    a("s_branch L_k2_mdone\nL_k2_m0:")
    merge(0)
    a("L_k2_mdone:")
    if INSTR:
        a(f"""
        s_cmp_lg_u32 s36, 0
        s_cbranch_scc1 L_nodump
        s_lshl_b32 s3, s2, 3
        s_add_u32 s3, s3, s26
        s_lshl_b32 s3, s3, 8
        v_lshlrev_b32 v5, 2, v2
        v_add_u32 v5, s3, v5
        s_add_u32 s64, s4, {hex(100<<20)}
        s_addc_u32 s65, s5, 0
        s_mov_b32 s66, 0x1000000
        s_mov_b32 s67, 0x00020000
        buffer_store_dword v244, v5, s[64:67], 0 offen
        L_nodump:
        """)
    a("""
    s_barrier
    s_add_u32 s36, s36, 1
    s_cmp_lt_u32 s36, 2
    s_cbranch_scc1 L_k2_pass
    """)
    a("L_k2_end:\ns_endpgm")
    return a.text()
```

```python
from common import *
import struct
def f32bits(x): return struct.unpack("<I", struct.pack("<f", x))[0]
LOG2E = hex(f32bits(1.4426950408889634))

def rnd16(a, T, tmp):
    for i in range(8):
        a(f"v_cvt_pk_bf16_f32 v{tmp}, v{T+2*i}, v{T+2*i+1}\nv_lshlrev_b32 v{T+2*i}, 16, v{tmp}\nv_and_b32 v{T+2*i+1}, 0xffff0000, v{tmp}")

def softmax16(a, T, t0):
    for hb in (0, 8):
        B = T + hb
        a(f"""
        v_max3_f32 v{t0}, v{B}, v{B+1}, v{B+2}
        v_max3_f32 v{t0}, v{t0}, v{B+3}, v{B+4}
        v_max3_f32 v{t0}, v{t0}, v{B+5}, v{B+6}
        v_max_f32 v{t0}, v{t0}, v{B+7}
        v_mov_b32 v{t0+1}, v{t0}
        s_nop 1
        v_permlane32_swap_b32 v{t0}, v{t0+1}
        s_nop 1
        v_max_f32 v{t0}, v{t0}, v{t0+1}
        v_mul_f32 v{t0}, s40, v{t0}
        """)
        for i in range(8): a(f"v_fma_f32 v{B+i}, v{B+i}, s40, -v{t0}")
        for i in range(8): a(f"v_exp_f32 v{B+i}, v{B+i}")
        a(f"s_nop 0\nv_add_f32 v{t0}, v{B}, v{B+1}")
        for i in range(2, 8): a(f"v_add_f32 v{t0}, v{t0}, v{B+i}")
        a(f"""
        v_mov_b32 v{t0+1}, v{t0}
        s_nop 1
        v_permlane32_swap_b32 v{t0}, v{t0+1}
        s_nop 1
        v_add_f32 v{t0}, v{t0}, v{t0+1}
        v_rcp_f32 v{t0}, v{t0}
        s_nop 0
        """)
        for i in range(8): a(f"v_mul_f32 v{B+i}, v{B+i}, v{t0}")

def wphi_frag(a, W):
    a("""
    v_and_b32 v5, 15, v3
    v_lshlrev_b32 v5, 1, v5
    v_lshl_add_u32 v5, v4, 7, v5
    s_lshl_b32 s3, s24, 9
    v_add_u32 v5, s3, v5
    """)
    for j in range(8):
        a(f"buffer_load_ushort v{40+j}, v5, s[8:11], 0 offen offset:{((j//4)*8 + j%4)*32}")
    a("v_cmp_lt_u32 vcc, 15, v3\nv_mov_b32 v6, 0\nv_mov_b32 v7, 0x80008000\ns_nop 0\nv_cndmask_b32 v6, v6, v7, vcc\ns_waitcnt vmcnt(0)")
    for p in range(4):
        a(f"v_lshl_or_b32 v{W+p}, v{41+2*p}, 16, v{40+2*p}\nv_xor_b32 v{W+p}, v{W+p}, v6")

def head_common(a, nwg, endl):
    a(f"""
    s_cmp_ge_u32 s2, {nwg}
    s_cbranch_scc1 {endl}
    s_load_dwordx2 s[4:5], s[0:1], 104
    s_load_dwordx2 s[6:7], s[0:1], 64
    s_load_dwordx2 s[44:45], s[0:1], 0
    s_load_dwordx2 s[46:47], s[0:1], 80
    v_lshrrev_b32 v1, 6, v0
    s_nop 0
    v_readfirstlane_b32 s26, v1
    v_and_b32 v2, 63, v0
    v_and_b32 v3, 31, v2
    v_lshrrev_b32 v4, 5, v2
    s_lshr_b32 s24, s2, 2
    s_and_b32 s25, s2, 3
    s_mov_b32 s40, {LOG2E}
    s_waitcnt lgkmcnt(0)
    """)
    srd(a, 8, "s6", "s7", 16384)
    srd_ws(a, 12, 4, WS_QKVB, 2048*3072)
    srd_ws(a, 16, 4, WS_KVP, 32*4*4096)

def gen_k3a():
    a = Asm()
    head_common(a, 192, "L_k3a_end")
    a("s_cmp_ge_u32 s2, 128\ns_cbranch_scc1 L_k3a_gate")
    W = 8; T = 16; ACC = 64; AF = 32; BF = 36
    wphi_frag(a, W)
    a(f"""
    s_lshl_b32 s3, s25, 9
    s_lshl_b32 s27, s26, 7
    s_add_u32 s3, s3, s27
    v_add_u32 v5, s3, v3
    s_movk_i32 s27, 3072
    v_mul_lo_u32 v5, v5, s27
    v_lshl_add_u32 v5, v4, 4, v5
    s_lshl_b32 s3, s24, 5
    v_add_u32 v12, s3, v5
    s_lshl_b32 s28, s26, 12
    v_lshlrev_b32 v13, 6, v3
    v_add_u32 v13, s28, v13
    v_lshl_add_u32 v14, v4, 3, v13
    v_lshl_add_u32 v13, v4, 4, v13
    v_lshrrev_b32 v6, 5, v2
    v_bfe_u32 v7, v2, 2, 2
    v_lshl_add_u32 v6, v6, 3, v7
    v_lshlrev_b32 v6, 6, v6
    v_and_b32 v7, 3, v2
    v_lshl_add_u32 v6, v7, 3, v6
    v_bfe_u32 v7, v2, 4, 1
    v_lshl_add_u32 v6, v7, 5, v6
    v_add_u32 v15, s28, v6
    v_mov_b32 v40, 0
    v_mov_b32 v41, 0
    v_mov_b32 v42, 0
    v_mov_b32 v43, 0
    v_mov_b32 v7, 0x3f80
    v_cmp_eq_u32 vcc, 0, v4
    s_nop 1
    v_cndmask_b32 v40, v40, v7, vcc
    ds_write_b128 v13, v[40:43] offset:{2048+32}
    s_mov_b32 s29, 0
    """)
    for blk in range(4):
        a(f"""
        buffer_load_dwordx4 v[44:47], v12, s[12:15], s29 offen offset:1024
        buffer_load_dwordx4 v[48:51], v12, s[12:15], s29 offen offset:2048
        s_add_u32 s29, s29, {32*3072}
        s_waitcnt vmcnt(1)
        v_mfma_f32_32x32x16_bf16 {vr(T,16)}, {vr(W,4)}, v[44:47], 0
        s_waitcnt vmcnt(0)
        ds_write_b128 v13, v[48:51] offset:2048
        s_nop 15
        """)
        rnd16(a, T, 40)
        softmax16(a, T, 40)
        for p in range(8): a(f"v_cvt_pk_bf16_f32 v{44+p}, v{T+2*p}, v{T+2*p+1}")
        for q in range(4): a(f"ds_write_b64 v14, {vr(44+2*q,2)} offset:{q*16}")
        a("s_waitcnt lgkmcnt(0)")
        for ks in range(2):
            a(f"""
            ds_read_b64_tr_b16 {vr(AF,2)}, v15 offset:{ks*1024}
            ds_read_b64_tr_b16 {vr(AF+2,2)}, v15 offset:{ks*1024+256}
            ds_read_b64_tr_b16 {vr(BF,2)}, v15 offset:{2048+ks*1024}
            ds_read_b64_tr_b16 {vr(BF+2,2)}, v15 offset:{2048+ks*1024+256}
            s_waitcnt lgkmcnt(0)
            v_mfma_f32_32x32x16_bf16 {vr(ACC,16)}, {vr(AF,4)}, {vr(BF,4)}, {'0' if blk==0 and ks==0 else vr(ACC,16)}
            """)
    a("""
    s_nop 15
    v_lshlrev_b32 v5, 4, v2
    v_add_u32 v6, s28, v5
    """)
    for q in range(4): a(f"ds_write_b128 v6, {vr(ACC+q*4,4)} offset:{16384+q*1024}")
    a("""
    s_waitcnt lgkmcnt(0)
    s_barrier
    s_lshl_b32 s3, s26, 10
    v_add_u32 v5, s3, v5
    """)
    for w in range(4): a(f"ds_read_b128 {vr(16+w*4,4)}, v5 offset:{16384+w*4096}")
    a("s_waitcnt lgkmcnt(0)")
    for i in range(4):
        a(f"v_add_f32 v{16+i}, v{16+i}, v{20+i}\nv_add_f32 v{24+i}, v{24+i}, v{28+i}\nv_add_f32 v{16+i}, v{16+i}, v{24+i}")
    a("""
    s_lshl_b32 s3, s2, 12
    s_lshl_b32 s27, s26, 10
    s_add_u32 s3, s3, s27
    v_lshlrev_b32 v5, 2, v2
    v_add_u32 v5, s3, v5
    """)
    for i in range(4): a(f"buffer_store_dword v{16+i}, v5, s[16:19], 0 offen offset:{i*256}")
    a("s_branch L_k3a_end")
    a("L_k3a_gate:")
    srd(a, 8, "s44", "s45", 0x200000)
    srd(a, 12, "s46", "s47", 1024)
    srd_ws(a, 16, 4, WS_G, 8192)
    a("""
    s_sub_u32 s3, s2, 128
    s_lshl_b32 s3, s3, 5
    s_lshl_b32 s27, s26, 3
    s_add_u32 s3, s3, s27
    v_lshrrev_b32 v5, 3, v2
    v_add_u32 v5, s3, v5
    v_and_b32 v6, 7, v2
    v_lshlrev_b32 v6, 7, v6
    v_lshl_add_u32 v7, v5, 10, v6
    """)
    for j in range(8):
        a(f"buffer_load_dwordx4 {vr(16+j*4,4)}, v7, s[8:11], 0 offen offset:{j*16}")
        a(f"buffer_load_dwordx4 {vr(64+j*4,4)}, v6, s[12:15], 0 offen offset:{j*16}")
    a("v_mov_b32 v8, 0\nv_mov_b32 v9, 0\ns_waitcnt vmcnt(0)")
    for i in range(32):
        a(f"""
        v_lshlrev_b32 v10, 16, v{16+i}
        v_lshlrev_b32 v11, 16, v{64+i}
        v_fmac_f32 v8, v10, v11
        v_and_b32 v10, 0xffff0000, v{16+i}
        v_and_b32 v11, 0xffff0000, v{64+i}
        v_fmac_f32 v9, v10, v11
        """)
    a("v_add_f32 v8, v8, v9")
    for off in (0x041F, 0x081F, 0x101F):
        a(f"ds_swizzle_b32 v9, v8 offset:{hex(off)}\ns_waitcnt lgkmcnt(0)\nv_add_f32 v8, v8, v9")
    a("""
    v_cvt_pk_bf16_f32 v8, v8, v8
    v_and_b32 v8, 0xffff0000, v8
    v_mul_f32 v8, s40, v8
    v_sub_f32 v8, 0, v8
    v_exp_f32 v8, v8
    s_nop 0
    v_add_f32 v8, 1.0, v8
    v_rcp_f32 v8, v8
    s_nop 0
    v_cvt_pk_bf16_f32 v8, v8, v8
    v_and_b32 v8, 0xffff0000, v8
    v_lshlrev_b32 v5, 2, v5
    buffer_store_dword v8, v5, s[16:19], 0 offen
    """)
    a("L_k3a_end:\ns_endpgm")
    return a.text()

def gen_k3c():
    a = Asm()
    head_common(a, 576, "L_k3c_end")
    a("s_cmp_ge_u32 s2, 512\ns_cbranch_scc1 L_k3c_gate")
    srd_ws(a, 16, 4, WS_KVP, 32*8*4096)
    srd_ws(a, 20, 4, WS_CTXO, 2048*CTX_PITCH)
    KVF = 32; PF = 52; D2 = 16
    a("""
    s_lshr_b32 s24, s2, 4
    s_and_b32 s25, s2, 15
    s_lshl_b32 s3, s25, 7
    s_lshl_b32 s27, s26, 5
    s_add_u32 s28, s3, s27
    s_lshl_b32 s3, s24, 11
    s_add_u32 s3, s3, s28
    v_add_u32 v6, s3, v3
    v_lshlrev_b32 v6, 5, v6
    v_lshl_add_u32 v6, v4, 4, v6
    buffer_load_dwordx4 v[48:51], v6, s[12:15], 0 offen
    """)
    wphi_frag(a, 8)
    a(f"""
    s_nop 1
    v_mfma_f32_32x32x16_bf16 {vr(D2,16)}, v[8:11], v[48:51], 0
    s_lshl_b32 s3, s24, 15
    v_lshlrev_b32 v5, 4, v2
    v_add_u32 v5, s3, v5
    """)
    for c in range(8):
        a(f"s_movk_i32 s27, {c*4096}")
        for q in range(4): a(f"buffer_load_dwordx4 {vr(64+c*16+q*4,4)}, v5, s[16:19], s27 offen offset:{q*1024}")
    a(f"""
    s_lshr_b32 s3, s28, 5
    s_mul_i32 s3, s3, {36*8192}
    s_lshl_b32 s27, s24, 10
    s_add_u32 s3, s3, s27
    s_add_u32 s3, s3, {32*8192}
    v_lshlrev_b32 v13, 4, v2
    v_add_u32 v13, s3, v13
    """)
    rnd16(a, D2, 40)
    softmax16(a, D2, 40)
    for p in range(8): a(f"v_cvt_pk_bf16_f32 v{PF+p}, v{D2+2*p}, v{D2+2*p+1}")
    a("s_waitcnt vmcnt(0)")
    for r in range(16):
        a(f"""v_add_f32 v{64+r}, v{64+r}, v{80+r}
        v_add_f32 v{96+r}, v{96+r}, v{112+r}
        v_add_f32 v{128+r}, v{128+r}, v{144+r}
        v_add_f32 v{160+r}, v{160+r}, v{176+r}
        v_add_f32 v{64+r}, v{64+r}, v{96+r}
        v_add_f32 v{128+r}, v{128+r}, v{160+r}
        v_add_f32 v{64+r}, v{64+r}, v{128+r}""")
    for p in range(8): a(f"v_cvt_pk_bf16_f32 v{KVF+p}, v{64+2*p}, v{64+2*p+1}")
    a(f"""
    s_nop 1
    v_mfma_f32_32x32x16_bf16 {vr(D2,16)}, {vr(KVF,4)}, {vr(PF,4)}, 0
    v_mfma_f32_32x32x16_bf16 {vr(D2,16)}, {vr(KVF+4,4)}, {vr(PF+4,4)}, {vr(D2,16)}
    s_nop 15
    s_nop 3
    v_mov_b32 v40, v{D2+8}
    v_mov_b32 v41, v{D2+8}
    s_nop 1
    v_permlane32_swap_b32 v40, v41
    s_nop 1
    v_cvt_pk_bf16_f32 v40, v40, v40
    v_and_b32 v40, 0xffff0000, v40
    v_add_f32 v40, 0x358637bd, v40
    v_cvt_pk_bf16_f32 v40, v40, v40
    v_and_b32 v40, 0xffff0000, v40
    v_rcp_f32 v40, v40
    """)
    for i in range(4):
        a(f"v_cvt_pk_bf16_f32 v41, v{D2+2*i}, v{D2+2*i+1}\nv_lshlrev_b32 v{D2+2*i}, 16, v41\nv_and_b32 v{D2+2*i+1}, 0xffff0000, v41")
    for i in range(8): a(f"v_mul_f32 v{D2+i}, v{D2+i}, v40")
    for p in range(4): a(f"v_cvt_pk_bf16_f32 v{44+p}, v{D2+2*p}, v{D2+2*p+1}")
    a("buffer_store_dwordx4 v[44:47], v13, s[20:23], 0 offen\ns_endpgm")
    t = gen_k3a()
    g = t[t.index("L_k3a_gate:"):].replace("L_k3a_gate", "L_k3c_gate").replace("L_k3a_end", "L_k3c_end").replace("s_sub_u32 s3, s2, 128", "s_sub_u32 s3, s2, 512")
    return a.text() + g
```

```python
from common import *
import struct
def f32bits(x): return struct.unpack("<I", struct.pack("<f", x))[0]
LOG2E = hex(f32bits(1.4426950408889634))

def rnd16(a, T, tmp):
    for i in range(8):
        a(f"v_cvt_pk_bf16_f32 v{tmp}, v{T+2*i}, v{T+2*i+1}\nv_lshlrev_b32 v{T+2*i}, 16, v{tmp}\nv_and_b32 v{T+2*i+1}, 0xffff0000, v{tmp}")

def softmax16(a, T, t0):
    for hb in (0, 8):
        B = T + hb
        a(f"""
        v_max3_f32 v{t0}, v{B}, v{B+1}, v{B+2}
        v_max3_f32 v{t0}, v{t0}, v{B+3}, v{B+4}
        v_max3_f32 v{t0}, v{t0}, v{B+5}, v{B+6}
        v_max_f32 v{t0}, v{t0}, v{B+7}
        v_mov_b32 v{t0+1}, v{t0}
        s_nop 1
        v_permlane32_swap_b32 v{t0}, v{t0+1}
        s_nop 1
        v_max_f32 v{t0}, v{t0}, v{t0+1}
        v_mul_f32 v{t0}, s40, v{t0}
        """)
        for i in range(8): a(f"v_fma_f32 v{B+i}, v{B+i}, s40, -v{t0}")
        for i in range(8): a(f"v_exp_f32 v{B+i}, v{B+i}")
        a(f"s_nop 0\nv_add_f32 v{t0}, v{B}, v{B+1}")
        for i in range(2, 8): a(f"v_add_f32 v{t0}, v{t0}, v{B+i}")
        a(f"""
        v_mov_b32 v{t0+1}, v{t0}
        s_nop 1
        v_permlane32_swap_b32 v{t0}, v{t0+1}
        s_nop 1
        v_add_f32 v{t0}, v{t0}, v{t0+1}
        v_rcp_f32 v{t0}, v{t0}
        s_nop 0
        """)
        for i in range(8): a(f"v_mul_f32 v{B+i}, v{B+i}, v{t0}")

def wphi_frag(a, W):
    a("""
    v_and_b32 v5, 15, v3
    v_lshlrev_b32 v5, 1, v5
    v_lshl_add_u32 v5, v4, 7, v5
    s_lshl_b32 s3, s24, 9
    v_add_u32 v5, s3, v5
    """)
    for j in range(8):
        a(f"buffer_load_ushort v{40+j}, v5, s[8:11], 0 offen offset:{((j//4)*8 + j%4)*32}")
    a("v_cmp_lt_u32 vcc, 15, v3\nv_mov_b32 v6, 0\nv_mov_b32 v7, 0x80008000\ns_nop 0\nv_cndmask_b32 v6, v6, v7, vcc\ns_waitcnt vmcnt(0)")
    for p in range(4):
        a(f"v_lshl_or_b32 v{W+p}, v{41+2*p}, 16, v{40+2*p}\nv_xor_b32 v{W+p}, v{W+p}, v6")

def head_common(a, nwg, endl):
    a(f"""
    s_cmp_ge_u32 s2, {nwg}
    s_cbranch_scc1 {endl}
    s_load_dwordx2 s[4:5], s[0:1], 104
    s_load_dwordx2 s[6:7], s[0:1], 64
    s_load_dwordx2 s[44:45], s[0:1], 0
    s_load_dwordx2 s[46:47], s[0:1], 80
    v_lshrrev_b32 v1, 6, v0
    s_nop 0
    v_readfirstlane_b32 s26, v1
    v_and_b32 v2, 63, v0
    v_and_b32 v3, 31, v2
    v_lshrrev_b32 v4, 5, v2
    s_lshr_b32 s24, s2, 2
    s_and_b32 s25, s2, 3
    s_mov_b32 s40, {LOG2E}
    s_waitcnt lgkmcnt(0)
    """)
    srd(a, 8, "s6", "s7", 16384)
    srd_ws(a, 12, 4, WS_QKVB, 2048*3072)
    srd_ws(a, 16, 4, WS_KVP, 32*4*4096)

def gen_k3a():
    a = Asm()
    head_common(a, 192, "L_k3a_end")
    a("s_cmp_ge_u32 s2, 128\ns_cbranch_scc1 L_k3a_gate")
    W = 8; T = 16; ACC = 64; AF = 32; BF = 36
    wphi_frag(a, W)
    a(f"""
    s_lshl_b32 s3, s25, 9
    s_lshl_b32 s27, s26, 7
    s_add_u32 s3, s3, s27
    v_add_u32 v5, s3, v3
    s_movk_i32 s27, 3072
    v_mul_lo_u32 v5, v5, s27
    v_lshl_add_u32 v5, v4, 4, v5
    s_lshl_b32 s3, s24, 5
    v_add_u32 v12, s3, v5
    s_lshl_b32 s28, s26, 12
    v_lshlrev_b32 v13, 6, v3
    v_add_u32 v13, s28, v13
    v_lshl_add_u32 v14, v4, 3, v13
    v_lshl_add_u32 v13, v4, 4, v13
    v_lshrrev_b32 v6, 5, v2
    v_bfe_u32 v7, v2, 2, 2
    v_lshl_add_u32 v6, v6, 3, v7
    v_lshlrev_b32 v6, 6, v6
    v_and_b32 v7, 3, v2
    v_lshl_add_u32 v6, v7, 3, v6
    v_bfe_u32 v7, v2, 4, 1
    v_lshl_add_u32 v6, v7, 5, v6
    v_add_u32 v15, s28, v6
    v_mov_b32 v40, 0
    v_mov_b32 v41, 0
    v_mov_b32 v42, 0
    v_mov_b32 v43, 0
    v_mov_b32 v7, 0x3f80
    v_cmp_eq_u32 vcc, 0, v4
    s_nop 1
    v_cndmask_b32 v40, v40, v7, vcc
    ds_write_b128 v13, v[40:43] offset:{2048+32}
    s_mov_b32 s29, 0
    """)
    for blk in range(4):
        a(f"""
        buffer_load_dwordx4 v[44:47], v12, s[12:15], s29 offen offset:1024
        buffer_load_dwordx4 v[48:51], v12, s[12:15], s29 offen offset:2048
        s_add_u32 s29, s29, {32*3072}
        s_waitcnt vmcnt(1)
        v_mfma_f32_32x32x16_bf16 {vr(T,16)}, {vr(W,4)}, v[44:47], 0
        s_waitcnt vmcnt(0)
        ds_write_b128 v13, v[48:51] offset:2048
        s_nop 15
        """)
        rnd16(a, T, 40)
        softmax16(a, T, 40)
        for p in range(8): a(f"v_cvt_pk_bf16_f32 v{44+p}, v{T+2*p}, v{T+2*p+1}")
        for q in range(4): a(f"ds_write_b64 v14, {vr(44+2*q,2)} offset:{q*16}")
        a("s_waitcnt lgkmcnt(0)")
        for ks in range(2):
            a(f"""
            ds_read_b64_tr_b16 {vr(AF,2)}, v15 offset:{ks*1024}
            ds_read_b64_tr_b16 {vr(AF+2,2)}, v15 offset:{ks*1024+256}
            ds_read_b64_tr_b16 {vr(BF,2)}, v15 offset:{2048+ks*1024}
            ds_read_b64_tr_b16 {vr(BF+2,2)}, v15 offset:{2048+ks*1024+256}
            s_waitcnt lgkmcnt(0)
            v_mfma_f32_32x32x16_bf16 {vr(ACC,16)}, {vr(AF,4)}, {vr(BF,4)}, {'0' if blk==0 and ks==0 else vr(ACC,16)}
            """)
    a("""
    s_nop 15
    v_lshlrev_b32 v5, 4, v2
    v_add_u32 v6, s28, v5
    """)
    for q in range(4): a(f"ds_write_b128 v6, {vr(ACC+q*4,4)} offset:{16384+q*1024}")
    a("""
    s_waitcnt lgkmcnt(0)
    s_barrier
    s_lshl_b32 s3, s26, 10
    v_add_u32 v5, s3, v5
    """)
    for w in range(4): a(f"ds_read_b128 {vr(16+w*4,4)}, v5 offset:{16384+w*4096}")
    a("s_waitcnt lgkmcnt(0)")
    for i in range(4):
        a(f"v_add_f32 v{16+i}, v{16+i}, v{20+i}\nv_add_f32 v{24+i}, v{24+i}, v{28+i}\nv_add_f32 v{16+i}, v{16+i}, v{24+i}")
    a("""
    s_lshl_b32 s3, s2, 12
    s_lshl_b32 s27, s26, 10
    s_add_u32 s3, s3, s27
    v_lshlrev_b32 v5, 2, v2
    v_add_u32 v5, s3, v5
    """)
    for i in range(4): a(f"buffer_store_dword v{16+i}, v5, s[16:19], 0 offen offset:{i*256}")
    a("s_branch L_k3a_end")
    a("L_k3a_gate:")
    srd(a, 8, "s44", "s45", 0x200000)
    srd(a, 12, "s46", "s47", 1024)
    srd_ws(a, 16, 4, WS_G, 8192)
    a("""
    s_sub_u32 s3, s2, 128
    s_lshl_b32 s3, s3, 5
    s_lshl_b32 s27, s26, 3
    s_add_u32 s3, s3, s27
    v_lshrrev_b32 v5, 3, v2
    v_add_u32 v5, s3, v5
    v_and_b32 v6, 7, v2
    v_lshlrev_b32 v6, 7, v6
    v_lshl_add_u32 v7, v5, 10, v6
    """)
    for j in range(8):
        a(f"buffer_load_dwordx4 {vr(16+j*4,4)}, v7, s[8:11], 0 offen offset:{j*16}")
        a(f"buffer_load_dwordx4 {vr(64+j*4,4)}, v6, s[12:15], 0 offen offset:{j*16}")
    a("v_mov_b32 v8, 0\nv_mov_b32 v9, 0\ns_waitcnt vmcnt(0)")
    for i in range(32):
        a(f"""
        v_lshlrev_b32 v10, 16, v{16+i}
        v_lshlrev_b32 v11, 16, v{64+i}
        v_fmac_f32 v8, v10, v11
        v_and_b32 v10, 0xffff0000, v{16+i}
        v_and_b32 v11, 0xffff0000, v{64+i}
        v_fmac_f32 v9, v10, v11
        """)
    a("v_add_f32 v8, v8, v9")
    for off in (0x041F, 0x081F, 0x101F):
        a(f"ds_swizzle_b32 v9, v8 offset:{hex(off)}\ns_waitcnt lgkmcnt(0)\nv_add_f32 v8, v8, v9")
    a("""
    v_cvt_pk_bf16_f32 v8, v8, v8
    v_and_b32 v8, 0xffff0000, v8
    v_mul_f32 v8, s40, v8
    v_sub_f32 v8, 0, v8
    v_exp_f32 v8, v8
    s_nop 0
    v_add_f32 v8, 1.0, v8
    v_rcp_f32 v8, v8
    s_nop 0
    v_cvt_pk_bf16_f32 v8, v8, v8
    v_and_b32 v8, 0xffff0000, v8
    v_lshlrev_b32 v5, 2, v5
    buffer_store_dword v8, v5, s[16:19], 0 offen
    """)
    a("L_k3a_end:\ns_endpgm")
    return a.text()

def gen_k3c():
    a = Asm()
    head_common(a, 576, "L_k3c_end")
    a("s_cmp_ge_u32 s2, 512\ns_cbranch_scc1 L_k3c_gate")
    srd_ws(a, 16, 4, WS_KVP, 32*8*4096)
    srd_ws(a, 20, 4, WS_CTXO, 2048*CTX_PITCH)
    KVF = 32; PF = 52; D2 = 16
    a("""
    s_lshr_b32 s24, s2, 4
    s_and_b32 s25, s2, 15
    s_lshl_b32 s3, s25, 7
    s_lshl_b32 s27, s26, 5
    s_add_u32 s28, s3, s27
    s_lshl_b32 s3, s24, 11
    s_add_u32 s3, s3, s28
    v_add_u32 v6, s3, v3
    v_lshlrev_b32 v6, 5, v6
    v_lshl_add_u32 v6, v4, 4, v6
    buffer_load_dwordx4 v[48:51], v6, s[12:15], 0 offen
    """)
    wphi_frag(a, 8)
    a(f"""
    s_nop 1
    v_mfma_f32_32x32x16_bf16 {vr(D2,16)}, v[8:11], v[48:51], 0
    s_lshl_b32 s3, s24, 15
    v_lshlrev_b32 v5, 4, v2
    v_add_u32 v5, s3, v5
    """)
    for c in range(8):
        a(f"s_movk_i32 s27, {c*4096}")
        for q in range(4): a(f"buffer_load_dwordx4 {vr(64+c*16+q*4,4)}, v5, s[16:19], s27 offen offset:{q*1024}")
    a(f"""
    s_lshr_b32 s3, s28, 5
    s_mul_i32 s3, s3, {36*8192}
    s_lshl_b32 s27, s24, 10
    s_add_u32 s3, s3, s27
    s_add_u32 s3, s3, {32*8192}
    v_lshlrev_b32 v13, 4, v2
    v_add_u32 v13, s3, v13
    """)
    rnd16(a, D2, 40)
    softmax16(a, D2, 40)
    for p in range(8): a(f"v_cvt_pk_bf16_f32 v{PF+p}, v{D2+2*p}, v{D2+2*p+1}")
    a("s_waitcnt vmcnt(0)")
    for r in range(16):
        a(f"""v_add_f32 v{64+r}, v{64+r}, v{80+r}
        v_add_f32 v{96+r}, v{96+r}, v{112+r}
        v_add_f32 v{128+r}, v{128+r}, v{144+r}
        v_add_f32 v{160+r}, v{160+r}, v{176+r}
        v_add_f32 v{64+r}, v{64+r}, v{96+r}
        v_add_f32 v{128+r}, v{128+r}, v{160+r}
        v_add_f32 v{64+r}, v{64+r}, v{128+r}""")
    for p in range(8): a(f"v_cvt_pk_bf16_f32 v{KVF+p}, v{64+2*p}, v{64+2*p+1}")
    a(f"""
    s_nop 1
    v_mfma_f32_32x32x16_bf16 {vr(D2,16)}, {vr(KVF,4)}, {vr(PF,4)}, 0
    v_mfma_f32_32x32x16_bf16 {vr(D2,16)}, {vr(KVF+4,4)}, {vr(PF+4,4)}, {vr(D2,16)}
    s_nop 15
    s_nop 3
    v_mov_b32 v40, v{D2+8}
    v_mov_b32 v41, v{D2+8}
    s_nop 1
    v_permlane32_swap_b32 v40, v41
    s_nop 1
    v_cvt_pk_bf16_f32 v40, v40, v40
    v_and_b32 v40, 0xffff0000, v40
    v_add_f32 v40, 0x358637bd, v40
    v_cvt_pk_bf16_f32 v40, v40, v40
    v_and_b32 v40, 0xffff0000, v40
    v_rcp_f32 v40, v40
    """)
    for i in range(4):
        a(f"v_cvt_pk_bf16_f32 v41, v{D2+2*i}, v{D2+2*i+1}\nv_lshlrev_b32 v{D2+2*i}, 16, v41\nv_and_b32 v{D2+2*i+1}, 0xffff0000, v41")
    for i in range(8): a(f"v_mul_f32 v{D2+i}, v{D2+i}, v40")
    for p in range(4): a(f"v_cvt_pk_bf16_f32 v{44+p}, v{D2+2*p}, v{D2+2*p+1}")
    a("buffer_store_dwordx4 v[44:47], v13, s[20:23], 0 offen\ns_endpgm")
    t = gen_k3a()
    g = t[t.index("L_k3a_gate:"):].replace("L_k3a_gate", "L_k3c_gate").replace("L_k3a_end", "L_k3c_end").replace("s_sub_u32 s3, s2, 128", "s_sub_u32 s3, s2, 512")
    return a.text() + g

def gen_k3d():
    a = Asm()
    head_common(a, 576, "L_k3d_end")
    a("s_cmp_lt_u32 s2, 64\ns_cbranch_scc1 L_k3d_gate\ns_sub_u32 s2, s2, 64")
    srd_ws(a, 16, 4, WS_KVP, 32*8*4096)
    srd_ws(a, 20, 4, WS_CTXO, 2048*CTX_PITCH)
    KVF = 32; PF = 52; D2 = 16; W = 8
    a("""
    s_lshr_b32 s24, s2, 4
    s_and_b32 s25, s2, 15
    s_lshl_b32 s3, s25, 7
    s_lshl_b32 s27, s26, 5
    s_add_u32 s28, s3, s27
    s_lshl_b32 s3, s24, 11
    s_add_u32 s3, s3, s28
    v_add_u32 v6, s3, v3
    v_lshlrev_b32 v6, 5, v6
    v_lshl_add_u32 v6, v4, 4, v6
    buffer_load_dwordx4 v[48:51], v6, s[12:15], 0 offen
    v_and_b32 v5, 15, v3
    v_lshlrev_b32 v5, 1, v5
    v_lshl_add_u32 v5, v4, 7, v5
    s_lshl_b32 s3, s24, 9
    v_add_u32 v5, s3, v5
    """)
    for j in range(8):
        a(f"buffer_load_ushort v{40+j}, v5, s[8:11], 0 offen offset:{((j//4)*8 + j%4)*32}")
    a("""
    s_lshl_b32 s3, s24, 15
    s_lshl_b32 s27, s26, 10
    s_add_u32 s3, s3, s27
    v_lshlrev_b32 v5, 4, v2
    v_add_u32 v5, s3, v5
    v_cmp_gt_u32 vcc, 17, v3
    s_nop 1
    s_mov_b64 exec, vcc
    """)
    for c in range(8):
        a(f"s_movk_i32 s27, {c*4096}\nbuffer_load_dwordx4 {vr(64+c*4,4)}, v5, s[16:19], s27 offen")
    a(f"""
    s_mov_b64 exec, -1
    v_cmp_lt_u32 vcc, 15, v3
    v_mov_b32 v6, 0
    v_mov_b32 v7, 0x80008000
    s_nop 0
    v_cndmask_b32 v6, v6, v7, vcc
    s_lshr_b32 s3, s28, 5
    s_mul_i32 s3, s3, {36*8192}
    s_lshl_b32 s27, s24, 10
    s_add_u32 s3, s3, s27
    s_add_u32 s3, s3, {32*8192}
    v_lshlrev_b32 v13, 4, v2
    v_add_u32 v13, s3, v13
    v_lshlrev_b32 v14, 5, v2
    s_lshl_b32 s3, s26, 3
    v_add_u32 v15, s3, v14
    s_waitcnt vmcnt(8)
    """)
    for p in range(4):
        a(f"v_lshl_or_b32 v{W+p}, v{41+2*p}, 16, v{40+2*p}\nv_xor_b32 v{W+p}, v{W+p}, v6")
    a(f"""
    s_nop 1
    v_mfma_f32_32x32x16_bf16 {vr(D2,16)}, v[8:11], v[48:51], 0
    s_nop 15
    s_nop 3
    """)
    rnd16(a, D2, 40)
    softmax16(a, D2, 40)
    for p in range(8): a(f"v_cvt_pk_bf16_f32 v{PF+p}, v{D2+2*p}, v{D2+2*p+1}")
    a("s_waitcnt vmcnt(0)")
    for r in range(4):
        a(f"""v_add_f32 v{64+r}, v{64+r}, v{68+r}
        v_add_f32 v{72+r}, v{72+r}, v{76+r}
        v_add_f32 v{80+r}, v{80+r}, v{84+r}
        v_add_f32 v{88+r}, v{88+r}, v{92+r}
        v_add_f32 v{64+r}, v{64+r}, v{72+r}
        v_add_f32 v{80+r}, v{80+r}, v{88+r}
        v_add_f32 v{64+r}, v{64+r}, v{80+r}""")
    a(f"""
    v_cvt_pk_bf16_f32 v68, v64, v65
    v_cvt_pk_bf16_f32 v69, v66, v67
    ds_write_b64 v15, v[68:69]
    s_waitcnt lgkmcnt(0)
    s_barrier
    ds_read_b128 {vr(KVF,4)}, v14
    ds_read_b128 {vr(KVF+4,4)}, v14 offset:16
    s_waitcnt lgkmcnt(1)
    v_mfma_f32_32x32x16_bf16 {vr(D2,16)}, {vr(KVF,4)}, {vr(PF,4)}, 0
    s_waitcnt lgkmcnt(0)
    v_mfma_f32_32x32x16_bf16 {vr(D2,16)}, {vr(KVF+4,4)}, {vr(PF+4,4)}, {vr(D2,16)}
    s_nop 15
    s_nop 3
    v_mov_b32 v40, v{D2+8}
    v_mov_b32 v41, v{D2+8}
    s_nop 1
    v_permlane32_swap_b32 v40, v41
    s_nop 1
    v_cvt_pk_bf16_f32 v40, v40, v40
    v_and_b32 v40, 0xffff0000, v40
    v_add_f32 v40, 0x358637bd, v40
    v_cvt_pk_bf16_f32 v40, v40, v40
    v_and_b32 v40, 0xffff0000, v40
    v_rcp_f32 v40, v40
    """)
    for i in range(4):
        a(f"v_cvt_pk_bf16_f32 v41, v{D2+2*i}, v{D2+2*i+1}\nv_lshlrev_b32 v{D2+2*i}, 16, v41\nv_and_b32 v{D2+2*i+1}, 0xffff0000, v41")
    for i in range(8): a(f"v_mul_f32 v{D2+i}, v{D2+i}, v40")
    for p in range(4): a(f"v_cvt_pk_bf16_f32 v{44+p}, v{D2+2*p}, v{D2+2*p+1}")
    a("buffer_store_dwordx4 v[44:47], v13, s[20:23], 0 offen\ns_endpgm")
    t = gen_k3a()
    g = t[t.index("L_k3a_gate:"):].replace("L_k3a_gate", "L_k3d_gate").replace("L_k3a_end", "L_k3d_end").replace("s_sub_u32 s3, s2, 128", "s_mov_b32 s3, s2")
    return a.text() + g
```

```python
from common import *
from gemm import *
NWG1 = 256
def gen_k1():
    a = Asm()
    ACC = 64; XF = 192; WF = 224
    a(f"""
    s_cmp_ge_u32 s2, {NWG1}
    s_cbranch_scc1 L_k1_end
    s_load_dwordx8 s[4:11], s[0:1], 8
    s_load_dwordx2 s[20:21], s[0:1], 104
    s_and_b32 s40, s2, 7
    s_lshl_b32 s40, s40, 2
    s_bfe_u32 s3, s2, 0x20003
    s_add_u32 s40, s40, s3
    s_lshr_b32 s41, s2, 5
    v_lshrrev_b32 v1, 6, v0
    s_nop 0
    v_readfirstlane_b32 s42, v1
    v_and_b32 v2, 63, v0
    s_lshr_b32 s45, s40, 4
    s_and_b32 s44, s40, 15
    s_lshl_b32 s44, s44, 9
    s_lshr_b32 s48, s42, 2
    s_and_b32 s49, s42, 3
    s_lshl_b32 s46, s42, 5
    s_lshl_b32 s47, s41, 8
    s_add_u32 s46, s46, s47
    s_lshl_b32 s47, s48, 7
    s_waitcnt lgkmcnt(0)
    s_mov_b32 s24, s4
    s_mov_b32 s25, s5
    s_mov_b32 s26, 0x200000
    s_mov_b32 s27, 0x00020000
    s_cmp_eq_u32 s45, 0
    s_cselect_b32 s28, s8, s10
    s_cselect_b32 s29, s9, s11
    s_mov_b32 s30, 0x400000
    s_mov_b32 s31, 0x00020000
    s_mov_b32 s32, s20
    s_mov_b32 s33, s21
    s_mov_b32 s34, 0x10000000
    s_mov_b32 s35, 0x00020000
    s_or_b32 s3, s2, s42
    s_cmp_lg_u32 s3, 0
    s_cbranch_scc1 L_k1_nz
    v_lshlrev_b32 v5, 8, v2
    v_mov_b32 v6, 0
    s_mov_b32 s3, {hex(WS_CNT)}
    buffer_store_dword v6, v5, s[32:35], s3 offen
    L_k1_nz:
    s_mov_b32 s52, {8192*32}
    """)
    gemm_setup(a, "s46", "s47")
    a("""
    s_lshr_b32 s46, s49, 1
    s_lshl_b32 s46, s46, 13
    v_add_u32 v4, s46, v4
    s_and_b32 s46, s49, 1
    s_lshl_b32 s46, s46, 1
    """)
    for nb in range(2):
        a(f"s_add_u32 s47, s46, {nb}\nv_xor_b32 v5, s47, v3\nv_lshl_add_u32 v{RW+nb}, v5, 6, v4")
    a("""
    v_lshrrev_b32 v4, 4, v2
    v_and_b32 v5, 15, v2
    v_lshlrev_b32 v6, 2, v4
    v_xor_b32 v5, v5, v6
    v_lshlrev_b32 v5, 4, v5
    s_lshl_b32 s46, s48, 8
    s_add_u32 s46, s46, s44
    v_add_u32 v5, s46, v5
    s_lshl_b32 s46, s49, 3
    v_add_u32 v4, s46, v4
    """)
    for i in range(2):
        a(f"v_add_u32 v6, {4*i}, v4\nv_lshl_add_u32 v{VOW+i}, v6, 13, v5")
    gemm_prologue(a)
    a("""
    s_and_b32 s57, s40, 15
    s_lshl_b32 s57, s57, 1
    s_lshr_b32 s46, s49, 1
    s_add_u32 s57, s57, s46
    s_and_b32 s49, s49, 1
    s_cmp_eq_u32 s45, 1
    s_cbranch_scc1 L_k1_vtype
    """)
    gemm_core(a, 4, [(0, 0), (1, 0)], ACC, XF, WF, False)
    a(f"""
    s_lshl_b32 s46, s57, 19
    s_add_u32 s46, s46, {hex(WS_K)}
    s_lshl_b32 s47, s41, 16
    s_add_u32 s46, s46, s47
    s_lshl_b32 s47, s48, 15
    s_add_u32 s46, s46, s47
    s_lshl_b32 s47, s49, 12
    s_add_u32 s46, s46, s47
    v_lshlrev_b32 v5, 4, v2
    """)
    for mb in range(4):
        for nb in range(2):
            for hf in range(2):
                b = ACC + (mb*2+nb)*16 + hf*8
                t = XF + ((mb*4+nb*2+hf) & 7)*4
                for p in range(4):
                    a(f"v_cvt_pk_bf16_f32 v{t+p}, v{b+2*p}, v{b+2*p+1}")
                a(f"buffer_store_dwordx4 {vr(t,4)}, v5, s[32:35], s46 offen offset:{(nb*2+hf)*1024}")
        a("s_add_u32 s46, s46, 8192")
    a("s_endpgm")
    a("L_k1_vtype:")
    gemm_core(a, 4, [(0, 0), (1, 0)], ACC, XF, WF, True)
    a(f"""
    s_lshl_b32 s46, s57, 19
    s_add_u32 s46, s46, {hex(WS_V)}
    s_lshl_b32 s47, s41, 16
    s_add_u32 s46, s46, s47
    s_lshl_b32 s47, s48, 15
    s_add_u32 s46, s46, s47
    s_lshl_b32 s47, s49, 11
    s_add_u32 s46, s46, s47
    v_lshlrev_b32 v5, 4, v2
    """)
    for mb in range(4):
        for hf in range(2):
            for nb in range(2):
                b = ACC + (mb*2+nb)*16 + hf*8
                t = XF + ((mb*4+nb+hf*2) & 7)*4
                for p in range(4):
                    a(f"v_cvt_pk_bf16_f32 v{t+p}, v{b+2*p}, v{b+2*p+1}")
                a(f"buffer_store_dwordx4 {vr(t,4)}, v5, s[32:35], s46 offen offset:{nb*1024}")
            a("s_add_u32 s46, s46, 4096")
    a("L_k1_end:\ns_endpgm")
    return a.text()
```

```python
from common import *
from gemm import *
import k3
import struct, os
def f32bits(x): return struct.unpack("<I", struct.pack("<f", x))[0]
NWG2 = 256
O = 64; SS = [128, 160]; P = 192; Q = 208
FS = [36, 40, 44, 48, 52, 56, 60, 240]
KA = 8; VA = 16
VM = 20; VL = 21; VTHR = 22; VDMA = 23
KB = [0, 32768]; VB = [65536, 98304]
INSTR = os.environ.get("INSTR") == "1"
FORCE = os.environ.get("FORCE") == "1"
G0S = int(os.environ.get("G0S", "16"))
def qpro(a):
    ACC = 64; XF = 160; WF = 168
    a(f"""
    s_load_dwordx2 s[4:5], s[0:1], 104
    s_load_dwordx2 s[24:25], s[0:1], 0
    s_load_dwordx2 s[28:29], s[0:1], 16
    s_load_dwordx2 s[6:7], s[0:1], 56
    s_load_dwordx2 s[8:9], s[0:1], 64
    s_and_b32 s40, s2, 7
    s_lshl_b32 s40, s40, 2
    s_bfe_u32 s3, s2, 0x20003
    s_add_u32 s40, s40, s3
    s_lshr_b32 s41, s2, 5
    v_lshrrev_b32 v1, 6, v0
    s_nop 0
    v_readfirstlane_b32 s42, v1
    v_and_b32 v2, 63, v0
    s_lshr_b32 s48, s42, 2
    s_and_b32 s49, s42, 3
    s_sub_u32 s46, 15, s41
    s_cmp_eq_u32 s48, 0
    s_cselect_b32 s46, s46, s41
    s_lshl_b32 s46, s46, 7
    s_lshl_b32 s47, s49, 5
    s_add_u32 s43, s46, s47
    s_lshl_b32 s47, s42, 5
    s_waitcnt lgkmcnt(0)
    s_mov_b32 s26, 0x200000
    s_mov_b32 s27, 0x00020000
    s_mov_b32 s30, 0x180000
    s_movk_i32 s44, 3072
    s_cmp_eq_u32 s48, 0
    s_cselect_b32 s28, s28, s6
    s_cselect_b32 s29, s29, s7
    s_cselect_b32 s30, 0x400000, s30
    s_cselect_b32 s44, 8192, s44
    s_mov_b32 s31, 0x00020000
    s_mov_b32 s32, s4
    s_mov_b32 s33, s5
    s_mov_b32 s34, 0x10000000
    s_mov_b32 s35, 0x00020000
    s_lshl_b32 s52, s44, 5
    """)
    gemm_setup(a, "s43", "s47")
    for b in range(4):
        a(f"v_xor_b32 v5, {b}, v3\nv_lshl_add_u32 v{RW+b}, v5, 6, v4")
    a(f"""
    v_lshrrev_b32 v5, 5, v2
    v_lshl_add_u32 v5, v5, 3, v3
    v_lshlrev_b32 v5, 7, v5
    v_and_b32 v6, 3, v2
    v_lshl_add_u32 v5, v6, 3, v5
    v_bfe_u32 v6, v2, 4, 1
    v_lshl_add_u32 v5, v6, 5, v5
    v_add_u32 v5, {WBASE + 8192}, v5
    v_lshrrev_b32 v6, 1, v3
    v_lshl_add_u32 v{RW+4}, v6, 6, v5
    v_xor_b32 v{RW+5}, 64, v{RW+4}
    s_cmp_eq_u32 s48, 0
    s_cbranch_scc1 L_k2_wq
    v_lshrrev_b32 v4, 3, v2
    v_bfe_u32 v6, v2, 4, 1
    v_lshlrev_b32 v6, 2, v6
    v_and_b32 v5, 7, v2
    v_xor_b32 v5, v5, v6
    v_lshrrev_b32 v6, 1, v5
    v_min_u32 v6, 2, v6
    v_lshlrev_b32 v6, 10, v6
    v_and_b32 v7, 1, v5
    v_lshl_add_u32 v6, v7, 4, v6
    s_lshl_b32 s46, s40, 5
    v_add_u32 v5, s46, v6
    s_lshl_b32 s46, s49, 3
    v_add_u32 v4, s46, v4
    v_mul_lo_u32 v6, v4, s44
    v_add_u32 v{VOW}, v6, v5
    v_mov_b32 v{VOW+1}, v{VOW}
    s_lshl_b32 s54, s49, 10
    s_add_u32 s54, s54, 8192
    s_branch L_k2_wdone
    L_k2_wq:
    v_lshrrev_b32 v4, 4, v2
    v_and_b32 v5, 15, v2
    v_lshlrev_b32 v6, 2, v4
    v_xor_b32 v5, v5, v6
    v_lshlrev_b32 v5, 4, v5
    s_lshl_b32 s46, s40, 8
    v_add_u32 v5, s46, v5
    s_lshl_b32 s46, s49, 3
    v_add_u32 v4, s46, v4
    """)
    for i in range(2):
        a(f"v_add_u32 v6, {4*i}, v4\nv_mul_lo_u32 v6, v6, s44\nv_add_u32 v{VOW+i}, v6, v5")
    a("L_k2_wdone:")
    srd(a, 8, "s8", "s9", 16384)
    a("""
    v_and_b32 v5, 15, v2
    v_lshlrev_b32 v5, 1, v5
    v_lshrrev_b32 v4, 5, v2
    v_lshl_add_u32 v5, v4, 7, v5
    s_lshl_b32 s3, s40, 9
    v_add_u32 v5, s3, v5
    """)
    for j in range(8):
        a(f"buffer_load_ushort v{40+j}, v5, s[8:11], 0 offen offset:{((j//4)*8 + j%4)*32}")
    gemm_prologue(a, True)
    gemm_core(a, 1, [(0,0),(1,0),(2,0),(3,0),(4,0,2048,512),(5,0,2048,512)], ACC, XF, WF, False, None, True)
    a(f"""
    v_and_b32 v3, 31, v2
    v_lshrrev_b32 v4, 5, v2
    s_lshl_b32 s46, s42, 13
    s_add_u32 s46, s46, 98304
    v_lshlrev_b32 v5, 4, v2
    v_add_u32 v5, s46, v5
    s_lshl_b32 s46, s40, 19
    s_add_u32 s46, s46, {hex(WS_K)}
    s_add_u32 s12, s4, s46
    s_addc_u32 s13, s5, 0
    s_mov_b32 s14, 0x80000
    s_mov_b32 s15, 0x00020000
    v_lshlrev_b32 v6, 4, v2
    v_add_u32 v6, s53, v6
    s_mov_b32 m0, s53
    s_barrier
    """)
    for j in range(4): a(f"buffer_load_dwordx4 v6, s[12:15], 0 offen offset:{j*1024} lds")
    for n in range(8, 11):
        nb, hf = n // 2, n % 2
        b = ACC + nb*16 + hf*8; t = XF + (n-8)*4
        for p in range(4): a(f"v_cvt_pk_bf16_f32 v{t+p}, v{b+2*p}, v{b+2*p+1}")
    W = 28; TK = 128; TQ = 144; AF = 48; BF = 52; KACC = 216
    a("v_cmp_lt_u32 vcc, 15, v3\nv_mov_b32 v6, 0\nv_mov_b32 v7, 0x80008000\ns_nop 0\nv_cndmask_b32 v6, v6, v7, vcc")
    for p in range(4):
        a(f"v_lshl_or_b32 v{W+p}, v{41+2*p}, 16, v{40+2*p}\nv_xor_b32 v{W+p}, v{W+p}, v6")
    a(f"""
    s_nop 1
    v_mfma_f32_32x32x16_bf16 {vr(TK,16)}, {vr(W,4)}, {vr(XF+4,4)}, 0
    """)
    for n in range(8):
        nb, hf = n // 2, n % 2
        b = ACC + nb*16 + hf*8; t = Q + n*4
        for p in range(4): a(f"v_cvt_pk_bf16_f32 v{t+p}, v{b+2*p}, v{b+2*p+1}")
        a(f"ds_write_b128 v5, {vr(t,4)} offset:{n*1024}")
    a(f"""
    s_mov_b32 s56, s40
    s_mov_b32 s40, {k3.LOG2E}
    s_lshl_b32 s28, s42, 12
    s_add_u32 s28, s28, 32768
    v_lshlrev_b32 v33, 6, v3
    v_add_u32 v33, s28, v33
    v_lshl_add_u32 v34, v4, 3, v33
    v_lshl_add_u32 v33, v4, 4, v33
    v_bfe_u32 v7, v2, 2, 2
    v_lshl_add_u32 v6, v4, 3, v7
    v_lshlrev_b32 v6, 6, v6
    v_and_b32 v7, 3, v2
    v_lshl_add_u32 v6, v7, 3, v6
    v_bfe_u32 v7, v2, 4, 1
    v_lshl_add_u32 v6, v7, 5, v6
    v_add_u32 v35, s28, v6
    v_mov_b32 v40, 0
    v_mov_b32 v41, 0
    v_mov_b32 v42, 0
    v_mov_b32 v43, 0
    v_mov_b32 v7, 0x3f80
    v_cmp_eq_u32 vcc, 0, v4
    s_nop 1
    v_cndmask_b32 v40, v40, v7, vcc
    ds_write_b128 v33, v[40:43] offset:{2048+32}
    ds_write_b128 v33, {vr(XF+8,4)} offset:2048
    """)
    k3.rnd16(a, TK, 44)
    k3.softmax16(a, TK, 44)
    for p in range(8): a(f"v_cvt_pk_bf16_f32 v{64+p}, v{TK+2*p}, v{TK+2*p+1}")
    for q in range(4): a(f"ds_write_b64 v34, {vr(64+2*q,2)} offset:{q*16}")
    a("s_waitcnt lgkmcnt(0)")
    for ks in range(2):
        a(f"""
        ds_read_b64_tr_b16 {vr(AF+ks*8,2)}, v35 offset:{ks*1024}
        ds_read_b64_tr_b16 {vr(AF+ks*8+2,2)}, v35 offset:{ks*1024+256}
        ds_read_b64_tr_b16 {vr(BF+ks*8,2)}, v35 offset:{2048+ks*1024}
        ds_read_b64_tr_b16 {vr(BF+ks*8+2,2)}, v35 offset:{2048+ks*1024+256}
        """)
    a("s_waitcnt lgkmcnt(0)")
    for ks in range(2):
        a(f"v_mfma_f32_32x32x16_bf16 {vr(KACC,16)}, {vr(AF+ks*8,4)}, {vr(BF+ks*8,4)}, {'0' if ks==0 else vr(KACC,16)}")
    a(f"""
    s_lshl_b32 s46, s56, 11
    s_add_u32 s46, s46, s43
    v_add_u32 v6, s46, v3
    v_lshlrev_b32 v6, 5, v6
    v_lshl_add_u32 v6, v4, 4, v6
    s_mov_b32 s47, {hex(WS_QKVB)}
    buffer_store_dwordx4 {vr(XF,4)}, v6, s[32:35], s47 offen sc1
    s_nop 7
    s_nop 7
    v_lshlrev_b32 v5, 4, v2
    v_add_u32 v6, s28, v5
    """)
    for q in range(4): a(f"ds_write_b128 v6, {vr(KACC+q*4,4)} offset:{32768+q*1024}")
    a(f"""
    s_waitcnt lgkmcnt(0)
    s_barrier
    s_cmp_ge_u32 s42, 4
    s_cbranch_scc1 L_k2_nored
    s_lshl_b32 s3, s42, 10
    v_add_u32 v5, s3, v5
    v_add_u32 v7, 0x8000, v5
    """)
    for w in range(8): a(f"ds_read_b128 {vr(64+w*4,4)}, v7 offset:{32768+w*4096}")
    a("s_waitcnt lgkmcnt(0)")
    for i in range(4):
        a(f"""v_add_f32 v{64+i}, v{64+i}, v{68+i}
        v_add_f32 v{72+i}, v{72+i}, v{76+i}
        v_add_f32 v{80+i}, v{80+i}, v{84+i}
        v_add_f32 v{88+i}, v{88+i}, v{92+i}
        v_add_f32 v{64+i}, v{64+i}, v{72+i}
        v_add_f32 v{80+i}, v{80+i}, v{88+i}
        v_add_f32 v{64+i}, v{64+i}, v{80+i}""")
    a(f"""
    s_lshl_b32 s3, s56, 3
    s_add_u32 s3, s3, s41
    s_lshl_b32 s3, s3, 12
    s_add_u32 s3, s3, {hex(WS_KVP)}
    buffer_store_dwordx4 v[64:67], v5, s[32:35], s3 offen sc1
    L_k2_nored:
    s_barrier
    """)
PART = 160; QB = 176; WPH = 180; GX = 208; GW = 212
def ob_qload(a):
    a(f"""
    s_lshl_b32 s3, s24, 11
    s_add_u32 s3, s3, s82
    v_add_u32 v6, s3, v3
    v_lshlrev_b32 v6, 5, v6
    v_lshl_add_u32 v6, v4, 4, v6
    s_mov_b32 s3, {hex(WS_QKVB)}
    buffer_load_dwordx4 {vr(QB,4)}, v6, s[64:67], s3 offen sc1
    """)
def ob_tok(a, j):
    a(f"""
    s_sub_u32 s82, 15, {j}
    s_cmp_eq_u32 s27, 0
    s_cselect_b32 s82, s82, {j}
    s_lshl_b32 s82, s82, 7
    s_lshl_b32 s3, s28, 5
    s_add_u32 s82, s82, s3
    """)
def ob_pre(a):
    a(f"""
    s_cmp_eq_u32 s36, 0
    s_cbranch_scc1 L_k2_nopf
    v_and_b32 v3, 31, v2
    v_lshrrev_b32 v4, 5, v2
    s_lshl_b32 s83, s2, 3
    s_add_u32 s83, s83, s26
    s_lshl_b32 s3, s83, 10
    v_lshlrev_b32 v6, 4, v2
    buffer_load_dwordx4 {vr(GX,4)}, v6, s[72:75], s3 offen
    buffer_load_dwordx4 {vr(GW,4)}, v6, s[76:79], 0 offen
    s_bitcmp0_b32 s80, 0
    s_cbranch_scc1 L_k2_nopf
    """)
    ob_tok(a, "s25")
    ob_qload(a)
    a("""
    v_and_b32 v5, 15, v3
    v_lshlrev_b32 v5, 1, v5
    v_lshl_add_u32 v5, v4, 7, v5
    s_lshl_b32 s3, s24, 9
    v_add_u32 v5, s3, v5
    """)
    for j in range(8):
        a(f"buffer_load_ushort v{WPH+j}, v5, s[68:71], 0 offen offset:{((j//4)*8 + j%4)*32}")
    a(f"""
    s_lshl_b32 s3, s24, 15
    s_lshl_b32 s37, s27, 14
    s_add_u32 s3, s3, s37
    s_lshl_b32 s37, s28, 10
    s_add_u32 s3, s3, s37
    s_add_u32 s3, s3, {hex(WS_KVP)}
    v_lshlrev_b32 v5, 4, v2
    v_cmp_gt_u32 vcc, 17, v3
    s_nop 1
    s_mov_b64 exec, vcc
    """)
    for c in range(4):
        a(f"buffer_load_dwordx4 {vr(PART+c*4,4)}, v5, s[64:67], s3 offen sc1\ns_add_u32 s3, s3, 4096")
    a("s_mov_b64 exec, -1\nL_k2_nopf:")
def ob_post(a):
    W = 36; T = 40; PF = 48; KVF = 56; D2 = 128; EX = 64
    a(f"""
    s_cmp_eq_u32 s36, 0
    s_cbranch_scc1 L_k2_obskip
    s_mov_b32 s40, {k3.LOG2E}
    s_bitcmp0_b32 s80, 0
    s_cbranch_scc1 L_k2_gate
    """)
    for r in range(4):
        a(f"""v_add_f32 v{PART+r}, v{PART+r}, v{PART+4+r}
        v_add_f32 v{PART+8+r}, v{PART+8+r}, v{PART+12+r}
        v_add_f32 v{PART+r}, v{PART+r}, v{PART+8+r}""")
    a(f"""
    v_lshlrev_b32 v5, 4, v2
    s_lshl_b32 s3, s26, 10
    v_add_u32 v6, s3, v5
    ds_write_b128 v6, {vr(PART,4)}
    v_cmp_lt_u32 vcc, 15, v3
    v_mov_b32 v6, 0
    v_mov_b32 v7, 0x80008000
    s_nop 0
    v_cndmask_b32 v6, v6, v7, vcc
    """)
    for p in range(4):
        a(f"v_lshl_or_b32 v{W+p}, v{WPH+1+2*p}, 16, v{WPH+2*p}\nv_xor_b32 v{W+p}, v{W+p}, v6")
    a("s_waitcnt lgkmcnt(0)\ns_barrier")
    for w in range(8): a(f"ds_read_b128 {vr(EX+w*4,4)}, v5 offset:{w*1024}")
    a("L_k2_obloop:")
    a(f"""
    v_mfma_f32_32x32x16_bf16 {vr(D2,16)}, {vr(W,4)}, {vr(QB,4)}, 0
    s_lshr_b32 s3, s82, 5
    s_mul_i32 s3, s3, {36*8192}
    s_lshl_b32 s37, s24, 10
    s_add_u32 s3, s3, s37
    s_add_u32 s84, s3, {32*8192}
    s_waitcnt lgkmcnt(0)
    """)
    for r in range(16): a(f"v_add_f32 v{EX+32+r}, v{EX+r}, v{EX+16+r}")
    for p in range(8): a(f"v_cvt_pk_bf16_f32 v{KVF+p}, v{EX+32+2*p}, v{EX+33+2*p}")
    k3.rnd16(a, D2, T)
    k3.softmax16(a, D2, T)
    for p in range(8): a(f"v_cvt_pk_bf16_f32 v{PF+p}, v{D2+2*p}, v{D2+2*p+1}")
    a(f"""
    s_nop 1
    v_mfma_f32_32x32x16_bf16 {vr(D2,16)}, {vr(KVF,4)}, {vr(PF,4)}, 0
    v_mfma_f32_32x32x16_bf16 {vr(D2,16)}, {vr(KVF+4,4)}, {vr(PF+4,4)}, {vr(D2,16)}
    s_nop 15
    s_nop 3
    v_mov_b32 v{T}, v{D2+8}
    v_mov_b32 v{T+1}, v{D2+8}
    s_nop 1
    v_permlane32_swap_b32 v{T}, v{T+1}
    s_nop 1
    v_cvt_pk_bf16_f32 v{T}, v{T}, v{T}
    v_and_b32 v{T}, 0xffff0000, v{T}
    v_add_f32 v{T}, 0x358637bd, v{T}
    v_cvt_pk_bf16_f32 v{T}, v{T}, v{T}
    v_and_b32 v{T}, 0xffff0000, v{T}
    v_rcp_f32 v{T}, v{T}
    """)
    for i in range(4):
        a(f"v_cvt_pk_bf16_f32 v{T+1}, v{D2+2*i}, v{D2+2*i+1}\nv_lshlrev_b32 v{D2+2*i}, 16, v{T+1}\nv_and_b32 v{D2+2*i+1}, 0xffff0000, v{T+1}")
    for i in range(8): a(f"v_mul_f32 v{D2+i}, v{D2+i}, v{T}")
    for p in range(4): a(f"v_cvt_pk_bf16_f32 v{T+4+p}, v{D2+2*p}, v{D2+2*p+1}")
    a(f"""
    buffer_store_dwordx4 {vr(T+4,4)}, v5, s[20:23], s84 offen
    s_lshr_b32 s3, s80, 8
    s_cmp_eq_u32 s3, 0
    s_cbranch_scc1 L_k2_gate
    s_ff1_i32_b32 s85, s3
    s_add_u32 s3, s85, 8
    s_bitset0_b32 s80, s3
    """)
    ob_tok(a, "s85")
    ob_qload(a)
    a("s_waitcnt vmcnt(0)\ns_branch L_k2_obloop\nL_k2_gate:\nv_mov_b32 v8, 0\nv_mov_b32 v9, 0")
    for i in range(4):
        a(f"""
        v_lshlrev_b32 v10, 16, v{GX+i}
        v_lshlrev_b32 v11, 16, v{GW+i}
        v_fmac_f32 v8, v10, v11
        v_and_b32 v10, 0xffff0000, v{GX+i}
        v_and_b32 v11, 0xffff0000, v{GW+i}
        v_fmac_f32 v9, v10, v11
        """)
    a("v_add_f32 v8, v8, v9")
    for off in (0x041F, 0x081F, 0x101F, 0x201F, 0x401F):
        a(f"ds_swizzle_b32 v9, v8 offset:{hex(off)}\ns_waitcnt lgkmcnt(0)\nv_add_f32 v8, v8, v9")
    a(f"""
    v_mov_b32 v9, v8
    s_nop 1
    v_permlane32_swap_b32 v8, v9
    s_nop 1
    v_add_f32 v8, v8, v9
    v_cvt_pk_bf16_f32 v8, v8, v8
    v_and_b32 v8, 0xffff0000, v8
    v_mul_f32 v8, s40, v8
    v_sub_f32 v8, 0, v8
    v_exp_f32 v8, v8
    s_nop 0
    v_add_f32 v8, 1.0, v8
    v_rcp_f32 v8, v8
    s_nop 0
    v_cvt_pk_bf16_f32 v8, v8, v8
    v_and_b32 v8, 0xffff0000, v8
    s_lshl_b32 s3, s83, 2
    s_add_u32 s3, s3, {hex(WS_G)}
    s_mov_b64 exec, 1
    buffer_store_dword v8, v247, s[64:67], s3 offen
    s_mov_b64 exec, -1
    L_k2_obskip:
    """)
def gen_k2():
    a = Asm()
    def stamp():
        if INSTR: a("s_memtime s[60:61]\ns_waitcnt lgkmcnt(0)\ns_and_b32 s59, s59, 63\ns_mov_b32 m0, s59\ns_nop 3\nv_writelane_b32 v244, s60, m0\ns_add_u32 s59, s59, 1")
    a(f"""
    s_cmp_ge_u32 s2, {NWG2}
    s_cbranch_scc1 L_k2_end
    """)
    qpro(a)
    a(f"""
    s_load_dwordx2 s[4:5], s[0:1], 104
    s_load_dwordx2 s[72:73], s[0:1], 0
    s_load_dwordx2 s[68:69], s[0:1], 64
    s_load_dwordx2 s[76:77], s[0:1], 80
    s_and_b32 s24, s2, 7
    s_lshl_b32 s24, s24, 2
    s_bfe_u32 s3, s2, 0x20003
    s_add_u32 s24, s24, s3
    s_lshr_b32 s25, s2, 5
    v_lshrrev_b32 v1, 6, v0
    s_nop 0
    v_readfirstlane_b32 s26, v1
    v_and_b32 v2, 63, v0
    s_lshr_b32 s27, s26, 2
    s_and_b32 s28, s26, 3
    s_lshl_b32 s34, s26, 12
    s_mov_b32 s35, {hex(f32bits(128**-0.5 * 1.4426950408889634))}
    s_lshl_b32 s3, s24, 19
    s_waitcnt lgkmcnt(0)
    s_add_u32 s6, s4, s3
    s_addc_u32 s7, s5, 0
    """)
    srd_ws(a, 8, 6, WS_K, 0x80000)
    srd_ws(a, 12, 6, WS_V, 0x80000)
    srd_ws(a, 16, 6, WS_Q, 0x80000)
    srd_ws(a, 20, 4, WS_CTXO, 2048*CTX_PITCH)
    srd(a, 64, "s4", "s5", 0x10000000)
    a(f"""
    s_movk_i32 s70, 16384
    s_mov_b32 s71, 0x00020000
    s_mov_b32 s74, 0x200000
    s_mov_b32 s75, 0x00020000
    s_movk_i32 s78, 1024
    s_mov_b32 s79, 0x00020000
    s_lshl_b32 s81, s24, 8
    s_add_u32 s81, s81, {hex(WS_CNT)}
    s_mov_b32 s80, 0
    v_mov_b32 v245, 1
    v_mov_b32 v247, 0
    s_add_u32 s3, s25, 8
    s_lshl_b32 s3, 1, s3
    v_mov_b32 v246, s3
    v_and_b32 v3, 31, v2
    v_lshrrev_b32 v4, 5, v2
    v_lshlrev_b32 v{VDMA}, 4, v2
    v_add_u32 v{VDMA}, s34, v{VDMA}
    s_lshl_b32 s3, s27, 14
    v_lshlrev_b32 v5, 4, v2
    v_add_u32 v{KA}, s3, v5
    v_add_u32 v{VA}, 0x10000, v{KA}
    s_lshl_b32 s3, s28, 5
    s_lshl_b32 s37, s27, 6
    s_sub_u32 s3, s3, s37
    v_lshlrev_b32 v5, 2, v4
    v_sub_u32 v5, v3, v5
    v_add_u32 v{VTHR}, s3, v5
    s_mov_b32 s36, 0
    s_mov_b32 s59, 0
    """)
    if INSTR: a("v_mov_b32 v244, 0")

    def dma(srdreg, soff, buf):
        a(f"s_add_u32 m0, s34, {buf}\ns_nop 0")
        for j in range(4):
            a(f"buffer_load_dwordx4 v{VDMA}, s[{srdreg}:{srdreg+3}], {soff} offen offset:{j*1024} lds")
    def dpiece(srdreg, soff, buf, j, need):
        if need:
            l = a.label("nd")
            a(f"s_cmp_lt_u32 s38, {need}\ns_cbranch_scc1 {l}")
        a(f"s_add_u32 m0, s34, {buf}\ns_nop 0\nbuffer_load_dwordx4 v{VDMA}, s[{srdreg}:{srdreg+3}], {soff} offen offset:{j*1024} lds")
        if need: a(f"{l}:")
    def rd_item(it, slot, parv, park):
        k, s, b = it
        if k == "pv": a(f"ds_read_b128 {vr(FS[slot],4)}, v{VA} offset:{VB[parv]-65536+s*4096+b*1024}")
        else: a(f"ds_read_b128 {vr(FS[slot],4)}, v{KA} offset:{KB[park]+b*8192+s*1024}")
    QKI = [("qk", s, kb) for s in range(8) for kb in range(2)]
    PVI = [("pv", s, db) for s in range(4) for db in range(4)]
    def pre(items, parv, park):
        for i in range(8): rd_item(items[i], i, parv, park)
    def MM(items, parv, park, fill=None, ld=True, g1=False, mid=None, pre_mid=None):
        n = len(items); SQ = SS[park]; qi = 0
        for i, it in enumerate(items):
            k, s, b = it
            if mid is not None and i == 16:
                a(f"{mid}:")
                for x in pre_mid: a(x)
            a(f"s_waitcnt lgkmcnt({min(7, n-1-i)})")
            if k == "pv":
                if fill is not None and s == 0 and b == 0 and not g1: a("s_nop 1")
                acc = vr(O+b*16, 16)
                a(f"v_mfma_f32_32x32x16_bf16 {acc}, {vr(FS[i%8],4)}, {vr(P+s*4,4)}, {acc}")
            else:
                acc = vr(SQ+b*16, 16)
                a(f"v_mfma_f32_32x32x16_bf16 {acc}, {vr(FS[i%8],4)}, {vr(Q+s*4,4)}, {'0' if s==0 else acc}")
            if i + 8 < n: rd_item(items[i+8], i % 8, parv, park)
            if k == "qk" and fill is not None:
                for x in fill[qi]: a(x)
                qi += 1
            i0 = i - (G0S if not g1 else 0)
            if ld and 0 <= i0 < 16 and i0 % 2 == 1:
                j = i0 // 2
                if j < 4: dpiece(12, "s39" if g1 else "s33", VB[parv ^ 1], j, 0)
                else: dpiece(8, "s32", KB[park ^ 1], j - 4, 2)
    def SM_parts(S):
        lr = a.label("noresc")
        A = [f"v_max3_f32 v24, v{S}, v{S+1}, v{S+2}", f"v_max3_f32 v25, v{S+16}, v{S+17}, v{S+18}"]
        for i in range(3, 15, 2):
            A += [f"v_max3_f32 v24, v24, v{S+i}, v{S+i+1}", f"v_max3_f32 v25, v25, v{S+16+i}, v{S+16+i+1}"]
        A2 = f"""v_max3_f32 v24, v24, v{S+15}, v25
        v_max_f32 v24, v24, v{S+31}
        v_mov_b32 v25, v24
        s_nop 1
        v_permlane32_swap_b32 v24, v25
        s_nop 1
        v_max_f32 v24, v24, v25
        v_mul_f32 v24, s35, v24
        v_max_f32 v25, v{VM}, v24
        v_sub_f32 v26, v25, v{VM}
        v_cmp_lt_f32 vcc, 0x41000000, v26
        s_cbranch_vccz {lr}
        v_sub_f32 v26, 0, v26
        v_exp_f32 v26, v26
        v_mov_b32 v{VM}, v25
        s_nop 0
        v_mov_b32 v27, v26
        v_mul_f32 v{VL}, v{VL}, v26
        """ + "\n".join(f"v_pk_mul_f32 {vr(O+i,2)}, {vr(O+i,2)}, v[26:27]" for i in range(0, 64, 2)) + f"\n{lr}:\nv_sub_f32 v28, 0, v{VM}"
        B = []
        for p in range(17):
            if p < 16:
                B += [f"v_fma_f32 v{S+2*p}, v{S+2*p}, s35, v28", f"v_fma_f32 v{S+2*p+1}, v{S+2*p+1}, s35, v28"]
            if p >= 1:
                q = p - 1
                B += [f"v_exp_f32 v{S+2*q}, v{S+2*q}", f"v_exp_f32 v{S+2*q+1}, v{S+2*q+1}"]
            if p >= 2:
                q = p - 2
                B += [f"v_add_f32 v{VL}, v{VL}, v{S+2*q}", f"v_add_f32 v29, v29, v{S+2*q+1}" if q else f"v_mov_b32 v29, v{S+1}",
                      f"v_cvt_pk_bf16_f32 v{P+q}, v{S+2*q}, v{S+2*q+1}"]
        B += ["s_nop 0", f"v_add_f32 v{VL}, v{VL}, v{S+30}", f"v_add_f32 v29, v29, v{S+31}", f"v_cvt_pk_bf16_f32 v{P+15}, v{S+30}, v{S+31}", f"v_add_f32 v{VL}, v{VL}, v29"]
        return A, A2, B
    def mask(S):
        a("v_mov_b32 v24, 0xf149f2ca")
        for kb in range(2):
            for r in range(16):
                c = kb*32 + (r//4)*8 + r % 4
                a(f"v_cmp_gt_i32 vcc, {c}, v{VTHR}\ns_nop 1\nv_cndmask_b32 v{S+kb*16+r}, v{S+kb*16+r}, v24, vcc")
    def top():
        a(f"""
        s_waitcnt vmcnt(0)
        s_barrier
        s_add_u32 s3, s31, 1
        s_lshl_b32 s33, s3, 15
        s_sub_u32 s38, s30, s3
        s_add_u32 s3, s31, 2
        s_lshl_b32 s32, s3, 15
        s_lshl_b32 s39, s31, 15
        s_cmp_eq_u32 s38, 0
        """)
    def publish(force_sel):
        l = a.label("pub")
        a(f"s_or_b32 s3, s26, s36\ns_cmp_lg_u32 s3, 0\ns_cbranch_scc1 {l}")
        if FORCE: a(f"s_cmp_{'eq' if force_sel == 0 else 'lg'}_u32 s25, 0\ns_cbranch_scc1 {l}")
        a(f"s_mov_b64 exec, 1\nbuffer_atomic_add v245, v247, s[64:67], s81 offen sc0\ns_mov_b64 exec, -1\n{l}:")
    def check():
        if FORCE: publish(1)
        l = a.label("chk")
        a(f"s_or_b32 s3, s26, s36\ns_cmp_lg_u32 s3, 0\ns_cbranch_scc1 {l}")
        a(f"s_mov_b64 exec, 1\nbuffer_atomic_or v246, v247, s[64:67], s81 offen sc0\ns_mov_b64 exec, -1\n{l}:")
    a("L_k2_pass:")
    a(f"""
    s_sub_u32 s29, 15, s25
    s_cmp_eq_u32 s36, 0
    s_cselect_b32 s29, s29, s25
    s_add_u32 s30, s29, 1
    s_lshl_b32 s3, s36, 15
    s_lshl_b32 s37, s28, 13
    s_add_u32 s3, s3, s37
    s_add_u32 s3, s3, 98304
    v_lshlrev_b32 v5, 4, v2
    v_add_u32 v5, s3, v5
    """)
    for s in range(8): a(f"ds_read_b128 {vr(Q+s*4,4)}, v5 offset:{s*1024}")
    dma(12, "0", VB[0])
    a(f"v_mov_b32 v{VM}, 0xe0ad78ec\nv_mov_b32 v{VL}, 0")
    for i in range(64): a(f"v_mov_b32 v{O+i}, 0")
    lk = a.label("nok1"); lk2 = a.label("nok1b")
    a(f"s_cmp_lt_u32 s30, 2\ns_cbranch_scc1 {lk}\ns_mov_b32 s32, 32768")
    dma(8, "s32", KB[1])
    a(f"s_waitcnt vmcnt(8)\ns_branch {lk2}\n{lk}:\ns_waitcnt vmcnt(4)\n{lk2}:")
    a("s_mov_b32 s31, 0\ns_waitcnt lgkmcnt(0)\ns_barrier")
    publish(0)
    pre(QKI, 0, 0)
    MM(QKI, 0, 0, None, False)
    a("s_cmp_lg_u32 s27, 0\ns_cbranch_scc1 L_k2_g1loop")
    a("L_k2_loop:")
    def k0pf():
        l = a.label("k0pf")
        a(f"s_cmp_lg_u32 s36, 0\ns_cbranch_scc1 {l}")
        dma(8, "0", KB[0])
        a(f"{l}:")
    def mkfill(A, A2, B):
        fill = [[] for _ in range(16)]
        fill[0] = A[8:12]; fill[1] = A[12:] + [A2]
        per = (len(B) + 13) // 14
        for i in range(14): fill[2+i] = B[i*per:(i+1)*per]
        return fill
    for par in range(2):
        top()
        a(f"s_cbranch_scc1 L_k2_tail{par}")
        stamp()
        items = QKI + PVI
        pre(items, par, par ^ 1)
        A, A2, B = SM_parts(SS[par])
        for x in A[:8]: a(x)
        MM(items, par, par ^ 1, mkfill(A, A2, B))
        a("s_add_u32 s31, s31, 1")
        stamp()
    a("s_branch L_k2_loop")
    for par in range(2):
        a(f"L_k2_tail{par}:")
        pre(PVI, par, par ^ 1)
        check()
        k0pf()
        a("s_nop 7")
        mask(SS[par])
        A, A2, B = SM_parts(SS[par])
        for x in A: a(x)
        a(A2)
        for x in B: a(x)
        a("s_nop 1")
        MM(PVI, par, par ^ 1, None, False)
        a("s_barrier\ns_branch L_k2_merge")
    a("L_k2_g1first:")
    pre(QKI, 1, 1)
    for j in range(4): dpiece(8, "s32", KB[0], j, 2)
    a("s_branch L_k2_g1qk0")
    a("L_k2_g1loop:")
    for par in range(2):
        top()
        a(f"s_cbranch_scc1 L_k2_g1tail{par}")
        stamp()
        if par == 0: a("s_cmp_eq_u32 s31, 0\ns_cbranch_scc1 L_k2_g1first")
        items = PVI + QKI
        pre(items, par ^ 1, par ^ 1)
        A, A2, B = SM_parts(SS[par])
        MM(items, par ^ 1, par ^ 1, mkfill(A, A2, B), True, True, f"L_k2_g1qk{par}", A[:8])
        a("s_add_u32 s31, s31, 1")
        stamp()
    a("s_branch L_k2_g1loop")
    for par in range(2):
        a(f"L_k2_g1tail{par}:")
        for j in range(4): dpiece(12, "s39", VB[par], j, 0)
        k0pf()
        if par == 0: a("s_cmp_eq_u32 s31, 0\ns_cbranch_scc1 L_k2_g1t0")
        pre(PVI, par ^ 1, par ^ 1)
        MM(PVI, par ^ 1, par ^ 1, None, False)
        if par == 0: a("L_k2_g1t0:")
        a("s_nop 7")
        mask(SS[par])
        A, A2, B = SM_parts(SS[par])
        for x in A: a(x)
        a(A2)
        for x in B: a(x)
        a("s_waitcnt vmcnt(0)\ns_barrier")
        pre(PVI, par, par ^ 1)
        MM(PVI, par, par ^ 1, None, False)
        if par == 0: a("s_branch L_k2_merge")
    a("L_k2_merge:")
    S = SS[0]
    ob_pre(a)
    a(f"""
    s_nop 15
    v_mov_b32 v25, v{VL}
    s_nop 1
    v_permlane32_swap_b32 v{VL}, v25
    s_nop 1
    v_add_f32 v{VL}, v{VL}, v25
    s_lshl_b32 s3, s26, 13
    s_add_u32 s3, s3, 65536
    v_lshlrev_b32 v5, 4, v2
    v_add_u32 v5, s3, v5
    s_lshl_b32 s3, s26, 9
    v_lshlrev_b32 v6, 2, v2
    v_add_u32 v6, s3, v6
    s_xor_b32 s37, s26, 4
    s_barrier
    ds_write_b32 v6, v{VM} offset:32768
    ds_write_b32 v6, v{VL} offset:33024
    s_or_b32 s3, s26, s36
    s_cmp_lg_u32 s3, 0
    s_cbranch_scc1 L_k2_nofl
    s_waitcnt vmcnt(0)
    v_and_b32 v24, 0xff, v245
    v_and_b32 v25, 0xff00, v245
    v_cmp_eq_u32 vcc, 7, v24
    v_and_b32 v24, 0xff, v246
    v_cndmask_b32 v25, 0, v25, vcc
    v_cmp_eq_u32 vcc, 8, v24
    v_or_b32 v24, 1, v25
    s_nop 0
    v_cndmask_b32 v25, v25, v24, vcc
    s_mov_b64 exec, 1
    ds_write_b32 v247, v25 offset:36864
    s_mov_b64 exec, -1
    L_k2_nofl:
    s_cmp_eq_u32 s27, 0
    s_cbranch_scc1 L_k2_m0
    """)
    def merge(g):
        lw = a.label("mw")
        keep = O + (0 if g == 0 else 32); send = O + (32 if g == 0 else 0)
        for q in range(8): a(f"ds_write_b128 v5, {vr(send+q*4,4)} offset:{q*1024}")
        a(f"""
        v_xor_b32 v5, 0x8000, v5
        v_xor_b32 v6, 0x800, v6
        s_waitcnt lgkmcnt(0)
        s_barrier
        ds_read_b32 v30, v247 offset:36864
        ds_read_b32 v24, v6 offset:32768
        ds_read_b32 v25, v6 offset:33024
        """)
        for q in range(8): a(f"ds_read_b128 {vr(S+q*4,4)}, v5 offset:{q*1024}")
        a(f"""
        s_waitcnt lgkmcnt(8)
        v_max_f32 v26, v{VM}, v24
        v_sub_f32 v27, v{VM}, v26
        v_sub_f32 v28, v24, v26
        v_exp_f32 v27, v27
        v_exp_f32 v28, v28
        s_nop 0
        v_mul_f32 v29, v27, v{VL}
        v_fma_f32 v29, v28, v25, v29
        v_rcp_f32 v29, v29
        s_nop 0
        v_mul_f32 v27, v27, v29
        v_mul_f32 v28, v28, v29
        s_lshl_b32 s3, s29, 2
        s_add_u32 s3, s3, s28
        s_mul_i32 s3, s3, {36*8192}
        s_lshl_b32 s37, s24, 13
        s_add_u32 s3, s3, s37
        s_add_u32 s3, s3, {g*4096}
        v_lshlrev_b32 v5, 4, v2
        s_waitcnt lgkmcnt(0)
        v_readfirstlane_b32 s37, v30
        s_cmp_eq_u32 s36, 0
        s_cselect_b32 s80, s37, s80
        s_cbranch_scc1 {lw}
        s_waitcnt vmcnt(0)
        {lw}:
        """)
        for i in range(32):
            a(f"v_mul_f32 v{keep+i}, v27, v{keep+i}\nv_fma_f32 v{keep+i}, v28, v{S+i}, v{keep+i}")
        for q in range(4):
            for p in range(4):
                a(f"v_cvt_pk_bf16_f32 v{P+q*4+p}, v{keep+q*8+2*p}, v{keep+q*8+2*p+1}")
            a(f"buffer_store_dwordx4 {vr(P+q*4,4)}, v5, s[20:23], s3 offen offset:{q*1024}")
    merge(1)
    a("s_branch L_k2_mdone\nL_k2_m0:")
    merge(0)
    a("L_k2_mdone:")
    ob_post(a)
    if INSTR:
        a(f"""
        s_cmp_lg_u32 s36, 0
        s_cbranch_scc1 L_nodump
        s_lshl_b32 s3, s2, 3
        s_add_u32 s3, s3, s26
        s_lshl_b32 s3, s3, 8
        v_lshlrev_b32 v5, 2, v2
        v_add_u32 v5, s3, v5
        s_add_u32 s64, s4, {hex(100<<20)}
        s_addc_u32 s65, s5, 0
        s_mov_b32 s66, 0x1000000
        s_mov_b32 s67, 0x00020000
        buffer_store_dword v244, v5, s[64:67], 0 offen
        L_nodump:
        """)
    a("""
    s_barrier
    s_add_u32 s36, s36, 1
    s_cmp_lt_u32 s36, 2
    s_cbranch_scc1 L_k2_pass
    """)
    a("L_k2_end:\ns_endpgm")
    return a.text()
```

```python
from common import *
from gemm import *
import os
NWG1 = 256
def pf(a):
    if os.environ.get("NOPF") == "1": return
    l = a.label("pf")
    a(f"""
    s_lshl_b32 s70, s2, 3
    s_add_u32 s70, s70, s42
    s_cmp_ge_u32 s70, 1920
    s_cbranch_scc1 {l}
    s_sub_u32 s71, s70, 512
    s_mov_b32 s74, 0x400000
    s_cmp_lt_u32 s70, 512
    s_cselect_b32 s72, s64, s66
    s_cselect_b32 s73, s65, s67
    s_cselect_b32 s74, 0x200000, s74
    s_cselect_b32 s71, s70, s71
    s_sub_u32 s3, s70, 1536
    s_cmp_ge_u32 s70, 1536
    s_cselect_b32 s72, s68, s72
    s_cselect_b32 s73, s69, s73
    s_cselect_b32 s74, 0x180000, s74
    s_cselect_b32 s71, s3, s71
    s_mov_b32 s75, 0x00020000
    s_lshl_b32 s71, s71, 12
    v_lshlrev_b32 v6, 6, v2
    buffer_load_dword v236, v6, s[72:75], s71 offen
    {l}:
    """)
def gen_k1():
    a = Asm()
    ACC = 64; XF = 192; WF = 224
    a(f"""
    s_cmp_ge_u32 s2, {NWG1}
    s_cbranch_scc1 L_k1_end
    s_load_dwordx8 s[4:11], s[0:1], 8
    s_load_dwordx2 s[20:21], s[0:1], 104
    s_load_dwordx2 s[64:65], s[0:1], 0
    s_load_dwordx2 s[66:67], s[0:1], 16
    s_load_dwordx2 s[68:69], s[0:1], 56
    s_and_b32 s40, s2, 7
    s_lshl_b32 s40, s40, 2
    s_bfe_u32 s3, s2, 0x20003
    s_add_u32 s40, s40, s3
    s_lshr_b32 s41, s2, 5
    v_lshrrev_b32 v1, 6, v0
    s_nop 0
    v_readfirstlane_b32 s42, v1
    v_and_b32 v2, 63, v0
    s_lshr_b32 s45, s40, 4
    s_and_b32 s44, s40, 15
    s_lshl_b32 s44, s44, 9
    s_lshr_b32 s48, s42, 2
    s_and_b32 s49, s42, 3
    s_lshl_b32 s46, s42, 5
    s_lshl_b32 s47, s41, 8
    s_add_u32 s46, s46, s47
    s_lshl_b32 s47, s48, 7
    s_waitcnt lgkmcnt(0)
    s_mov_b32 s24, s4
    s_mov_b32 s25, s5
    s_mov_b32 s26, 0x200000
    s_mov_b32 s27, 0x00020000
    s_cmp_eq_u32 s45, 0
    s_cselect_b32 s28, s8, s10
    s_cselect_b32 s29, s9, s11
    s_mov_b32 s30, 0x400000
    s_mov_b32 s31, 0x00020000
    s_mov_b32 s32, s20
    s_mov_b32 s33, s21
    s_mov_b32 s34, 0x10000000
    s_mov_b32 s35, 0x00020000
    s_or_b32 s3, s2, s42
    s_cmp_lg_u32 s3, 0
    s_cbranch_scc1 L_k1_nz
    v_lshlrev_b32 v5, 8, v2
    v_mov_b32 v6, 0
    s_mov_b32 s3, {hex(WS_CNT)}
    buffer_store_dword v6, v5, s[32:35], s3 offen
    L_k1_nz:
    s_mov_b32 s52, {8192*32}
    """)
    gemm_setup(a, "s46", "s47")
    a("""
    s_lshr_b32 s46, s49, 1
    s_lshl_b32 s46, s46, 13
    v_add_u32 v4, s46, v4
    s_and_b32 s46, s49, 1
    s_lshl_b32 s46, s46, 1
    """)
    for nb in range(2):
        a(f"s_add_u32 s47, s46, {nb}\nv_xor_b32 v5, s47, v3\nv_lshl_add_u32 v{RW+nb}, v5, 6, v4")
    a("""
    v_lshrrev_b32 v4, 4, v2
    v_and_b32 v5, 15, v2
    v_lshlrev_b32 v6, 2, v4
    v_xor_b32 v5, v5, v6
    v_lshlrev_b32 v5, 4, v5
    s_lshl_b32 s46, s48, 8
    s_add_u32 s46, s46, s44
    v_add_u32 v5, s46, v5
    s_lshl_b32 s46, s49, 3
    v_add_u32 v4, s46, v4
    """)
    for i in range(2):
        a(f"v_add_u32 v6, {4*i}, v4\nv_lshl_add_u32 v{VOW+i}, v6, 13, v5")
    gemm_prologue(a)
    a("""
    s_and_b32 s57, s40, 15
    s_lshl_b32 s57, s57, 1
    s_lshr_b32 s46, s49, 1
    s_add_u32 s57, s57, s46
    s_and_b32 s49, s49, 1
    s_cmp_eq_u32 s45, 1
    s_cbranch_scc1 L_k1_vtype
    """)
    gemm_core(a, 4, [(0, 0), (1, 0)], ACC, XF, WF, False)
    pf(a)
    a(f"""
    s_lshl_b32 s46, s57, 19
    s_add_u32 s46, s46, {hex(WS_K)}
    s_lshl_b32 s47, s41, 16
    s_add_u32 s46, s46, s47
    s_lshl_b32 s47, s48, 15
    s_add_u32 s46, s46, s47
    s_lshl_b32 s47, s49, 12
    s_add_u32 s46, s46, s47
    v_lshlrev_b32 v5, 4, v2
    """)
    for mb in range(4):
        for nb in range(2):
            for hf in range(2):
                b = ACC + (mb*2+nb)*16 + hf*8
                t = XF + ((mb*4+nb*2+hf) & 7)*4
                for p in range(4):
                    a(f"v_cvt_pk_bf16_f32 v{t+p}, v{b+2*p}, v{b+2*p+1}")
                a(f"buffer_store_dwordx4 {vr(t,4)}, v5, s[32:35], s46 offen offset:{(nb*2+hf)*1024}")
        a("s_add_u32 s46, s46, 8192")
    a("s_endpgm")
    a("L_k1_vtype:")
    gemm_core(a, 4, [(0, 0), (1, 0)], ACC, XF, WF, True)
    pf(a)
    a(f"""
    s_lshl_b32 s46, s57, 19
    s_add_u32 s46, s46, {hex(WS_V)}
    s_lshl_b32 s47, s41, 16
    s_add_u32 s46, s46, s47
    s_lshl_b32 s47, s48, 15
    s_add_u32 s46, s46, s47
    s_lshl_b32 s47, s49, 11
    s_add_u32 s46, s46, s47
    v_lshlrev_b32 v5, 4, v2
    """)
    for mb in range(4):
        for hf in range(2):
            for nb in range(2):
                b = ACC + (mb*2+nb)*16 + hf*8
                t = XF + ((mb*4+nb+hf*2) & 7)*4
                for p in range(4):
                    a(f"v_cvt_pk_bf16_f32 v{t+p}, v{b+2*p}, v{b+2*p+1}")
                a(f"buffer_store_dwordx4 {vr(t,4)}, v5, s[32:35], s46 offen offset:{nb*1024}")
            a("s_add_u32 s46, s46, 4096")
    a("L_k1_end:\ns_endpgm")
    return a.text()
```

```python
from common import *
from gemm import *
import k3
import struct, os
def f32bits(x): return struct.unpack("<I", struct.pack("<f", x))[0]
NWG2 = 256
O = 64; SS = [128, 160]; P = 192; Q = 208
FS = [36, 40, 44, 48, 52, 56, 60, 240]
KA = 8; VA = 16
VM = 20; VL = 21; VTHR = 22; VDMA = 23
KB = [0, 32768]; VB = [65536, 98304]
INSTR = os.environ.get("INSTR") == "1"
FORCE = os.environ.get("FORCE") == "1"
G0S = int(os.environ.get("G0S", "16"))
def qpro(a):
    ACC = 64; XF = 160; WF = 168
    a(f"""
    s_load_dwordx2 s[4:5], s[0:1], 104
    s_load_dwordx2 s[24:25], s[0:1], 0
    s_load_dwordx2 s[28:29], s[0:1], 16
    s_load_dwordx2 s[6:7], s[0:1], 56
    s_load_dwordx2 s[8:9], s[0:1], 64
    s_and_b32 s40, s2, 7
    s_lshl_b32 s40, s40, 2
    s_bfe_u32 s3, s2, 0x20003
    s_add_u32 s40, s40, s3
    s_lshr_b32 s41, s2, 5
    v_lshrrev_b32 v1, 6, v0
    s_nop 0
    v_readfirstlane_b32 s42, v1
    v_and_b32 v2, 63, v0
    s_lshr_b32 s48, s42, 2
    s_and_b32 s49, s42, 3
    s_sub_u32 s46, 15, s41
    s_cmp_eq_u32 s48, 0
    s_cselect_b32 s46, s46, s41
    s_lshl_b32 s46, s46, 7
    s_lshl_b32 s47, s49, 5
    s_add_u32 s43, s46, s47
    s_lshl_b32 s47, s42, 5
    s_waitcnt lgkmcnt(0)
    s_mov_b32 s26, 0x200000
    s_mov_b32 s27, 0x00020000
    s_mov_b32 s30, 0x180000
    s_movk_i32 s44, 3072
    s_cmp_eq_u32 s48, 0
    s_cselect_b32 s28, s28, s6
    s_cselect_b32 s29, s29, s7
    s_cselect_b32 s30, 0x400000, s30
    s_cselect_b32 s44, 8192, s44
    s_mov_b32 s31, 0x00020000
    s_mov_b32 s32, s4
    s_mov_b32 s33, s5
    s_mov_b32 s34, 0x10000000
    s_mov_b32 s35, 0x00020000
    s_lshl_b32 s52, s44, 5
    """)
    gemm_setup(a, "s43", "s47")
    for b in range(4):
        a(f"v_xor_b32 v5, {b}, v3\nv_lshl_add_u32 v{RW+b}, v5, 6, v4")
    a(f"""
    v_lshrrev_b32 v5, 5, v2
    v_lshl_add_u32 v5, v5, 3, v3
    v_lshlrev_b32 v5, 7, v5
    v_and_b32 v6, 3, v2
    v_lshl_add_u32 v5, v6, 3, v5
    v_bfe_u32 v6, v2, 4, 1
    v_lshl_add_u32 v5, v6, 5, v5
    v_add_u32 v5, {WBASE + 8192}, v5
    v_lshrrev_b32 v6, 1, v3
    v_lshl_add_u32 v{RW+4}, v6, 6, v5
    v_xor_b32 v{RW+5}, 64, v{RW+4}
    s_cmp_eq_u32 s48, 0
    s_cbranch_scc1 L_k2_wq
    v_lshrrev_b32 v4, 3, v2
    v_bfe_u32 v6, v2, 4, 1
    v_lshlrev_b32 v6, 2, v6
    v_and_b32 v5, 7, v2
    v_xor_b32 v5, v5, v6
    v_lshrrev_b32 v6, 1, v5
    v_min_u32 v6, 2, v6
    v_lshlrev_b32 v6, 10, v6
    v_and_b32 v7, 1, v5
    v_lshl_add_u32 v6, v7, 4, v6
    s_lshl_b32 s46, s40, 5
    v_add_u32 v5, s46, v6
    s_lshl_b32 s46, s49, 3
    v_add_u32 v4, s46, v4
    v_mul_lo_u32 v6, v4, s44
    v_add_u32 v{VOW}, v6, v5
    v_mov_b32 v{VOW+1}, v{VOW}
    s_lshl_b32 s54, s49, 10
    s_add_u32 s54, s54, 8192
    s_branch L_k2_wdone
    L_k2_wq:
    v_lshrrev_b32 v4, 4, v2
    v_and_b32 v5, 15, v2
    v_lshlrev_b32 v6, 2, v4
    v_xor_b32 v5, v5, v6
    v_lshlrev_b32 v5, 4, v5
    s_lshl_b32 s46, s40, 8
    v_add_u32 v5, s46, v5
    s_lshl_b32 s46, s49, 3
    v_add_u32 v4, s46, v4
    """)
    for i in range(2):
        a(f"v_add_u32 v6, {4*i}, v4\nv_mul_lo_u32 v6, v6, s44\nv_add_u32 v{VOW+i}, v6, v5")
    a("L_k2_wdone:")
    srd(a, 8, "s8", "s9", 16384)
    a("""
    v_and_b32 v5, 15, v2
    v_lshlrev_b32 v5, 1, v5
    v_lshrrev_b32 v4, 5, v2
    v_lshl_add_u32 v5, v4, 7, v5
    s_lshl_b32 s3, s40, 9
    v_add_u32 v5, s3, v5
    """)
    for j in range(8):
        a(f"buffer_load_ushort v{40+j}, v5, s[8:11], 0 offen offset:{((j//4)*8 + j%4)*32}")
    gemm_prologue(a, True)
    gemm_core(a, 1, [(0,0),(1,0),(2,0),(3,0),(4,0,2048,512),(5,0,2048,512)], ACC, XF, WF, False, None, True)
    a(f"""
    v_and_b32 v3, 31, v2
    v_lshrrev_b32 v4, 5, v2
    s_lshl_b32 s46, s42, 13
    s_add_u32 s46, s46, 98304
    v_lshlrev_b32 v5, 4, v2
    v_add_u32 v5, s46, v5
    s_lshl_b32 s46, s40, 19
    s_add_u32 s46, s46, {hex(WS_K)}
    s_add_u32 s12, s4, s46
    s_addc_u32 s13, s5, 0
    s_mov_b32 s14, 0x80000
    s_mov_b32 s15, 0x00020000
    v_lshlrev_b32 v6, 4, v2
    v_add_u32 v6, s53, v6
    s_mov_b32 m0, s53
    s_barrier
    """)
    for j in range(4): a(f"buffer_load_dwordx4 v6, s[12:15], 0 offen offset:{j*1024} lds")
    for n in range(8, 11):
        nb, hf = n // 2, n % 2
        b = ACC + nb*16 + hf*8; t = XF + (n-8)*4
        for p in range(4): a(f"v_cvt_pk_bf16_f32 v{t+p}, v{b+2*p}, v{b+2*p+1}")
    W = 28; TK = 128; TQ = 144; AF = 48; BF = 52; KACC = 216
    a("v_cmp_lt_u32 vcc, 15, v3\nv_mov_b32 v6, 0\nv_mov_b32 v7, 0x80008000\ns_nop 0\nv_cndmask_b32 v6, v6, v7, vcc")
    for p in range(4):
        a(f"v_lshl_or_b32 v{W+p}, v{41+2*p}, 16, v{40+2*p}\nv_xor_b32 v{W+p}, v{W+p}, v6")
    a(f"""
    s_nop 1
    v_mfma_f32_32x32x16_bf16 {vr(TK,16)}, {vr(W,4)}, {vr(XF+4,4)}, 0
    """)
    for n in range(8):
        nb, hf = n // 2, n % 2
        b = ACC + nb*16 + hf*8; t = Q + n*4
        for p in range(4): a(f"v_cvt_pk_bf16_f32 v{t+p}, v{b+2*p}, v{b+2*p+1}")
        a(f"ds_write_b128 v5, {vr(t,4)} offset:{n*1024}")
    a(f"""
    s_mov_b32 s56, s40
    s_mov_b32 s40, {k3.LOG2E}
    s_lshl_b32 s28, s42, 12
    s_add_u32 s28, s28, 32768
    v_lshlrev_b32 v33, 6, v3
    v_add_u32 v33, s28, v33
    v_lshl_add_u32 v34, v4, 3, v33
    v_lshl_add_u32 v33, v4, 4, v33
    v_bfe_u32 v7, v2, 2, 2
    v_lshl_add_u32 v6, v4, 3, v7
    v_lshlrev_b32 v6, 6, v6
    v_and_b32 v7, 3, v2
    v_lshl_add_u32 v6, v7, 3, v6
    v_bfe_u32 v7, v2, 4, 1
    v_lshl_add_u32 v6, v7, 5, v6
    v_add_u32 v35, s28, v6
    v_mov_b32 v40, 0
    v_mov_b32 v41, 0
    v_mov_b32 v42, 0
    v_mov_b32 v43, 0
    v_mov_b32 v7, 0x3f80
    v_cmp_eq_u32 vcc, 0, v4
    s_nop 1
    v_cndmask_b32 v40, v40, v7, vcc
    ds_write_b128 v33, v[40:43] offset:{2048+32}
    ds_write_b128 v33, {vr(XF+8,4)} offset:2048
    """)
    k3.rnd16(a, TK, 44)
    k3.softmax16(a, TK, 44)
    for p in range(8): a(f"v_cvt_pk_bf16_f32 v{64+p}, v{TK+2*p}, v{TK+2*p+1}")
    for q in range(4): a(f"ds_write_b64 v34, {vr(64+2*q,2)} offset:{q*16}")
    a("s_waitcnt lgkmcnt(0)")
    for ks in range(2):
        a(f"""
        ds_read_b64_tr_b16 {vr(AF+ks*8,2)}, v35 offset:{ks*1024}
        ds_read_b64_tr_b16 {vr(AF+ks*8+2,2)}, v35 offset:{ks*1024+256}
        ds_read_b64_tr_b16 {vr(BF+ks*8,2)}, v35 offset:{2048+ks*1024}
        ds_read_b64_tr_b16 {vr(BF+ks*8+2,2)}, v35 offset:{2048+ks*1024+256}
        """)
    a("s_waitcnt lgkmcnt(0)")
    for ks in range(2):
        a(f"v_mfma_f32_32x32x16_bf16 {vr(KACC,16)}, {vr(AF+ks*8,4)}, {vr(BF+ks*8,4)}, {'0' if ks==0 else vr(KACC,16)}")
    a(f"""
    s_lshl_b32 s46, s56, 11
    s_add_u32 s46, s46, s43
    v_add_u32 v6, s46, v3
    v_lshlrev_b32 v6, 5, v6
    v_lshl_add_u32 v6, v4, 4, v6
    s_mov_b32 s47, {hex(WS_QKVB)}
    buffer_store_dwordx4 {vr(XF,4)}, v6, s[32:35], s47 offen sc1
    s_nop 7
    s_nop 7
    v_lshlrev_b32 v5, 4, v2
    v_add_u32 v6, s28, v5
    """)
    for q in range(4): a(f"ds_write_b128 v6, {vr(KACC+q*4,4)} offset:{32768+q*1024}")
    a(f"""
    s_waitcnt lgkmcnt(0)
    s_barrier
    s_cmp_ge_u32 s42, 4
    s_cbranch_scc1 L_k2_nored
    s_lshl_b32 s3, s42, 10
    v_add_u32 v5, s3, v5
    v_add_u32 v7, 0x8000, v5
    """)
    for w in range(8): a(f"ds_read_b128 {vr(64+w*4,4)}, v7 offset:{32768+w*4096}")
    a("s_waitcnt lgkmcnt(0)")
    for i in range(4):
        a(f"""v_add_f32 v{64+i}, v{64+i}, v{68+i}
        v_add_f32 v{72+i}, v{72+i}, v{76+i}
        v_add_f32 v{80+i}, v{80+i}, v{84+i}
        v_add_f32 v{88+i}, v{88+i}, v{92+i}
        v_add_f32 v{64+i}, v{64+i}, v{72+i}
        v_add_f32 v{80+i}, v{80+i}, v{88+i}
        v_add_f32 v{64+i}, v{64+i}, v{80+i}""")
    a(f"""
    s_lshl_b32 s3, s56, 3
    s_add_u32 s3, s3, s41
    s_lshl_b32 s3, s3, 12
    s_add_u32 s3, s3, {hex(WS_KVP)}
    buffer_store_dwordx4 v[64:67], v5, s[32:35], s3 offen sc1
    L_k2_nored:
    s_barrier
    """)
PART = 160; QB = 176; WPH = 180; GX = 208; GW = 212
def ob_qload(a):
    a(f"""
    s_lshl_b32 s3, s24, 11
    s_add_u32 s3, s3, s82
    v_add_u32 v6, s3, v3
    v_lshlrev_b32 v6, 5, v6
    v_lshl_add_u32 v6, v4, 4, v6
    s_mov_b32 s3, {hex(WS_QKVB)}
    buffer_load_dwordx4 {vr(QB,4)}, v6, s[64:67], s3 offen sc1
    """)
def ob_tok(a, j):
    a(f"""
    s_sub_u32 s82, 15, {j}
    s_cmp_eq_u32 s27, 0
    s_cselect_b32 s82, s82, {j}
    s_lshl_b32 s82, s82, 7
    s_lshl_b32 s3, s28, 5
    s_add_u32 s82, s82, s3
    """)
def ob_pre(a):
    a(f"""
    s_cmp_eq_u32 s36, 0
    s_cbranch_scc1 L_k2_nopf
    v_and_b32 v3, 31, v2
    v_lshrrev_b32 v4, 5, v2
    s_lshl_b32 s83, s2, 3
    s_add_u32 s83, s83, s26
    s_lshl_b32 s3, s83, 10
    v_lshlrev_b32 v6, 4, v2
    buffer_load_dwordx4 {vr(GX,4)}, v6, s[72:75], s3 offen
    buffer_load_dwordx4 {vr(GW,4)}, v6, s[76:79], 0 offen
    s_bitcmp0_b32 s80, 0
    s_cbranch_scc1 L_k2_nopf
    """)
    ob_tok(a, "s25")
    ob_qload(a)
    a("""
    v_and_b32 v5, 15, v3
    v_lshlrev_b32 v5, 1, v5
    v_lshl_add_u32 v5, v4, 7, v5
    s_lshl_b32 s3, s24, 9
    v_add_u32 v5, s3, v5
    """)
    for j in range(8):
        a(f"buffer_load_ushort v{WPH+j}, v5, s[68:71], 0 offen offset:{((j//4)*8 + j%4)*32}")
    a(f"""
    s_lshl_b32 s3, s24, 15
    s_lshl_b32 s37, s27, 14
    s_add_u32 s3, s3, s37
    s_lshl_b32 s37, s28, 10
    s_add_u32 s3, s3, s37
    s_add_u32 s3, s3, {hex(WS_KVP)}
    v_lshlrev_b32 v5, 4, v2
    v_cmp_gt_u32 vcc, 17, v3
    s_nop 1
    s_mov_b64 exec, vcc
    """)
    for c in range(4):
        a(f"buffer_load_dwordx4 {vr(PART+c*4,4)}, v5, s[64:67], s3 offen sc1\ns_add_u32 s3, s3, 4096")
    a("s_mov_b64 exec, -1\nL_k2_nopf:")
def ob_post(a):
    W = 36; T = 40; PF = 48; KVF = 56; D2 = 128; EX = 64
    a(f"""
    s_cmp_eq_u32 s36, 0
    s_cbranch_scc1 L_k2_obskip
    s_mov_b32 s40, {k3.LOG2E}
    s_bitcmp0_b32 s80, 0
    s_cbranch_scc1 L_k2_gate
    """)
    for r in range(4):
        a(f"""v_add_f32 v{PART+r}, v{PART+r}, v{PART+4+r}
        v_add_f32 v{PART+8+r}, v{PART+8+r}, v{PART+12+r}
        v_add_f32 v{PART+r}, v{PART+r}, v{PART+8+r}""")
    a(f"""
    v_lshlrev_b32 v5, 4, v2
    s_lshl_b32 s3, s26, 10
    v_add_u32 v6, s3, v5
    ds_write_b128 v6, {vr(PART,4)}
    v_cmp_lt_u32 vcc, 15, v3
    v_mov_b32 v6, 0
    v_mov_b32 v7, 0x80008000
    s_nop 0
    v_cndmask_b32 v6, v6, v7, vcc
    """)
    for p in range(4):
        a(f"v_lshl_or_b32 v{W+p}, v{WPH+1+2*p}, 16, v{WPH+2*p}\nv_xor_b32 v{W+p}, v{W+p}, v6")
    a("s_waitcnt lgkmcnt(0)\ns_barrier")
    for w in range(8): a(f"ds_read_b128 {vr(EX+w*4,4)}, v5 offset:{w*1024}")
    a("L_k2_obloop:")
    a(f"""
    v_mfma_f32_32x32x16_bf16 {vr(D2,16)}, {vr(W,4)}, {vr(QB,4)}, 0
    s_lshr_b32 s3, s82, 5
    s_mul_i32 s3, s3, {36*8192}
    s_lshl_b32 s37, s24, 10
    s_add_u32 s3, s3, s37
    s_add_u32 s84, s3, {32*8192}
    s_waitcnt lgkmcnt(0)
    """)
    for r in range(16): a(f"v_add_f32 v{EX+32+r}, v{EX+r}, v{EX+16+r}")
    for p in range(8): a(f"v_cvt_pk_bf16_f32 v{KVF+p}, v{EX+32+2*p}, v{EX+33+2*p}")
    k3.rnd16(a, D2, T)
    k3.softmax16(a, D2, T)
    for p in range(8): a(f"v_cvt_pk_bf16_f32 v{PF+p}, v{D2+2*p}, v{D2+2*p+1}")
    a(f"""
    s_nop 1
    v_mfma_f32_32x32x16_bf16 {vr(D2,16)}, {vr(KVF,4)}, {vr(PF,4)}, 0
    v_mfma_f32_32x32x16_bf16 {vr(D2,16)}, {vr(KVF+4,4)}, {vr(PF+4,4)}, {vr(D2,16)}
    s_nop 15
    s_nop 3
    v_mov_b32 v{T}, v{D2+8}
    v_mov_b32 v{T+1}, v{D2+8}
    s_nop 1
    v_permlane32_swap_b32 v{T}, v{T+1}
    s_nop 1
    v_cvt_pk_bf16_f32 v{T}, v{T}, v{T}
    v_and_b32 v{T}, 0xffff0000, v{T}
    v_add_f32 v{T}, 0x358637bd, v{T}
    v_cvt_pk_bf16_f32 v{T}, v{T}, v{T}
    v_and_b32 v{T}, 0xffff0000, v{T}
    v_rcp_f32 v{T}, v{T}
    """)
    for i in range(4):
        a(f"v_cvt_pk_bf16_f32 v{T+1}, v{D2+2*i}, v{D2+2*i+1}\nv_lshlrev_b32 v{D2+2*i}, 16, v{T+1}\nv_and_b32 v{D2+2*i+1}, 0xffff0000, v{T+1}")
    for i in range(8): a(f"v_mul_f32 v{D2+i}, v{D2+i}, v{T}")
    for p in range(4): a(f"v_cvt_pk_bf16_f32 v{T+4+p}, v{D2+2*p}, v{D2+2*p+1}")
    a(f"""
    buffer_store_dwordx4 {vr(T+4,4)}, v5, s[20:23], s84 offen
    s_lshr_b32 s3, s80, 8
    s_cmp_eq_u32 s3, 0
    s_cbranch_scc1 L_k2_gate
    s_ff1_i32_b32 s85, s3
    s_add_u32 s3, s85, 8
    s_bitset0_b32 s80, s3
    """)
    ob_tok(a, "s85")
    ob_qload(a)
    a("s_waitcnt vmcnt(0)\ns_branch L_k2_obloop\nL_k2_gate:\nv_mov_b32 v8, 0\nv_mov_b32 v9, 0")
    for i in range(4):
        a(f"""
        v_lshlrev_b32 v10, 16, v{GX+i}
        v_lshlrev_b32 v11, 16, v{GW+i}
        v_fmac_f32 v8, v10, v11
        v_and_b32 v10, 0xffff0000, v{GX+i}
        v_and_b32 v11, 0xffff0000, v{GW+i}
        v_fmac_f32 v9, v10, v11
        """)
    a("v_add_f32 v8, v8, v9")
    for off in (0x041F, 0x081F, 0x101F, 0x201F, 0x401F):
        a(f"ds_swizzle_b32 v9, v8 offset:{hex(off)}\ns_waitcnt lgkmcnt(0)\nv_add_f32 v8, v8, v9")
    a(f"""
    v_mov_b32 v9, v8
    s_nop 1
    v_permlane32_swap_b32 v8, v9
    s_nop 1
    v_add_f32 v8, v8, v9
    v_cvt_pk_bf16_f32 v8, v8, v8
    v_and_b32 v8, 0xffff0000, v8
    v_mul_f32 v8, s40, v8
    v_sub_f32 v8, 0, v8
    v_exp_f32 v8, v8
    s_nop 0
    v_add_f32 v8, 1.0, v8
    v_rcp_f32 v8, v8
    s_nop 0
    v_cvt_pk_bf16_f32 v8, v8, v8
    v_and_b32 v8, 0xffff0000, v8
    s_lshl_b32 s3, s83, 2
    s_add_u32 s3, s3, {hex(WS_G)}
    s_mov_b64 exec, 1
    buffer_store_dword v8, v247, s[64:67], s3 offen
    s_mov_b64 exec, -1
    L_k2_obskip:
    """)
def gen_k2():
    a = Asm()
    def stamp():
        if INSTR: a("s_memtime s[60:61]\ns_waitcnt lgkmcnt(0)\ns_and_b32 s59, s59, 63\ns_mov_b32 m0, s59\ns_nop 3\nv_writelane_b32 v244, s60, m0\ns_add_u32 s59, s59, 1")
    a(f"""
    s_cmp_ge_u32 s2, {NWG2}
    s_cbranch_scc1 L_k2_end
    """)
    qpro(a)
    a(f"""
    s_load_dwordx2 s[4:5], s[0:1], 104
    s_load_dwordx2 s[72:73], s[0:1], 0
    s_load_dwordx2 s[68:69], s[0:1], 64
    s_load_dwordx2 s[76:77], s[0:1], 80
    s_load_dwordx2 s[86:87], s[0:1], 40
    s_load_dwordx2 s[88:89], s[0:1], 72
    s_and_b32 s24, s2, 7
    s_lshl_b32 s24, s24, 2
    s_bfe_u32 s3, s2, 0x20003
    s_add_u32 s24, s24, s3
    s_lshr_b32 s25, s2, 5
    v_lshrrev_b32 v1, 6, v0
    s_nop 0
    v_readfirstlane_b32 s26, v1
    v_and_b32 v2, 63, v0
    s_lshr_b32 s27, s26, 2
    s_and_b32 s28, s26, 3
    s_lshl_b32 s34, s26, 12
    s_mov_b32 s35, {hex(f32bits(128**-0.5 * 1.4426950408889634))}
    s_lshl_b32 s3, s24, 19
    s_waitcnt lgkmcnt(0)
    s_add_u32 s6, s4, s3
    s_addc_u32 s7, s5, 0
    """)
    srd_ws(a, 8, 6, WS_K, 0x80000)
    srd_ws(a, 12, 6, WS_V, 0x80000)
    srd_ws(a, 16, 6, WS_Q, 0x80000)
    srd_ws(a, 20, 4, WS_CTXO, 2048*CTX_PITCH)
    srd(a, 64, "s4", "s5", 0x10000000)
    a(f"""
    s_movk_i32 s70, 16384
    s_mov_b32 s71, 0x00020000
    s_mov_b32 s74, 0x200000
    s_mov_b32 s75, 0x00020000
    s_movk_i32 s78, 1024
    s_mov_b32 s79, 0x00020000
    s_lshl_b32 s81, s24, 8
    s_add_u32 s81, s81, {hex(WS_CNT)}
    s_mov_b32 s80, 0
    v_mov_b32 v245, 1
    v_mov_b32 v247, 0
    s_add_u32 s3, s25, 8
    s_lshl_b32 s3, 1, s3
    v_mov_b32 v246, s3
    v_and_b32 v3, 31, v2
    v_lshrrev_b32 v4, 5, v2
    v_lshlrev_b32 v{VDMA}, 4, v2
    v_add_u32 v{VDMA}, s34, v{VDMA}
    s_lshl_b32 s3, s27, 14
    v_lshlrev_b32 v5, 4, v2
    v_add_u32 v{KA}, s3, v5
    v_add_u32 v{VA}, 0x10000, v{KA}
    s_lshl_b32 s3, s28, 5
    s_lshl_b32 s37, s27, 6
    s_sub_u32 s3, s3, s37
    v_lshlrev_b32 v5, 2, v4
    v_sub_u32 v5, v3, v5
    v_add_u32 v{VTHR}, s3, v5
    s_mov_b32 s36, 0
    s_mov_b32 s59, 0
    """)
    if INSTR: a("v_mov_b32 v244, 0")

    def dma(srdreg, soff, buf):
        a(f"s_add_u32 m0, s34, {buf}\ns_nop 0")
        for j in range(4):
            a(f"buffer_load_dwordx4 v{VDMA}, s[{srdreg}:{srdreg+3}], {soff} offen offset:{j*1024} lds")
    def dpiece(srdreg, soff, buf, j, need):
        if need:
            l = a.label("nd")
            a(f"s_cmp_lt_u32 s38, {need}\ns_cbranch_scc1 {l}")
        a(f"s_add_u32 m0, s34, {buf}\ns_nop 0\nbuffer_load_dwordx4 v{VDMA}, s[{srdreg}:{srdreg+3}], {soff} offen offset:{j*1024} lds")
        if need: a(f"{l}:")
    def rd_item(it, slot, parv, park):
        k, s, b = it
        if k == "pv": a(f"ds_read_b128 {vr(FS[slot],4)}, v{VA} offset:{VB[parv]-65536+s*4096+b*1024}")
        else: a(f"ds_read_b128 {vr(FS[slot],4)}, v{KA} offset:{KB[park]+b*8192+s*1024}")
    QKI = [("qk", s, kb) for s in range(8) for kb in range(2)]
    PVI = [("pv", s, db) for s in range(4) for db in range(4)]
    def pre(items, parv, park):
        for i in range(8): rd_item(items[i], i, parv, park)
    def MM(items, parv, park, fill=None, ld=True, g1=False, mid=None, pre_mid=None):
        n = len(items); SQ = SS[park]; qi = 0
        for i, it in enumerate(items):
            k, s, b = it
            if mid is not None and i == 16:
                a(f"{mid}:")
                for x in pre_mid: a(x)
            a(f"s_waitcnt lgkmcnt({min(7, n-1-i)})")
            if k == "pv":
                if fill is not None and s == 0 and b == 0 and not g1: a("s_nop 1")
                acc = vr(O+b*16, 16)
                a(f"v_mfma_f32_32x32x16_bf16 {acc}, {vr(FS[i%8],4)}, {vr(P+s*4,4)}, {acc}")
            else:
                acc = vr(SQ+b*16, 16)
                a(f"v_mfma_f32_32x32x16_bf16 {acc}, {vr(FS[i%8],4)}, {vr(Q+s*4,4)}, {'0' if s==0 else acc}")
            if i + 8 < n: rd_item(items[i+8], i % 8, parv, park)
            if k == "qk" and fill is not None:
                for x in fill[qi]: a(x)
                qi += 1
            i0 = i - (G0S if not g1 else 0)
            if ld and 0 <= i0 < 16 and i0 % 2 == 1:
                j = i0 // 2
                if j < 4: dpiece(12, "s39" if g1 else "s33", VB[parv ^ 1], j, 0)
                else: dpiece(8, "s32", KB[park ^ 1], j - 4, 2)
    def SM_parts(S):
        lr = a.label("noresc")
        A = [f"v_max3_f32 v24, v{S}, v{S+1}, v{S+2}", f"v_max3_f32 v25, v{S+16}, v{S+17}, v{S+18}"]
        for i in range(3, 15, 2):
            A += [f"v_max3_f32 v24, v24, v{S+i}, v{S+i+1}", f"v_max3_f32 v25, v25, v{S+16+i}, v{S+16+i+1}"]
        A2 = f"""v_max3_f32 v24, v24, v{S+15}, v25
        v_max_f32 v24, v24, v{S+31}
        v_mov_b32 v25, v24
        s_nop 1
        v_permlane32_swap_b32 v24, v25
        s_nop 1
        v_max_f32 v24, v24, v25
        v_mul_f32 v24, s35, v24
        v_max_f32 v25, v{VM}, v24
        v_sub_f32 v26, v25, v{VM}
        v_cmp_lt_f32 vcc, 0x41000000, v26
        s_cbranch_vccz {lr}
        v_sub_f32 v26, 0, v26
        v_exp_f32 v26, v26
        v_mov_b32 v{VM}, v25
        s_nop 0
        v_mov_b32 v27, v26
        v_mul_f32 v{VL}, v{VL}, v26
        """ + "\n".join(f"v_pk_mul_f32 {vr(O+i,2)}, {vr(O+i,2)}, v[26:27]" for i in range(0, 64, 2)) + f"\n{lr}:\nv_sub_f32 v28, 0, v{VM}"
        B = []
        for p in range(17):
            if p < 16:
                B += [f"v_fma_f32 v{S+2*p}, v{S+2*p}, s35, v28", f"v_fma_f32 v{S+2*p+1}, v{S+2*p+1}, s35, v28"]
            if p >= 1:
                q = p - 1
                B += [f"v_exp_f32 v{S+2*q}, v{S+2*q}", f"v_exp_f32 v{S+2*q+1}, v{S+2*q+1}"]
            if p >= 2:
                q = p - 2
                B += [f"v_add_f32 v{VL}, v{VL}, v{S+2*q}", f"v_add_f32 v29, v29, v{S+2*q+1}" if q else f"v_mov_b32 v29, v{S+1}",
                      f"v_cvt_pk_bf16_f32 v{P+q}, v{S+2*q}, v{S+2*q+1}"]
        B += ["s_nop 0", f"v_add_f32 v{VL}, v{VL}, v{S+30}", f"v_add_f32 v29, v29, v{S+31}", f"v_cvt_pk_bf16_f32 v{P+15}, v{S+30}, v{S+31}", f"v_add_f32 v{VL}, v{VL}, v29"]
        return A, A2, B
    def mask(S):
        a("v_mov_b32 v24, 0xf149f2ca")
        for kb in range(2):
            for r in range(16):
                c = kb*32 + (r//4)*8 + r % 4
                a(f"v_cmp_gt_i32 vcc, {c}, v{VTHR}\ns_nop 1\nv_cndmask_b32 v{S+kb*16+r}, v{S+kb*16+r}, v24, vcc")
    def top():
        a(f"""
        s_waitcnt vmcnt(0)
        s_barrier
        s_add_u32 s3, s31, 1
        s_lshl_b32 s33, s3, 15
        s_sub_u32 s38, s30, s3
        s_add_u32 s3, s31, 2
        s_lshl_b32 s32, s3, 15
        s_lshl_b32 s39, s31, 15
        s_cmp_eq_u32 s38, 0
        """)
    def publish(force_sel):
        l = a.label("pub")
        a(f"s_or_b32 s3, s26, s36\ns_cmp_lg_u32 s3, 0\ns_cbranch_scc1 {l}")
        if FORCE: a(f"s_cmp_{'eq' if force_sel == 0 else 'lg'}_u32 s25, 0\ns_cbranch_scc1 {l}")
        a(f"s_mov_b64 exec, 1\nbuffer_atomic_add v245, v247, s[64:67], s81 offen sc0\ns_mov_b64 exec, -1\n{l}:")
    def check():
        lp = a.label("wpf")
        if os.environ.get("NOPF") != "1": a(f"""
        s_cmp_lg_u32 s36, 0
        s_cbranch_scc1 {lp}
        s_lshl_b32 s83, s2, 2
        s_add_u32 s83, s83, s28
        s_cmp_ge_u32 s83, 576
        s_cbranch_scc1 {lp}
        s_sub_u32 s3, s83, 512
        s_mov_b32 s94, 0x400000
        s_cmp_lt_u32 s83, 512
        s_cselect_b32 s92, s86, s88
        s_cselect_b32 s93, s87, s89
        s_cselect_b32 s94, s94, 0x80000
        s_cselect_b32 s3, s83, s3
        s_mov_b32 s95, 0x00020000
        s_lshl_b32 s3, s3, 13
        v_lshlrev_b32 v244, 7, v2
        buffer_load_dword v244, v244, s[92:95], s3 offen
        {lp}:
        """)
        if FORCE: publish(1)
        l = a.label("chk")
        a(f"s_or_b32 s3, s26, s36\ns_cmp_lg_u32 s3, 0\ns_cbranch_scc1 {l}")
        a(f"s_mov_b64 exec, 1\nbuffer_atomic_or v246, v247, s[64:67], s81 offen sc0\ns_mov_b64 exec, -1\n{l}:")
    a("L_k2_pass:")
    a(f"""
    s_sub_u32 s29, 15, s25
    s_cmp_eq_u32 s36, 0
    s_cselect_b32 s29, s29, s25
    s_add_u32 s30, s29, 1
    s_lshl_b32 s3, s36, 15
    s_lshl_b32 s37, s28, 13
    s_add_u32 s3, s3, s37
    s_add_u32 s3, s3, 98304
    v_lshlrev_b32 v5, 4, v2
    v_add_u32 v5, s3, v5
    """)
    for s in range(8): a(f"ds_read_b128 {vr(Q+s*4,4)}, v5 offset:{s*1024}")
    dma(12, "0", VB[0])
    a(f"v_mov_b32 v{VM}, 0xe0ad78ec\nv_mov_b32 v{VL}, 0")
    for i in range(64): a(f"v_mov_b32 v{O+i}, 0")
    lk = a.label("nok1"); lk2 = a.label("nok1b")
    a(f"s_cmp_lt_u32 s30, 2\ns_cbranch_scc1 {lk}\ns_mov_b32 s32, 32768")
    dma(8, "s32", KB[1])
    a(f"s_waitcnt vmcnt(8)\ns_branch {lk2}\n{lk}:\ns_waitcnt vmcnt(4)\n{lk2}:")
    a("s_mov_b32 s31, 0\ns_waitcnt lgkmcnt(0)\ns_barrier")
    publish(0)
    pre(QKI, 0, 0)
    MM(QKI, 0, 0, None, False)
    a("s_cmp_lg_u32 s27, 0\ns_cbranch_scc1 L_k2_g1loop")
    a("L_k2_loop:")
    def k0pf():
        l = a.label("k0pf")
        a(f"s_cmp_lg_u32 s36, 0\ns_cbranch_scc1 {l}")
        dma(8, "0", KB[0])
        a(f"{l}:")
    def mkfill(A, A2, B):
        fill = [[] for _ in range(16)]
        fill[0] = A[8:12]; fill[1] = A[12:] + [A2]
        per = (len(B) + 13) // 14
        for i in range(14): fill[2+i] = B[i*per:(i+1)*per]
        return fill
    for par in range(2):
        top()
        a(f"s_cbranch_scc1 L_k2_tail{par}")
        stamp()
        items = QKI + PVI
        pre(items, par, par ^ 1)
        A, A2, B = SM_parts(SS[par])
        for x in A[:8]: a(x)
        MM(items, par, par ^ 1, mkfill(A, A2, B))
        a("s_add_u32 s31, s31, 1")
        stamp()
    a("s_branch L_k2_loop")
    for par in range(2):
        a(f"L_k2_tail{par}:")
        pre(PVI, par, par ^ 1)
        check()
        k0pf()
        a("s_nop 7")
        mask(SS[par])
        A, A2, B = SM_parts(SS[par])
        for x in A: a(x)
        a(A2)
        for x in B: a(x)
        a("s_nop 1")
        MM(PVI, par, par ^ 1, None, False)
        a("s_barrier\ns_branch L_k2_merge")
    a("L_k2_g1first:")
    pre(QKI, 1, 1)
    for j in range(4): dpiece(8, "s32", KB[0], j, 2)
    a("s_branch L_k2_g1qk0")
    a("L_k2_g1loop:")
    for par in range(2):
        top()
        a(f"s_cbranch_scc1 L_k2_g1tail{par}")
        stamp()
        if par == 0: a("s_cmp_eq_u32 s31, 0\ns_cbranch_scc1 L_k2_g1first")
        items = PVI + QKI
        pre(items, par ^ 1, par ^ 1)
        A, A2, B = SM_parts(SS[par])
        MM(items, par ^ 1, par ^ 1, mkfill(A, A2, B), True, True, f"L_k2_g1qk{par}", A[:8])
        a("s_add_u32 s31, s31, 1")
        stamp()
    a("s_branch L_k2_g1loop")
    for par in range(2):
        a(f"L_k2_g1tail{par}:")
        for j in range(4): dpiece(12, "s39", VB[par], j, 0)
        k0pf()
        if par == 0: a("s_cmp_eq_u32 s31, 0\ns_cbranch_scc1 L_k2_g1t0")
        pre(PVI, par ^ 1, par ^ 1)
        MM(PVI, par ^ 1, par ^ 1, None, False)
        if par == 0: a("L_k2_g1t0:")
        a("s_nop 7")
        mask(SS[par])
        A, A2, B = SM_parts(SS[par])
        for x in A: a(x)
        a(A2)
        for x in B: a(x)
        a("s_waitcnt vmcnt(0)\ns_barrier")
        pre(PVI, par, par ^ 1)
        MM(PVI, par, par ^ 1, None, False)
        if par == 0: a("s_branch L_k2_merge")
    a("L_k2_merge:")
    S = SS[0]
    ob_pre(a)
    a(f"""
    s_nop 15
    v_mov_b32 v25, v{VL}
    s_nop 1
    v_permlane32_swap_b32 v{VL}, v25
    s_nop 1
    v_add_f32 v{VL}, v{VL}, v25
    s_lshl_b32 s3, s26, 13
    s_add_u32 s3, s3, 65536
    v_lshlrev_b32 v5, 4, v2
    v_add_u32 v5, s3, v5
    s_lshl_b32 s3, s26, 9
    v_lshlrev_b32 v6, 2, v2
    v_add_u32 v6, s3, v6
    s_xor_b32 s37, s26, 4
    s_barrier
    ds_write_b32 v6, v{VM} offset:32768
    ds_write_b32 v6, v{VL} offset:33024
    s_or_b32 s3, s26, s36
    s_cmp_lg_u32 s3, 0
    s_cbranch_scc1 L_k2_nofl
    s_waitcnt vmcnt(0)
    v_and_b32 v24, 0xff, v245
    v_and_b32 v25, 0xff00, v245
    v_cmp_eq_u32 vcc, 7, v24
    v_and_b32 v24, 0xff, v246
    v_cndmask_b32 v25, 0, v25, vcc
    v_cmp_eq_u32 vcc, 8, v24
    v_or_b32 v24, 1, v25
    s_nop 0
    v_cndmask_b32 v25, v25, v24, vcc
    s_mov_b64 exec, 1
    ds_write_b32 v247, v25 offset:36864
    s_mov_b64 exec, -1
    L_k2_nofl:
    s_cmp_eq_u32 s27, 0
    s_cbranch_scc1 L_k2_m0
    """)
    def merge(g):
        lw = a.label("mw")
        keep = O + (0 if g == 0 else 32); send = O + (32 if g == 0 else 0)
        for q in range(8): a(f"ds_write_b128 v5, {vr(send+q*4,4)} offset:{q*1024}")
        a(f"""
        v_xor_b32 v5, 0x8000, v5
        v_xor_b32 v6, 0x800, v6
        s_waitcnt lgkmcnt(0)
        s_barrier
        ds_read_b32 v30, v247 offset:36864
        ds_read_b32 v24, v6 offset:32768
        ds_read_b32 v25, v6 offset:33024
        """)
        for q in range(8): a(f"ds_read_b128 {vr(S+q*4,4)}, v5 offset:{q*1024}")
        a(f"""
        s_waitcnt lgkmcnt(8)
        v_max_f32 v26, v{VM}, v24
        v_sub_f32 v27, v{VM}, v26
        v_sub_f32 v28, v24, v26
        v_exp_f32 v27, v27
        v_exp_f32 v28, v28
        s_nop 0
        v_mul_f32 v29, v27, v{VL}
        v_fma_f32 v29, v28, v25, v29
        v_rcp_f32 v29, v29
        s_nop 0
        v_mul_f32 v27, v27, v29
        v_mul_f32 v28, v28, v29
        s_lshl_b32 s3, s29, 2
        s_add_u32 s3, s3, s28
        s_mul_i32 s3, s3, {36*8192}
        s_lshl_b32 s37, s24, 13
        s_add_u32 s3, s3, s37
        s_add_u32 s3, s3, {g*4096}
        v_lshlrev_b32 v5, 4, v2
        s_waitcnt lgkmcnt(0)
        v_readfirstlane_b32 s37, v30
        s_cmp_eq_u32 s36, 0
        s_cselect_b32 s80, s37, s80
        s_cbranch_scc1 {lw}
        s_waitcnt vmcnt(0)
        {lw}:
        """)
        for i in range(32):
            a(f"v_mul_f32 v{keep+i}, v27, v{keep+i}\nv_fma_f32 v{keep+i}, v28, v{S+i}, v{keep+i}")
        for q in range(4):
            for p in range(4):
                a(f"v_cvt_pk_bf16_f32 v{P+q*4+p}, v{keep+q*8+2*p}, v{keep+q*8+2*p+1}")
            a(f"buffer_store_dwordx4 {vr(P+q*4,4)}, v5, s[20:23], s3 offen offset:{q*1024}")
    merge(1)
    a("s_branch L_k2_mdone\nL_k2_m0:")
    merge(0)
    a("L_k2_mdone:")
    ob_post(a)
    if INSTR:
        a(f"""
        s_cmp_lg_u32 s36, 0
        s_cbranch_scc1 L_nodump
        s_lshl_b32 s3, s2, 3
        s_add_u32 s3, s3, s26
        s_lshl_b32 s3, s3, 8
        v_lshlrev_b32 v5, 2, v2
        v_add_u32 v5, s3, v5
        s_add_u32 s64, s4, {hex(100<<20)}
        s_addc_u32 s65, s5, 0
        s_mov_b32 s66, 0x1000000
        s_mov_b32 s67, 0x00020000
        buffer_store_dword v244, v5, s[64:67], 0 offen
        L_nodump:
        """)
    a("""
    s_barrier
    s_add_u32 s36, s36, 1
    s_cmp_lt_u32 s36, 2
    s_cbranch_scc1 L_k2_pass
    """)
    a("L_k2_end:\ns_endpgm")
    return a.text()
```

```python
from common import *
from gemm import *
import os
NWG1 = 256
def pf(a):
    if os.environ.get("NOPF") == "1": return
    l = a.label("pf")
    a(f"""
    s_lshl_b32 s70, s2, 3
    s_add_u32 s70, s70, s42
    s_cmp_ge_u32 s70, 1920
    s_cbranch_scc1 {l}
    s_sub_u32 s71, s70, 512
    s_mov_b32 s74, 0x400000
    s_cmp_lt_u32 s70, 512
    s_cselect_b32 s72, s64, s66
    s_cselect_b32 s73, s65, s67
    s_cselect_b32 s74, 0x200000, s74
    s_cselect_b32 s71, s70, s71
    s_sub_u32 s3, s70, 1536
    s_cmp_ge_u32 s70, 1536
    s_cselect_b32 s72, s68, s72
    s_cselect_b32 s73, s69, s73
    s_cselect_b32 s74, 0x180000, s74
    s_cselect_b32 s71, s3, s71
    s_mov_b32 s75, 0x00020000
    s_lshl_b32 s71, s71, 12
    v_lshlrev_b32 v6, 6, v2
    buffer_load_dword v236, v6, s[72:75], s71 offen
    {l}:
    s_cmp_lg_u32 s70, 1920
    s_cbranch_scc1 {l}b
    s_movk_i32 s78, 16384
    s_mov_b32 s79, 0x00020000
    s_movk_i32 s82, 1024
    s_mov_b32 s83, 0x00020000
    v_lshlrev_b32 v6, 7, v2
    s_movk_i32 s3, 8192
    buffer_load_dword v236, v6, s[76:79], 0 offen
    buffer_load_dword v237, v6, s[76:79], s3 offen
    buffer_load_dword v238, v6, s[80:83], 0 offen
    {l}b:
    """)
def gen_k1():
    a = Asm()
    ACC = 64; XF = 192; WF = 224
    a(f"""
    s_cmp_ge_u32 s2, {NWG1}
    s_cbranch_scc1 L_k1_end
    s_load_dwordx8 s[4:11], s[0:1], 8
    s_load_dwordx2 s[20:21], s[0:1], 104
    s_load_dwordx2 s[64:65], s[0:1], 0
    s_load_dwordx2 s[66:67], s[0:1], 16
    s_load_dwordx2 s[68:69], s[0:1], 56
    s_load_dwordx2 s[76:77], s[0:1], 64
    s_load_dwordx2 s[80:81], s[0:1], 80
    s_and_b32 s40, s2, 7
    s_lshl_b32 s40, s40, 2
    s_bfe_u32 s3, s2, 0x20003
    s_add_u32 s40, s40, s3
    s_lshr_b32 s41, s2, 5
    v_lshrrev_b32 v1, 6, v0
    s_nop 0
    v_readfirstlane_b32 s42, v1
    v_and_b32 v2, 63, v0
    s_lshr_b32 s45, s40, 4
    s_and_b32 s44, s40, 15
    s_lshl_b32 s44, s44, 9
    s_lshr_b32 s48, s42, 2
    s_and_b32 s49, s42, 3
    s_lshl_b32 s46, s42, 5
    s_lshl_b32 s47, s41, 8
    s_add_u32 s46, s46, s47
    s_lshl_b32 s47, s48, 7
    s_waitcnt lgkmcnt(0)
    s_mov_b32 s24, s4
    s_mov_b32 s25, s5
    s_mov_b32 s26, 0x200000
    s_mov_b32 s27, 0x00020000
    s_cmp_eq_u32 s45, 0
    s_cselect_b32 s28, s8, s10
    s_cselect_b32 s29, s9, s11
    s_mov_b32 s30, 0x400000
    s_mov_b32 s31, 0x00020000
    s_mov_b32 s32, s20
    s_mov_b32 s33, s21
    s_mov_b32 s34, 0x10000000
    s_mov_b32 s35, 0x00020000
    s_or_b32 s3, s2, s42
    s_cmp_lg_u32 s3, 0
    s_cbranch_scc1 L_k1_nz
    v_lshlrev_b32 v5, 8, v2
    v_mov_b32 v6, 0
    s_mov_b32 s3, {hex(WS_CNT)}
    buffer_store_dword v6, v5, s[32:35], s3 offen
    L_k1_nz:
    s_mov_b32 s52, {8192*32}
    """)
    gemm_setup(a, "s46", "s47")
    a("""
    s_lshr_b32 s46, s49, 1
    s_lshl_b32 s46, s46, 13
    v_add_u32 v4, s46, v4
    s_and_b32 s46, s49, 1
    s_lshl_b32 s46, s46, 1
    """)
    for nb in range(2):
        a(f"s_add_u32 s47, s46, {nb}\nv_xor_b32 v5, s47, v3\nv_lshl_add_u32 v{RW+nb}, v5, 6, v4")
    a("""
    v_lshrrev_b32 v4, 4, v2
    v_and_b32 v5, 15, v2
    v_lshlrev_b32 v6, 2, v4
    v_xor_b32 v5, v5, v6
    v_lshlrev_b32 v5, 4, v5
    s_lshl_b32 s46, s48, 8
    s_add_u32 s46, s46, s44
    v_add_u32 v5, s46, v5
    s_lshl_b32 s46, s49, 3
    v_add_u32 v4, s46, v4
    """)
    for i in range(2):
        a(f"v_add_u32 v6, {4*i}, v4\nv_lshl_add_u32 v{VOW+i}, v6, 13, v5")
    gemm_prologue(a)
    if os.environ.get("SPF") == "1": a("""
    s_lshl_b32 s70, s2, 3
    s_add_u32 s70, s70, s42
    s_cmp_ge_u32 s70, 1280
    s_cbranch_scc1 L_k1_npf0
    s_sub_u32 s71, s70, 256
    s_mov_b32 s74, 0x400000
    s_cmp_lt_u32 s70, 256
    s_cselect_b32 s72, s4, s8
    s_cselect_b32 s73, s5, s9
    s_cselect_b32 s74, 0x200000, s74
    s_cselect_b32 s71, s70, s71
    s_sub_u32 s3, s70, 768
    s_cmp_ge_u32 s70, 768
    s_cselect_b32 s72, s10, s72
    s_cselect_b32 s73, s11, s73
    s_cselect_b32 s71, s3, s71
    s_mov_b32 s75, 0x00020000
    s_lshl_b32 s71, s71, 13
    v_lshlrev_b32 v240, 7, v2
    buffer_load_dword v240, v240, s[72:75], s71 offen
    L_k1_npf0:
    """)
    a("""
    s_and_b32 s57, s40, 15
    s_lshl_b32 s57, s57, 1
    s_lshr_b32 s46, s49, 1
    s_add_u32 s57, s57, s46
    s_and_b32 s49, s49, 1
    s_cmp_eq_u32 s45, 1
    s_cbranch_scc1 L_k1_vtype
    """)
    gemm_core(a, 4, [(0, 0), (1, 0)], ACC, XF, WF, False)
    pf(a)
    a(f"""
    s_lshl_b32 s46, s57, 19
    s_add_u32 s46, s46, {hex(WS_K)}
    s_lshl_b32 s47, s41, 16
    s_add_u32 s46, s46, s47
    s_lshl_b32 s47, s48, 15
    s_add_u32 s46, s46, s47
    s_lshl_b32 s47, s49, 12
    s_add_u32 s46, s46, s47
    v_lshlrev_b32 v5, 4, v2
    """)
    for mb in range(4):
        for nb in range(2):
            for hf in range(2):
                b = ACC + (mb*2+nb)*16 + hf*8
                t = XF + ((mb*4+nb*2+hf) & 7)*4
                for p in range(4):
                    a(f"v_cvt_pk_bf16_f32 v{t+p}, v{b+2*p}, v{b+2*p+1}")
                a(f"buffer_store_dwordx4 {vr(t,4)}, v5, s[32:35], s46 offen offset:{(nb*2+hf)*1024}")
        a("s_add_u32 s46, s46, 8192")
    a("s_endpgm")
    a("L_k1_vtype:")
    gemm_core(a, 4, [(0, 0), (1, 0)], ACC, XF, WF, True)
    pf(a)
    a(f"""
    s_lshl_b32 s46, s57, 19
    s_add_u32 s46, s46, {hex(WS_V)}
    s_lshl_b32 s47, s41, 16
    s_add_u32 s46, s46, s47
    s_lshl_b32 s47, s48, 15
    s_add_u32 s46, s46, s47
    s_lshl_b32 s47, s49, 11
    s_add_u32 s46, s46, s47
    v_lshlrev_b32 v5, 4, v2
    """)
    for mb in range(4):
        for hf in range(2):
            for nb in range(2):
                b = ACC + (mb*2+nb)*16 + hf*8
                t = XF + ((mb*4+nb+hf*2) & 7)*4
                for p in range(4):
                    a(f"v_cvt_pk_bf16_f32 v{t+p}, v{b+2*p}, v{b+2*p+1}")
                a(f"buffer_store_dwordx4 {vr(t,4)}, v5, s[32:35], s46 offen offset:{nb*1024}")
            a("s_add_u32 s46, s46, 4096")
    a("L_k1_end:\ns_endpgm")
    return a.text()
```

```python
class Asm:
    guid = 0
    def __init__(self):
        self.L = []
        self.uid = 0
    def __call__(self, s):
        for ln in s.strip("\n").split("\n"):
            self.L.append("    " + ln.strip() if not ln.strip().endswith(":") else ln.strip())
    def label(self, base):
        Asm.guid += 1
        return f"L_{base}_{Asm.guid}"
    def text(self):
        return "\n".join(self.L) + "\n"

def vr(b, n=1):
    return f"v{b}" if n == 1 else f"v[{b}:{b+n-1}]"
def sr(b, n=1):
    return f"s{b}" if n == 1 else f"s[{b}:{b+n-1}]"

import os
MB = 1 << 20
WSB = int(os.environ.get('WSB', '0')) * MB
WS_Q = WSB + 0
WS_K = WSB + 16 * MB
WS_V = WSB + 32 * MB
WS_CTXO = WSB + 48 * MB
WS_QKVB = WSB + 68 * MB
WS_KVP = WSB + 76 * MB
WS_G = WSB + 78 * MB
WS_CNT = WSB + 79 * MB
WS_SIZE = 0x10000000
CTX_PITCH = 9216

def srd(a, d, lo, hi, size):
    a(f"s_mov_b32 s{d}, {lo}\ns_mov_b32 s{d+1}, {hi}\ns_mov_b32 s{d+2}, {hex(size)}\ns_mov_b32 s{d+3}, 0x00020000")

def srd_ws(a, d, wsreg, off, size):
    a(f"s_add_u32 s{d}, s{wsreg}, {hex(off)}\ns_addc_u32 s{d+1}, s{wsreg+1}, 0\ns_mov_b32 s{d+2}, {hex(size)}\ns_mov_b32 s{d+3}, 0x00020000")

def kernel_head(name):
    return f".globl {name}\n.p2align 8\n.type {name},@function\n{name}:\n"

def kernel_desc(name, vgpr, sgpr=102):
    acc = (vgpr + 3) // 4 * 4
    return f""".p2align 6
.amdhsa_kernel {name}
  .amdhsa_next_free_vgpr {vgpr}
  .amdhsa_next_free_sgpr {sgpr}
  .amdhsa_accum_offset {acc}
  .amdhsa_group_segment_fixed_size 0
  .amdhsa_kernarg_size 112
  .amdhsa_user_sgpr_count 2
  .amdhsa_user_sgpr_kernarg_segment_ptr 1
  .amdhsa_system_sgpr_workgroup_id_x 1
.end_amdhsa_kernel
"""
```

```python
from common import *
import os
NOMM = os.environ.get('NOMM') == '1'
NOBAR = os.environ.get('NOBAR') == '1'
XO = os.environ.get('XO') == '1'
NWG4 = 256
def gen_k4():
    a = Asm()
    MAP = {"0": "", "1": "s_lshr_b32 s41, s2, 3\ns_and_b32 s40, s2, 7",
           "2": "s_and_b32 s41, s2, 3\ns_lshl_b32 s41, s41, 3\ns_bfe_u32 s3, s2, 0x30003\ns_add_u32 s41, s41, s3\ns_bfe_u32 s40, s2, 0x10002\ns_lshl_b32 s40, s40, 2\ns_lshr_b32 s3, s2, 6\ns_add_u32 s40, s40, s3"}[os.environ.get("MAP", "0")]
    AA = 64; AB = 80; XF = 96; WF = 128
    VOX = 8; VOW = 12; RX = 16; RWA = 24; RWB = 25
    a(f"""
    s_cmp_ge_u32 s2, {NWG4}
    s_cbranch_scc1 L_k4_end
    s_load_dwordx2 s[4:5], s[0:1], 104
    s_load_dwordx2 s[6:7], s[0:1], 40
    s_load_dwordx2 s[36:37], s[0:1], 72
    s_load_dwordx2 s[38:39], s[0:1], 88
    s_and_b32 s41, s2, 7
    s_lshl_b32 s41, s41, 2
    s_bfe_u32 s3, s2, 0x20003
    s_add_u32 s41, s41, s3
    s_lshr_b32 s40, s2, 5
    {MAP}
    v_lshrrev_b32 v1, 6, v0
    s_nop 0
    v_readfirstlane_b32 s42, v1
    v_and_b32 v2, 63, v0
    s_waitcnt lgkmcnt(0)
    """)
    srd_ws(a, 8, 4, WS_CTXO, 2048*CTX_PITCH)
    srd(a, 12, "s6", "s7", 0x400000)
    srd(a, 16, "s36", "s37", 0x80000)
    srd(a, 20, "s38", "s39", 0x200000)
    srd_ws(a, 24, 4, WS_G, 8192)
    a(f"""
    s_lshl_b32 s46, s41, 1
    s_lshr_b32 s47, s42, 1
    s_add_u32 s46, s46, s47
    s_mul_i32 s46, s46, {36*8192}
    s_and_b32 s47, s42, 1
    s_lshl_b32 s47, s47, 12
    s_add_u32 s46, s46, s47
    v_lshlrev_b32 v5, 4, v2
    v_add_u32 v{VOX}, s46, v5
    """)
    a("""
    v_and_b32 v5, 7, v2
    v_bfe_u32 v6, v2, 4, 1
    v_lshlrev_b32 v6, 2, v6
    v_xor_b32 v5, v5, v6
    v_lshlrev_b32 v5, 4, v5
    s_lshl_b32 s46, s40, 7
    v_add_u32 v5, s46, v5
    v_lshrrev_b32 v6, 3, v2
    s_lshl_b32 s46, s42, 5
    v_add_u32 v6, s46, v6
    """)
    for i in range(4):
        a(f"v_add_u32 v7, {8*i}, v6\nv_lshl_add_u32 v{VOW+i}, v7, 10, v5")
    a(f"""
    s_lshr_b32 s48, s42, 1
    s_and_b32 s49, s42, 1
    v_and_b32 v3, 31, v2
    v_lshrrev_b32 v4, 5, v2
    s_lshl_b32 s46, s48, 13
    v_lshlrev_b32 v5, 4, v2
    v_add_u32 v{RX}, s46, v5
    """)
    a(f"""
    v_bfe_u32 v5, v2, 2, 2
    v_lshrrev_b32 v6, 1, v5
    v_xor_b32 v6, s49, v6
    v_lshlrev_b32 v6, 6, v6
    v_and_b32 v7, 3, v2
    v_lshl_add_u32 v6, v7, 3, v6
    v_bfe_u32 v7, v2, 4, 1
    v_lshl_add_u32 v6, v7, 5, v6
    v_add_u32 v6, 16384, v6
    v_lshl_add_u32 v7, v4, 2, v5
    v_lshl_add_u32 v{RWA}, v7, 7, v6
    v_lshl_add_u32 v7, v4, 3, v5
    v_lshl_add_u32 v{RWB}, v7, 7, v6
    s_mov_b32 s50, 0
    s_mov_b32 s51, 0
    s_lshl_b32 s53, s42, 12
    """)
    NK = 36; NS = 5
    if XO: a(f"s_lshl_b32 s46, s40, 1\ns_lshr_b32 s47, s42, 1\ns_add_u32 s46, s46, s47\ns_mul_i32 s46, s46, {36*8192}\ns_and_b32 s47, s42, 1\ns_lshl_b32 s47, s47, 12\ns_add_u32 s46, s46, s47\nv_lshlrev_b32 v5, 4, v2\nv_add_u32 v{VOW}, s46, v5")
    def loads(k):
        st = k % NS
        if k == 32: a("s_mov_b32 s51, 0")
        wsrd = "s[12:15]" if k < 32 else "s[16:19]"
        a(f"s_add_u32 m0, s53, {st*32768}\ns_nop 0")
        for i in range(4):
            a(f"buffer_load_dwordx4 v{VOX}, s[8:11], s50 offen offset:{i*1024} lds")
        for i in range(4):
            if XO: a(f"s_add_u32 m0, s53, {st*32768 + 16384 + i*1024}\ns_nop 0\nbuffer_load_dwordx4 v{VOW}, s[8:11], s50 offen offset:{i*1024} lds")
            else: a(f"s_add_u32 m0, s53, {st*32768 + 16384 + i*1024}\ns_nop 0\nbuffer_load_dwordx4 v{VOW+i}, {wsrd}, s51 offen lds")
        a("s_add_u32 s50, s50, 8192\ns_add_u32 s51, s51, 0x20000")
    def reads(k, s):
        st = k % NS
        o = (st % 2) * 32768; e = (st // 2) * 18
        rw = RWA if k < 32 else RWB
        sec = 1024 if k < 32 else 512
        a(f"ds_read_b128 {vr(XF+s*4,4)}, v{RX+e} offset:{o+s*1024}")
        a(f"ds_read_b64_tr_b16 {vr(WF+s*4,2)}, v{rw+e} offset:{o+s*2048}\nds_read_b64_tr_b16 {vr(WF+s*4+2,2)}, v{rw+e} offset:{o+s*2048+sec}")
    for s in range(10): a(f"v_add_u32 v{RX+s+18}, 0x10000, v{RX+s}\nv_add_u32 v{RX+s+36}, 0x20000, v{RX+s}")
    for k in range(NS-1): loads(k)
    for k in range(NK):
        a(f"s_waitcnt vmcnt({8*min(NS-2, NK-1-k)})" + ("" if NOBAR else "\ns_barrier"))
        if k + NS-1 < NK: loads(k + NS-1)
        if NOMM: continue
        for s in range(5): reads(k, s)
        acc = vr(AA if k < 32 else AB, 16)
        for s in range(8):
            n_iss = min(8, s + 5)
            a(f"s_waitcnt lgkmcnt({(n_iss - s - 1)*3})")
            first = (k in (0, 32)) and s == 0
            a(f"v_mfma_f32_32x32x16_bf16 {acc}, {vr(WF+s*4,4)}, {vr(XF+s*4,4)}, {'0' if first else acc}")
            if s + 5 < 8: reads(k, s + 5)
    a(f"""
    s_lshl_b32 s46, s41, 6
    s_lshl_b32 s47, s48, 5
    s_add_u32 s46, s46, s47
    v_add_u32 v5, s46, v3
    v_lshlrev_b32 v6, 2, v5
    buffer_load_dword v7, v6, s[24:27], 0 offen
    v_lshlrev_b32 v5, 10, v5
    v_lshl_add_u32 v5, v4, 3, v5
    s_lshl_b32 s46, s40, 7
    s_lshl_b32 s47, s49, 6
    s_add_u32 s46, s46, s47
    v_add_u32 v5, s46, v5
    s_nop 7
    s_waitcnt vmcnt(0)
    v_sub_f32 v6, 1.0, v7
    v_cvt_pk_bf16_f32 v6, v6, v6
    v_and_b32 v6, 0xffff0000, v6
    """)
    def rnd(r0, r1):
        a(f"v_cvt_pk_bf16_f32 v8, v{r0}, v{r1}\nv_lshlrev_b32 v{r0}, 16, v8\nv_and_b32 v{r1}, 0xffff0000, v8")
    for i in range(0, 16, 2):
        rnd(AA+i, AA+i+1); rnd(AB+i, AB+i+1)
        for j in (0, 1):
            a(f"v_mul_f32 v{AA+i+j}, v7, v{AA+i+j}\nv_mul_f32 v{AB+i+j}, v6, v{AB+i+j}")
        rnd(AA+i, AA+i+1); rnd(AB+i, AB+i+1)
        for j in (0, 1): a(f"v_add_f32 v{AA+i+j}, v{AA+i+j}, v{AB+i+j}")
        a(f"v_cvt_pk_bf16_f32 v{XF+i//2}, v{AA+i}, v{AA+i+1}")
    for q in range(4):
        a(f"buffer_store_dwordx2 {vr(XF+2*q,2)}, v5, s[20:23], 0 offen offset:{q*16}")
    a("L_k4_end:\ns_endpgm")
    return a.text()
```

```python
from common import *
from gemm import *
import os
NWG1 = 256
def pf(a):
    if os.environ.get("NOPF") == "1": return
    l = a.label("pf")
    a(f"""
    s_lshl_b32 s70, s2, 3
    s_add_u32 s70, s70, s42
    s_cmp_ge_u32 s70, 1920
    s_cbranch_scc1 {l}
    s_sub_u32 s71, s70, 512
    s_mov_b32 s74, 0x400000
    s_cmp_lt_u32 s70, 512
    s_cselect_b32 s72, s64, s66
    s_cselect_b32 s73, s65, s67
    s_cselect_b32 s74, 0x200000, s74
    s_cselect_b32 s71, s70, s71
    s_sub_u32 s3, s70, 1536
    s_cmp_ge_u32 s70, 1536
    s_cselect_b32 s72, s68, s72
    s_cselect_b32 s73, s69, s73
    s_cselect_b32 s74, 0x180000, s74
    s_cselect_b32 s71, s3, s71
    s_mov_b32 s75, 0x00020000
    s_lshl_b32 s71, s71, 12
    v_lshlrev_b32 v6, 6, v2
    buffer_load_dword v236, v6, s[72:75], s71 offen
    {l}:
    s_cmp_lg_u32 s70, 1920
    s_cbranch_scc1 {l}b
    s_movk_i32 s78, 16384
    s_mov_b32 s79, 0x00020000
    s_movk_i32 s82, 1024
    s_mov_b32 s83, 0x00020000
    v_lshlrev_b32 v6, 7, v2
    s_movk_i32 s3, 8192
    buffer_load_dword v236, v6, s[76:79], 0 offen
    buffer_load_dword v237, v6, s[76:79], s3 offen
    buffer_load_dword v238, v6, s[80:83], 0 offen
    {l}b:
    """)
def gen_k1():
    a = Asm()
    ACC = 64; XF = 192; WF = 224
    a(f"""
    s_cmp_ge_u32 s2, {NWG1}
    s_cbranch_scc1 L_k1_end
    s_load_dwordx8 s[4:11], s[0:1], 8
    s_load_dwordx2 s[20:21], s[0:1], 104
    s_load_dwordx2 s[64:65], s[0:1], 0
    s_load_dwordx2 s[66:67], s[0:1], 16
    s_load_dwordx2 s[68:69], s[0:1], 56
    s_load_dwordx2 s[76:77], s[0:1], 64
    s_load_dwordx2 s[80:81], s[0:1], 80
    s_and_b32 s40, s2, 7
    s_lshl_b32 s40, s40, 2
    s_bfe_u32 s3, s2, 0x20003
    s_add_u32 s40, s40, s3
    s_lshr_b32 s41, s2, 5
    v_lshrrev_b32 v1, 6, v0
    s_nop 0
    v_readfirstlane_b32 s42, v1
    v_and_b32 v2, 63, v0
    s_lshr_b32 s45, s40, 4
    s_and_b32 s44, s40, 15
    s_lshl_b32 s44, s44, 9
    s_lshr_b32 s48, s42, 2
    s_and_b32 s49, s42, 3
    s_lshl_b32 s46, s42, 5
    s_lshl_b32 s47, s41, 8
    s_add_u32 s46, s46, s47
    s_lshl_b32 s47, s48, 7
    s_waitcnt lgkmcnt(0)
    s_mov_b32 s24, s4
    s_mov_b32 s25, s5
    s_mov_b32 s26, 0x200000
    s_mov_b32 s27, 0x00020000
    s_cmp_eq_u32 s45, 0
    s_cselect_b32 s28, s8, s10
    s_cselect_b32 s29, s9, s11
    s_mov_b32 s30, 0x400000
    s_mov_b32 s31, 0x00020000
    s_mov_b32 s32, s20
    s_mov_b32 s33, s21
    s_mov_b32 s34, 0x10000000
    s_mov_b32 s35, 0x00020000
    s_or_b32 s3, s2, s42
    s_cmp_lg_u32 s3, 0
    s_cbranch_scc1 L_k1_nz
    v_lshlrev_b32 v5, 8, v2
    v_mov_b32 v6, 0
    s_mov_b32 s3, {hex(WS_CNT)}
    buffer_store_dword v6, v5, s[32:35], s3 offen
    L_k1_nz:
    s_mov_b32 s52, {8192*32}
    """)
    gemm_setup(a, "s46", "s47")
    a("""
    s_lshr_b32 s46, s49, 1
    s_lshl_b32 s46, s46, 13
    v_add_u32 v4, s46, v4
    s_and_b32 s46, s49, 1
    s_lshl_b32 s46, s46, 1
    """)
    for nb in range(2):
        a(f"s_add_u32 s47, s46, {nb}\nv_xor_b32 v5, s47, v3\nv_lshl_add_u32 v{RW+nb}, v5, 6, v4")
    a("""
    v_lshrrev_b32 v4, 4, v2
    v_and_b32 v5, 15, v2
    v_lshlrev_b32 v6, 2, v4
    v_xor_b32 v5, v5, v6
    v_lshlrev_b32 v5, 4, v5
    s_lshl_b32 s46, s48, 8
    s_add_u32 s46, s46, s44
    v_add_u32 v5, s46, v5
    s_lshl_b32 s46, s49, 3
    v_add_u32 v4, s46, v4
    """)
    for i in range(2):
        a(f"v_add_u32 v6, {4*i}, v4\nv_lshl_add_u32 v{VOW+i}, v6, 13, v5")
    gemm_prologue(a)
    if os.environ.get("SPF") == "1": a("""
    s_lshl_b32 s70, s2, 3
    s_add_u32 s70, s70, s42
    s_cmp_ge_u32 s70, 1280
    s_cbranch_scc1 L_k1_npf0
    s_sub_u32 s71, s70, 256
    s_mov_b32 s74, 0x400000
    s_cmp_lt_u32 s70, 256
    s_cselect_b32 s72, s4, s8
    s_cselect_b32 s73, s5, s9
    s_cselect_b32 s74, 0x200000, s74
    s_cselect_b32 s71, s70, s71
    s_sub_u32 s3, s70, 768
    s_cmp_ge_u32 s70, 768
    s_cselect_b32 s72, s10, s72
    s_cselect_b32 s73, s11, s73
    s_cselect_b32 s71, s3, s71
    s_mov_b32 s75, 0x00020000
    s_lshl_b32 s71, s71, 13
    v_lshlrev_b32 v240, 7, v2
    buffer_load_dword v240, v240, s[72:75], s71 offen
    L_k1_npf0:
    """)
    a("""
    s_and_b32 s57, s40, 15
    s_lshl_b32 s57, s57, 1
    s_lshr_b32 s46, s49, 1
    s_add_u32 s57, s57, s46
    s_and_b32 s49, s49, 1
    """)
    if os.environ.get("TLB", "0") == "1": a(f"""
    s_lshl_b32 s84, s57, 19
    s_lshl_b32 s85, s45, 24
    s_add_u32 s84, s84, s85
    s_add_u32 s84, s84, {hex(WS_K)}
    s_lshl_b32 s85, s41, 16
    s_add_u32 s84, s84, s85
    s_lshl_b32 s85, s48, 15
    s_add_u32 s84, s84, s85
    v_lshlrev_b32 v240, 9, v2
    buffer_load_dword v240, v240, s[32:35], s84 offen
    """)
    a("""
    s_cmp_eq_u32 s45, 1
    s_cbranch_scc1 L_k1_vtype
    """)
    gemm_core(a, 4, [(0, 0), (1, 0)], ACC, XF, WF, False)
    pf(a)
    a(f"""
    s_lshl_b32 s46, s57, 19
    s_add_u32 s46, s46, {hex(WS_K)}
    s_lshl_b32 s47, s41, 16
    s_add_u32 s46, s46, s47
    s_lshl_b32 s47, s48, 15
    s_add_u32 s46, s46, s47
    s_lshl_b32 s47, s49, 12
    s_add_u32 s46, s46, s47
    v_lshlrev_b32 v5, 4, v2
    """)
    for mb in range(4):
        for nb in range(2):
            for hf in range(2):
                b = ACC + (mb*2+nb)*16 + hf*8
                t = XF + ((mb*4+nb*2+hf) & 7)*4
                for p in range(4):
                    a(f"v_cvt_pk_bf16_f32 v{t+p}, v{b+2*p}, v{b+2*p+1}")
                a(f"buffer_store_dwordx4 {vr(t,4)}, v5, s[32:35], s46 offen offset:{(nb*2+hf)*1024}")
        a("s_add_u32 s46, s46, 8192")
    a("s_endpgm")
    a("L_k1_vtype:")
    gemm_core(a, 4, [(0, 0), (1, 0)], ACC, XF, WF, True)
    pf(a)
    a(f"""
    s_lshl_b32 s46, s57, 19
    s_add_u32 s46, s46, {hex(WS_V)}
    s_lshl_b32 s47, s41, 16
    s_add_u32 s46, s46, s47
    s_lshl_b32 s47, s48, 15
    s_add_u32 s46, s46, s47
    s_lshl_b32 s47, s49, 11
    s_add_u32 s46, s46, s47
    v_lshlrev_b32 v5, 4, v2
    """)
    for mb in range(4):
        for hf in range(2):
            for nb in range(2):
                b = ACC + (mb*2+nb)*16 + hf*8
                t = XF + ((mb*4+nb+hf*2) & 7)*4
                for p in range(4):
                    a(f"v_cvt_pk_bf16_f32 v{t+p}, v{b+2*p}, v{b+2*p+1}")
                a(f"buffer_store_dwordx4 {vr(t,4)}, v5, s[32:35], s46 offen offset:{nb*1024}")
            a("s_add_u32 s46, s46, 4096")
    a("L_k1_end:\ns_endpgm")
    return a.text()
```

```python
from common import *
import os
NOMM = os.environ.get('NOMM') == '1'
NOBAR = os.environ.get('NOBAR') == '1'
XO = os.environ.get('XO') == '1'
NWG4 = 256
def gen_k4():
    a = Asm()
    MAP = {"0": "", "1": "s_lshr_b32 s41, s2, 3\ns_and_b32 s40, s2, 7",
           "2": "s_and_b32 s41, s2, 3\ns_lshl_b32 s41, s41, 3\ns_bfe_u32 s3, s2, 0x30003\ns_add_u32 s41, s41, s3\ns_bfe_u32 s40, s2, 0x10002\ns_lshl_b32 s40, s40, 2\ns_lshr_b32 s3, s2, 6\ns_add_u32 s40, s40, s3"}[os.environ.get("MAP", "0")]
    AA = 64; AB = 80; XF = 96; WF = 128
    VOX = 8; VOW = 12; RX = 16; RWA = 24; RWB = 25
    a(f"""
    s_cmp_ge_u32 s2, {NWG4}
    s_cbranch_scc1 L_k4_end
    s_load_dwordx2 s[4:5], s[0:1], 104
    s_load_dwordx2 s[6:7], s[0:1], 40
    s_load_dwordx2 s[36:37], s[0:1], 72
    s_load_dwordx2 s[38:39], s[0:1], 88
    s_and_b32 s41, s2, 7
    s_lshl_b32 s41, s41, 2
    s_bfe_u32 s3, s2, 0x20003
    s_add_u32 s41, s41, s3
    s_lshr_b32 s40, s2, 5
    {MAP}
    v_lshrrev_b32 v1, 6, v0
    s_nop 0
    v_readfirstlane_b32 s42, v1
    v_and_b32 v2, 63, v0
    s_waitcnt lgkmcnt(0)
    """)
    srd_ws(a, 8, 4, WS_CTXO, 2048*CTX_PITCH)
    srd(a, 12, "s6", "s7", 0x400000)
    srd(a, 16, "s36", "s37", 0x80000)
    srd(a, 20, "s38", "s39", 0x200000)
    srd_ws(a, 24, 4, WS_G, 8192)
    a(f"""
    s_lshl_b32 s46, s41, 1
    s_lshr_b32 s47, s42, 1
    s_add_u32 s46, s46, s47
    s_mul_i32 s46, s46, {36*8192}
    s_and_b32 s47, s42, 1
    s_lshl_b32 s47, s47, 12
    s_add_u32 s46, s46, s47
    v_lshlrev_b32 v5, 4, v2
    v_add_u32 v{VOX}, s46, v5
    """)
    a("""
    v_and_b32 v5, 7, v2
    v_bfe_u32 v6, v2, 4, 1
    v_lshlrev_b32 v6, 2, v6
    v_xor_b32 v5, v5, v6
    v_lshlrev_b32 v5, 4, v5
    s_lshl_b32 s46, s40, 7
    v_add_u32 v5, s46, v5
    v_lshrrev_b32 v6, 3, v2
    s_lshl_b32 s46, s42, 5
    v_add_u32 v6, s46, v6
    """)
    for i in range(4):
        a(f"v_add_u32 v7, {8*i}, v6\nv_lshl_add_u32 v{VOW+i}, v7, 10, v5")
    a(f"""
    s_lshr_b32 s48, s42, 1
    s_and_b32 s49, s42, 1
    v_and_b32 v3, 31, v2
    v_lshrrev_b32 v4, 5, v2
    s_lshl_b32 s46, s48, 13
    v_lshlrev_b32 v5, 4, v2
    v_add_u32 v{RX}, s46, v5
    """)
    a(f"""
    v_bfe_u32 v5, v2, 2, 2
    v_lshrrev_b32 v6, 1, v5
    v_xor_b32 v6, s49, v6
    v_lshlrev_b32 v6, 6, v6
    v_and_b32 v7, 3, v2
    v_lshl_add_u32 v6, v7, 3, v6
    v_bfe_u32 v7, v2, 4, 1
    v_lshl_add_u32 v6, v7, 5, v6
    v_add_u32 v6, 16384, v6
    v_lshl_add_u32 v7, v4, 2, v5
    v_lshl_add_u32 v{RWA}, v7, 7, v6
    v_lshl_add_u32 v7, v4, 3, v5
    v_lshl_add_u32 v{RWB}, v7, 7, v6
    s_mov_b32 s50, 0
    s_mov_b32 s51, 0
    s_lshl_b32 s53, s42, 12
    """)
    NK = 36; NS = 5
    if XO: a(f"s_lshl_b32 s46, s40, 1\ns_lshr_b32 s47, s42, 1\ns_add_u32 s46, s46, s47\ns_mul_i32 s46, s46, {36*8192}\ns_and_b32 s47, s42, 1\ns_lshl_b32 s47, s47, 12\ns_add_u32 s46, s46, s47\nv_lshlrev_b32 v5, 4, v2\nv_add_u32 v{VOW}, s46, v5")
    def loads(k):
        st = k % NS
        if k == 32: a("s_mov_b32 s51, 0")
        wsrd = "s[12:15]" if k < 32 else "s[16:19]"
        a(f"s_add_u32 m0, s53, {st*32768}\ns_nop 0")
        for i in range(4):
            a(f"buffer_load_dwordx4 v{VOX}, s[8:11], s50 offen offset:{i*1024} lds")
        for i in range(4):
            if XO: a(f"s_add_u32 m0, s53, {st*32768 + 16384 + i*1024}\ns_nop 0\nbuffer_load_dwordx4 v{VOW}, s[8:11], s50 offen offset:{i*1024} lds")
            else: a(f"s_add_u32 m0, s53, {st*32768 + 16384 + i*1024}\ns_nop 0\nbuffer_load_dwordx4 v{VOW+i}, {wsrd}, s51 offen lds")
        a("s_add_u32 s50, s50, 8192\ns_add_u32 s51, s51, 0x20000")
    def reads(k, s):
        st = k % NS
        o = (st % 2) * 32768; e = (st // 2) * 18
        rw = RWA if k < 32 else RWB
        sec = 1024 if k < 32 else 512
        a(f"ds_read_b128 {vr(XF+s*4,4)}, v{RX+e} offset:{o+s*1024}")
        a(f"ds_read_b64_tr_b16 {vr(WF+s*4,2)}, v{rw+e} offset:{o+s*2048}\nds_read_b64_tr_b16 {vr(WF+s*4+2,2)}, v{rw+e} offset:{o+s*2048+sec}")
    for s in range(10): a(f"v_add_u32 v{RX+s+18}, 0x10000, v{RX+s}\nv_add_u32 v{RX+s+36}, 0x20000, v{RX+s}")
    a("""
    s_lshl_b32 s46, s41, 6
    s_lshl_b32 s47, s48, 5
    s_add_u32 s46, s46, s47
    v_add_u32 v5, s46, v3
    v_lshlrev_b32 v6, 2, v5
    buffer_load_dword v62, v6, s[24:27], 0 offen
    """)
    for k in range(NS-1): loads(k)
    for k in range(NK):
        a(f"s_waitcnt vmcnt({8*min(NS-2, NK-1-k)})" + ("" if NOBAR else "\ns_barrier"))
        if k + NS-1 < NK: loads(k + NS-1)
        if NOMM: continue
        for s in range(5): reads(k, s)
        acc = vr(AA if k < 32 else AB, 16)
        for s in range(8):
            n_iss = min(8, s + 5)
            a(f"s_waitcnt lgkmcnt({(n_iss - s - 1)*3})")
            first = (k in (0, 32)) and s == 0
            a(f"v_mfma_f32_32x32x16_bf16 {acc}, {vr(WF+s*4,4)}, {vr(XF+s*4,4)}, {'0' if first else acc}")
            if s + 5 < 8: reads(k, s + 5)
    a(f"""
    s_lshl_b32 s46, s41, 6
    s_lshl_b32 s47, s48, 5
    s_add_u32 s46, s46, s47
    v_add_u32 v5, s46, v3
    v_mov_b32 v7, v62
    v_lshlrev_b32 v5, 10, v5
    v_lshl_add_u32 v5, v4, 3, v5
    s_lshl_b32 s46, s40, 7
    s_lshl_b32 s47, s49, 6
    s_add_u32 s46, s46, s47
    v_add_u32 v5, s46, v5
    s_nop 7
    s_waitcnt vmcnt(0)
    v_sub_f32 v6, 1.0, v7
    v_cvt_pk_bf16_f32 v6, v6, v6
    v_and_b32 v6, 0xffff0000, v6
    """)
    def rnd(r0, r1):
        a(f"v_cvt_pk_bf16_f32 v8, v{r0}, v{r1}\nv_lshlrev_b32 v{r0}, 16, v8\nv_and_b32 v{r1}, 0xffff0000, v8")
    for i in range(0, 16, 2):
        rnd(AA+i, AA+i+1); rnd(AB+i, AB+i+1)
        for j in (0, 1):
            a(f"v_mul_f32 v{AA+i+j}, v7, v{AA+i+j}\nv_mul_f32 v{AB+i+j}, v6, v{AB+i+j}")
        rnd(AA+i, AA+i+1); rnd(AB+i, AB+i+1)
        for j in (0, 1): a(f"v_add_f32 v{AA+i+j}, v{AA+i+j}, v{AB+i+j}")
        a(f"v_cvt_pk_bf16_f32 v{XF+i//2}, v{AA+i}, v{AA+i+1}")
    for q in range(4):
        a(f"buffer_store_dwordx2 {vr(XF+2*q,2)}, v5, s[20:23], 0 offen offset:{q*16}")
    a("L_k4_end:\ns_endpgm")
    return a.text()
```

```python
from common import *
from gemm import *
import k3
import struct, os
def f32bits(x): return struct.unpack("<I", struct.pack("<f", x))[0]
NWG2 = 256
O = 64; SS = [128, 160]; P = 192; Q = 208
FS = [36, 40, 44, 48, 52, 56, 60, 240]
KA = 8; VA = 16
VM = 20; VL = 21; VTHR = 22; VDMA = 23
KB = [0, 32768]; VB = [65536, 98304]
INSTR = os.environ.get("INSTR") == "1"
FORCE = os.environ.get("FORCE") == "1"
G0S = int(os.environ.get("G0S", "16"))
def qpro(a):
    ACC = 64; XF = 160; WF = 168
    a(f"""
    s_load_dwordx2 s[4:5], s[0:1], 104
    s_load_dwordx2 s[24:25], s[0:1], 0
    s_load_dwordx2 s[28:29], s[0:1], 16
    s_load_dwordx2 s[6:7], s[0:1], 56
    s_load_dwordx2 s[8:9], s[0:1], 64
    s_and_b32 s40, s2, 7
    s_lshl_b32 s40, s40, 2
    s_bfe_u32 s3, s2, 0x20003
    s_add_u32 s40, s40, s3
    s_lshr_b32 s41, s2, 5
    v_lshrrev_b32 v1, 6, v0
    s_nop 0
    v_readfirstlane_b32 s42, v1
    v_and_b32 v2, 63, v0
    s_lshr_b32 s48, s42, 2
    s_and_b32 s49, s42, 3
    s_sub_u32 s46, 15, s41
    s_cmp_eq_u32 s48, 0
    s_cselect_b32 s46, s46, s41
    s_lshl_b32 s46, s46, 7
    s_lshl_b32 s47, s49, 5
    s_add_u32 s43, s46, s47
    s_lshl_b32 s47, s42, 5
    s_waitcnt lgkmcnt(0)
    s_mov_b32 s26, 0x200000
    s_mov_b32 s27, 0x00020000
    s_mov_b32 s30, 0x180000
    s_movk_i32 s44, 3072
    s_cmp_eq_u32 s48, 0
    s_cselect_b32 s28, s28, s6
    s_cselect_b32 s29, s29, s7
    s_cselect_b32 s30, 0x400000, s30
    s_cselect_b32 s44, 8192, s44
    s_mov_b32 s31, 0x00020000
    s_mov_b32 s32, s4
    s_mov_b32 s33, s5
    s_mov_b32 s34, 0x10000000
    s_mov_b32 s35, 0x00020000
    s_lshl_b32 s52, s44, 5
    """)
    gemm_setup(a, "s43", "s47")
    for b in range(4):
        a(f"v_xor_b32 v5, {b}, v3\nv_lshl_add_u32 v{RW+b}, v5, 6, v4")
    a(f"""
    v_lshrrev_b32 v5, 5, v2
    v_lshl_add_u32 v5, v5, 3, v3
    v_lshlrev_b32 v5, 7, v5
    v_and_b32 v6, 3, v2
    v_lshl_add_u32 v5, v6, 3, v5
    v_bfe_u32 v6, v2, 4, 1
    v_lshl_add_u32 v5, v6, 5, v5
    v_add_u32 v5, {WBASE + 8192}, v5
    v_lshrrev_b32 v6, 1, v3
    v_lshl_add_u32 v{RW+4}, v6, 6, v5
    v_xor_b32 v{RW+5}, 64, v{RW+4}
    s_cmp_eq_u32 s48, 0
    s_cbranch_scc1 L_k2_wq
    v_lshrrev_b32 v4, 3, v2
    v_bfe_u32 v6, v2, 4, 1
    v_lshlrev_b32 v6, 2, v6
    v_and_b32 v5, 7, v2
    v_xor_b32 v5, v5, v6
    v_lshrrev_b32 v6, 1, v5
    v_min_u32 v6, 2, v6
    v_lshlrev_b32 v6, 10, v6
    v_and_b32 v7, 1, v5
    v_lshl_add_u32 v6, v7, 4, v6
    s_lshl_b32 s46, s40, 5
    v_add_u32 v5, s46, v6
    s_lshl_b32 s46, s49, 3
    v_add_u32 v4, s46, v4
    v_mul_lo_u32 v6, v4, s44
    v_add_u32 v{VOW}, v6, v5
    v_mov_b32 v{VOW+1}, v{VOW}
    s_lshl_b32 s54, s49, 10
    s_add_u32 s54, s54, 8192
    s_branch L_k2_wdone
    L_k2_wq:
    v_lshrrev_b32 v4, 4, v2
    v_and_b32 v5, 15, v2
    v_lshlrev_b32 v6, 2, v4
    v_xor_b32 v5, v5, v6
    v_lshlrev_b32 v5, 4, v5
    s_lshl_b32 s46, s40, 8
    v_add_u32 v5, s46, v5
    s_lshl_b32 s46, s49, 3
    v_add_u32 v4, s46, v4
    """)
    for i in range(2):
        a(f"v_add_u32 v6, {4*i}, v4\nv_mul_lo_u32 v6, v6, s44\nv_add_u32 v{VOW+i}, v6, v5")
    a("L_k2_wdone:")
    srd(a, 8, "s8", "s9", 16384)
    a("""
    v_and_b32 v5, 15, v2
    v_lshlrev_b32 v5, 1, v5
    v_lshrrev_b32 v4, 5, v2
    v_lshl_add_u32 v5, v4, 7, v5
    s_lshl_b32 s3, s40, 9
    v_add_u32 v5, s3, v5
    """)
    for j in range(8):
        a(f"buffer_load_ushort v{40+j}, v5, s[8:11], 0 offen offset:{((j//4)*8 + j%4)*32}")
    gemm_prologue(a, True)
    if os.environ.get("XPF", "1") == "1": a("""
    s_lshl_b32 s46, s43, 10
    s_and_b32 s47, s40, 3
    s_lshl_b32 s47, s47, 13
    s_add_u32 s46, s46, s47
    v_lshlrev_b32 v244, 7, v2
    buffer_load_dword v244, v244, s[24:27], s46 offen
    s_cmp_ge_u32 s42, 2
    s_cbranch_scc1 L_k2_nxpf
    s_lshl_b32 s46, s41, 19
    s_lshl_b32 s47, s42, 18
    s_add_u32 s46, s46, s47
    s_lshl_b32 s47, s40, 8
    s_add_u32 s46, s46, s47
    v_lshrrev_b32 v245, 1, v2
    v_lshlrev_b32 v245, 13, v245
    v_and_b32 v246, 1, v2
    v_lshl_add_u32 v245, v246, 7, v245
    buffer_load_dword v245, v245, s[28:31], s46 offen
    L_k2_nxpf:
    """)
    gemm_core(a, 1, [(0,0),(1,0),(2,0),(3,0),(4,0,2048,512),(5,0,2048,512)], ACC, XF, WF, False, None, True)
    a(f"""
    v_and_b32 v3, 31, v2
    v_lshrrev_b32 v4, 5, v2
    s_lshl_b32 s46, s42, 13
    s_add_u32 s46, s46, 98304
    v_lshlrev_b32 v5, 4, v2
    v_add_u32 v5, s46, v5
    s_lshl_b32 s46, s40, 19
    s_add_u32 s46, s46, {hex(WS_K)}
    s_add_u32 s12, s4, s46
    s_addc_u32 s13, s5, 0
    s_mov_b32 s14, 0x80000
    s_mov_b32 s15, 0x00020000
    v_lshlrev_b32 v6, 4, v2
    v_add_u32 v6, s53, v6
    s_mov_b32 m0, s53
    s_barrier
    """)
    for j in range(4): a(f"buffer_load_dwordx4 v6, s[12:15], 0 offen offset:{j*1024} lds")
    for n in range(8, 11):
        nb, hf = n // 2, n % 2
        b = ACC + nb*16 + hf*8; t = XF + (n-8)*4
        for p in range(4): a(f"v_cvt_pk_bf16_f32 v{t+p}, v{b+2*p}, v{b+2*p+1}")
    W = 28; TK = 128; TQ = 144; AF = 48; BF = 52; KACC = 216
    a("v_cmp_lt_u32 vcc, 15, v3\nv_mov_b32 v6, 0\nv_mov_b32 v7, 0x80008000\ns_nop 0\nv_cndmask_b32 v6, v6, v7, vcc")
    for p in range(4):
        a(f"v_lshl_or_b32 v{W+p}, v{41+2*p}, 16, v{40+2*p}\nv_xor_b32 v{W+p}, v{W+p}, v6")
    a(f"""
    s_nop 1
    v_mfma_f32_32x32x16_bf16 {vr(TK,16)}, {vr(W,4)}, {vr(XF+4,4)}, 0
    """)
    for n in range(8):
        nb, hf = n // 2, n % 2
        b = ACC + nb*16 + hf*8; t = Q + n*4
        for p in range(4): a(f"v_cvt_pk_bf16_f32 v{t+p}, v{b+2*p}, v{b+2*p+1}")
        a(f"ds_write_b128 v5, {vr(t,4)} offset:{n*1024}")
    a(f"""
    s_mov_b32 s56, s40
    s_mov_b32 s40, {k3.LOG2E}
    s_lshl_b32 s28, s42, 12
    s_add_u32 s28, s28, 32768
    v_lshlrev_b32 v33, 6, v3
    v_add_u32 v33, s28, v33
    v_lshl_add_u32 v34, v4, 3, v33
    v_lshl_add_u32 v33, v4, 4, v33
    v_bfe_u32 v7, v2, 2, 2
    v_lshl_add_u32 v6, v4, 3, v7
    v_lshlrev_b32 v6, 6, v6
    v_and_b32 v7, 3, v2
    v_lshl_add_u32 v6, v7, 3, v6
    v_bfe_u32 v7, v2, 4, 1
    v_lshl_add_u32 v6, v7, 5, v6
    v_add_u32 v35, s28, v6
    v_mov_b32 v40, 0
    v_mov_b32 v41, 0
    v_mov_b32 v42, 0
    v_mov_b32 v43, 0
    v_mov_b32 v7, 0x3f80
    v_cmp_eq_u32 vcc, 0, v4
    s_nop 1
    v_cndmask_b32 v40, v40, v7, vcc
    ds_write_b128 v33, v[40:43] offset:{2048+32}
    ds_write_b128 v33, {vr(XF+8,4)} offset:2048
    """)
    k3.rnd16(a, TK, 44)
    k3.softmax16(a, TK, 44)
    for p in range(8): a(f"v_cvt_pk_bf16_f32 v{64+p}, v{TK+2*p}, v{TK+2*p+1}")
    for q in range(4): a(f"ds_write_b64 v34, {vr(64+2*q,2)} offset:{q*16}")
    a("s_waitcnt lgkmcnt(0)")
    for ks in range(2):
        a(f"""
        ds_read_b64_tr_b16 {vr(AF+ks*8,2)}, v35 offset:{ks*1024}
        ds_read_b64_tr_b16 {vr(AF+ks*8+2,2)}, v35 offset:{ks*1024+256}
        ds_read_b64_tr_b16 {vr(BF+ks*8,2)}, v35 offset:{2048+ks*1024}
        ds_read_b64_tr_b16 {vr(BF+ks*8+2,2)}, v35 offset:{2048+ks*1024+256}
        """)
    a("s_waitcnt lgkmcnt(0)")
    for ks in range(2):
        a(f"v_mfma_f32_32x32x16_bf16 {vr(KACC,16)}, {vr(AF+ks*8,4)}, {vr(BF+ks*8,4)}, {'0' if ks==0 else vr(KACC,16)}")
    a(f"""
    s_lshl_b32 s46, s56, 11
    s_add_u32 s46, s46, s43
    v_add_u32 v6, s46, v3
    v_lshlrev_b32 v6, 5, v6
    v_lshl_add_u32 v6, v4, 4, v6
    s_mov_b32 s47, {hex(WS_QKVB)}
    buffer_store_dwordx4 {vr(XF,4)}, v6, s[32:35], s47 offen sc1
    s_nop 7
    s_nop 7
    v_lshlrev_b32 v5, 4, v2
    v_add_u32 v6, s28, v5
    """)
    for q in range(4): a(f"ds_write_b128 v6, {vr(KACC+q*4,4)} offset:{32768+q*1024}")
    a(f"""
    s_waitcnt lgkmcnt(0)
    s_barrier
    s_cmp_ge_u32 s42, 4
    s_cbranch_scc1 L_k2_nored
    s_lshl_b32 s3, s42, 10
    v_add_u32 v5, s3, v5
    v_add_u32 v7, 0x8000, v5
    """)
    for w in range(8): a(f"ds_read_b128 {vr(64+w*4,4)}, v7 offset:{32768+w*4096}")
    a("s_waitcnt lgkmcnt(0)")
    for i in range(4):
        a(f"""v_add_f32 v{64+i}, v{64+i}, v{68+i}
        v_add_f32 v{72+i}, v{72+i}, v{76+i}
        v_add_f32 v{80+i}, v{80+i}, v{84+i}
        v_add_f32 v{88+i}, v{88+i}, v{92+i}
        v_add_f32 v{64+i}, v{64+i}, v{72+i}
        v_add_f32 v{80+i}, v{80+i}, v{88+i}
        v_add_f32 v{64+i}, v{64+i}, v{80+i}""")
    a(f"""
    s_lshl_b32 s3, s56, 3
    s_add_u32 s3, s3, s41
    s_lshl_b32 s3, s3, 12
    s_add_u32 s3, s3, {hex(WS_KVP)}
    buffer_store_dwordx4 v[64:67], v5, s[32:35], s3 offen sc1
    L_k2_nored:
    s_barrier
    """)
PART = 160; QB = 176; WPH = 180; GX = 208; GW = 212
def ob_qload(a):
    a(f"""
    s_lshl_b32 s3, s24, 11
    s_add_u32 s3, s3, s82
    v_add_u32 v6, s3, v3
    v_lshlrev_b32 v6, 5, v6
    v_lshl_add_u32 v6, v4, 4, v6
    s_mov_b32 s3, {hex(WS_QKVB)}
    buffer_load_dwordx4 {vr(QB,4)}, v6, s[64:67], s3 offen sc1
    """)
def ob_tok(a, j):
    a(f"""
    s_sub_u32 s82, 15, {j}
    s_cmp_eq_u32 s27, 0
    s_cselect_b32 s82, s82, {j}
    s_lshl_b32 s82, s82, 7
    s_lshl_b32 s3, s28, 5
    s_add_u32 s82, s82, s3
    """)
def ob_pre(a):
    a(f"""
    s_cmp_eq_u32 s36, 0
    s_cbranch_scc1 L_k2_nopf
    v_and_b32 v3, 31, v2
    v_lshrrev_b32 v4, 5, v2
    s_lshl_b32 s83, s2, 3
    s_add_u32 s83, s83, s26
    s_lshl_b32 s3, s83, 10
    v_lshlrev_b32 v6, 4, v2
    buffer_load_dwordx4 {vr(GX,4)}, v6, s[72:75], s3 offen
    buffer_load_dwordx4 {vr(GW,4)}, v6, s[76:79], 0 offen
    s_bitcmp0_b32 s80, 0
    s_cbranch_scc1 L_k2_nopf
    """)
    ob_tok(a, "s25")
    ob_qload(a)
    a("""
    v_and_b32 v5, 15, v3
    v_lshlrev_b32 v5, 1, v5
    v_lshl_add_u32 v5, v4, 7, v5
    s_lshl_b32 s3, s24, 9
    v_add_u32 v5, s3, v5
    """)
    for j in range(8):
        a(f"buffer_load_ushort v{WPH+j}, v5, s[68:71], 0 offen offset:{((j//4)*8 + j%4)*32}")
    a(f"""
    s_lshl_b32 s3, s24, 15
    s_lshl_b32 s37, s27, 14
    s_add_u32 s3, s3, s37
    s_lshl_b32 s37, s28, 10
    s_add_u32 s3, s3, s37
    s_add_u32 s3, s3, {hex(WS_KVP)}
    v_lshlrev_b32 v5, 4, v2
    v_cmp_gt_u32 vcc, 17, v3
    s_nop 1
    s_mov_b64 exec, vcc
    """)
    for c in range(4):
        a(f"buffer_load_dwordx4 {vr(PART+c*4,4)}, v5, s[64:67], s3 offen sc1\ns_add_u32 s3, s3, 4096")
    a("s_mov_b64 exec, -1\nL_k2_nopf:")
def ob_post(a):
    W = 36; T = 40; PF = 48; KVF = 56; D2 = 128; EX = 64
    a(f"""
    s_cmp_eq_u32 s36, 0
    s_cbranch_scc1 L_k2_obskip
    s_mov_b32 s40, {k3.LOG2E}
    s_bitcmp0_b32 s80, 0
    s_cbranch_scc1 L_k2_gate
    """)
    for r in range(4):
        a(f"""v_add_f32 v{PART+r}, v{PART+r}, v{PART+4+r}
        v_add_f32 v{PART+8+r}, v{PART+8+r}, v{PART+12+r}
        v_add_f32 v{PART+r}, v{PART+r}, v{PART+8+r}""")
    a(f"""
    v_lshlrev_b32 v5, 4, v2
    s_lshl_b32 s3, s26, 10
    v_add_u32 v6, s3, v5
    ds_write_b128 v6, {vr(PART,4)}
    v_cmp_lt_u32 vcc, 15, v3
    v_mov_b32 v6, 0
    v_mov_b32 v7, 0x80008000
    s_nop 0
    v_cndmask_b32 v6, v6, v7, vcc
    """)
    for p in range(4):
        a(f"v_lshl_or_b32 v{W+p}, v{WPH+1+2*p}, 16, v{WPH+2*p}\nv_xor_b32 v{W+p}, v{W+p}, v6")
    a("s_waitcnt lgkmcnt(0)\ns_barrier")
    for w in range(8): a(f"ds_read_b128 {vr(EX+w*4,4)}, v5 offset:{w*1024}")
    a("L_k2_obloop:")
    a(f"""
    v_mfma_f32_32x32x16_bf16 {vr(D2,16)}, {vr(W,4)}, {vr(QB,4)}, 0
    s_lshr_b32 s3, s82, 5
    s_mul_i32 s3, s3, {36*8192}
    s_lshl_b32 s37, s24, 10
    s_add_u32 s3, s3, s37
    s_add_u32 s84, s3, {32*8192}
    s_waitcnt lgkmcnt(0)
    """)
    for r in range(16): a(f"v_add_f32 v{EX+32+r}, v{EX+r}, v{EX+16+r}")
    for p in range(8): a(f"v_cvt_pk_bf16_f32 v{KVF+p}, v{EX+32+2*p}, v{EX+33+2*p}")
    k3.rnd16(a, D2, T)
    k3.softmax16(a, D2, T)
    for p in range(8): a(f"v_cvt_pk_bf16_f32 v{PF+p}, v{D2+2*p}, v{D2+2*p+1}")
    a(f"""
    s_nop 1
    v_mfma_f32_32x32x16_bf16 {vr(D2,16)}, {vr(KVF,4)}, {vr(PF,4)}, 0
    v_mfma_f32_32x32x16_bf16 {vr(D2,16)}, {vr(KVF+4,4)}, {vr(PF+4,4)}, {vr(D2,16)}
    s_nop 15
    s_nop 3
    v_mov_b32 v{T}, v{D2+8}
    v_mov_b32 v{T+1}, v{D2+8}
    s_nop 1
    v_permlane32_swap_b32 v{T}, v{T+1}
    s_nop 1
    v_cvt_pk_bf16_f32 v{T}, v{T}, v{T}
    v_and_b32 v{T}, 0xffff0000, v{T}
    v_add_f32 v{T}, 0x358637bd, v{T}
    v_cvt_pk_bf16_f32 v{T}, v{T}, v{T}
    v_and_b32 v{T}, 0xffff0000, v{T}
    v_rcp_f32 v{T}, v{T}
    """)
    for i in range(4):
        a(f"v_cvt_pk_bf16_f32 v{T+1}, v{D2+2*i}, v{D2+2*i+1}\nv_lshlrev_b32 v{D2+2*i}, 16, v{T+1}\nv_and_b32 v{D2+2*i+1}, 0xffff0000, v{T+1}")
    for i in range(8): a(f"v_mul_f32 v{D2+i}, v{D2+i}, v{T}")
    for p in range(4): a(f"v_cvt_pk_bf16_f32 v{T+4+p}, v{D2+2*p}, v{D2+2*p+1}")
    a(f"""
    buffer_store_dwordx4 {vr(T+4,4)}, v5, s[20:23], s84 offen
    s_lshr_b32 s3, s80, 8
    s_cmp_eq_u32 s3, 0
    s_cbranch_scc1 L_k2_gate
    s_ff1_i32_b32 s85, s3
    s_add_u32 s3, s85, 8
    s_bitset0_b32 s80, s3
    """)
    ob_tok(a, "s85")
    ob_qload(a)
    a("s_waitcnt vmcnt(0)\ns_branch L_k2_obloop\nL_k2_gate:\nv_mov_b32 v8, 0\nv_mov_b32 v9, 0")
    for i in range(4):
        a(f"""
        v_lshlrev_b32 v10, 16, v{GX+i}
        v_lshlrev_b32 v11, 16, v{GW+i}
        v_fmac_f32 v8, v10, v11
        v_and_b32 v10, 0xffff0000, v{GX+i}
        v_and_b32 v11, 0xffff0000, v{GW+i}
        v_fmac_f32 v9, v10, v11
        """)
    a("v_add_f32 v8, v8, v9")
    for off in (0x041F, 0x081F, 0x101F, 0x201F, 0x401F):
        a(f"ds_swizzle_b32 v9, v8 offset:{hex(off)}\ns_waitcnt lgkmcnt(0)\nv_add_f32 v8, v8, v9")
    a(f"""
    v_mov_b32 v9, v8
    s_nop 1
    v_permlane32_swap_b32 v8, v9
    s_nop 1
    v_add_f32 v8, v8, v9
    v_cvt_pk_bf16_f32 v8, v8, v8
    v_and_b32 v8, 0xffff0000, v8
    v_mul_f32 v8, s40, v8
    v_sub_f32 v8, 0, v8
    v_exp_f32 v8, v8
    s_nop 0
    v_add_f32 v8, 1.0, v8
    v_rcp_f32 v8, v8
    s_nop 0
    v_cvt_pk_bf16_f32 v8, v8, v8
    v_and_b32 v8, 0xffff0000, v8
    s_lshl_b32 s3, s83, 2
    s_add_u32 s3, s3, {hex(WS_G)}
    s_mov_b64 exec, 1
    buffer_store_dword v8, v247, s[64:67], s3 offen
    s_mov_b64 exec, -1
    L_k2_obskip:
    """)
def gen_k2():
    a = Asm()
    def stamp():
        if INSTR: a("s_memtime s[60:61]\ns_waitcnt lgkmcnt(0)\ns_and_b32 s59, s59, 63\ns_mov_b32 m0, s59\ns_nop 3\nv_writelane_b32 v244, s60, m0\ns_add_u32 s59, s59, 1")
    a(f"""
    s_cmp_ge_u32 s2, {NWG2}
    s_cbranch_scc1 L_k2_end
    """)
    qpro(a)
    a(f"""
    s_load_dwordx2 s[4:5], s[0:1], 104
    s_load_dwordx2 s[72:73], s[0:1], 0
    s_load_dwordx2 s[68:69], s[0:1], 64
    s_load_dwordx2 s[76:77], s[0:1], 80
    s_load_dwordx2 s[86:87], s[0:1], 40
    s_load_dwordx2 s[88:89], s[0:1], 72
    s_and_b32 s24, s2, 7
    s_lshl_b32 s24, s24, 2
    s_bfe_u32 s3, s2, 0x20003
    s_add_u32 s24, s24, s3
    s_lshr_b32 s25, s2, 5
    v_lshrrev_b32 v1, 6, v0
    s_nop 0
    v_readfirstlane_b32 s26, v1
    v_and_b32 v2, 63, v0
    s_lshr_b32 s27, s26, 2
    s_and_b32 s28, s26, 3
    s_lshl_b32 s34, s26, 12
    s_mov_b32 s35, {hex(f32bits(128**-0.5 * 1.4426950408889634))}
    s_lshl_b32 s3, s24, 19
    s_waitcnt lgkmcnt(0)
    s_add_u32 s6, s4, s3
    s_addc_u32 s7, s5, 0
    """)
    srd_ws(a, 8, 6, WS_K, 0x80000)
    srd_ws(a, 12, 6, WS_V, 0x80000)
    srd_ws(a, 16, 6, WS_Q, 0x80000)
    srd_ws(a, 20, 4, WS_CTXO, 2048*CTX_PITCH)
    srd(a, 64, "s4", "s5", 0x10000000)
    a(f"""
    s_movk_i32 s70, 16384
    s_mov_b32 s71, 0x00020000
    s_mov_b32 s74, 0x200000
    s_mov_b32 s75, 0x00020000
    s_movk_i32 s78, 1024
    s_mov_b32 s79, 0x00020000
    s_lshl_b32 s81, s24, 8
    s_add_u32 s81, s81, {hex(WS_CNT)}
    s_mov_b32 s80, 0
    v_mov_b32 v245, 1
    v_mov_b32 v247, 0
    s_add_u32 s3, s25, 8
    s_lshl_b32 s3, 1, s3
    v_mov_b32 v246, s3
    v_and_b32 v3, 31, v2
    v_lshrrev_b32 v4, 5, v2
    v_lshlrev_b32 v{VDMA}, 4, v2
    v_add_u32 v{VDMA}, s34, v{VDMA}
    s_lshl_b32 s3, s27, 14
    v_lshlrev_b32 v5, 4, v2
    v_add_u32 v{KA}, s3, v5
    v_add_u32 v{VA}, 0x10000, v{KA}
    s_lshl_b32 s3, s28, 5
    s_lshl_b32 s37, s27, 6
    s_sub_u32 s3, s3, s37
    v_lshlrev_b32 v5, 2, v4
    v_sub_u32 v5, v3, v5
    v_add_u32 v{VTHR}, s3, v5
    s_mov_b32 s36, 0
    s_mov_b32 s59, 0
    """)
    if INSTR: a("v_mov_b32 v244, 0")

    def dma(srdreg, soff, buf):
        a(f"s_add_u32 m0, s34, {buf}\ns_nop 0")
        for j in range(4):
            a(f"buffer_load_dwordx4 v{VDMA}, s[{srdreg}:{srdreg+3}], {soff} offen offset:{j*1024} lds")
    def dpiece(srdreg, soff, buf, j, need):
        if need:
            l = a.label("nd")
            a(f"s_cmp_lt_u32 s38, {need}\ns_cbranch_scc1 {l}")
        a(f"s_add_u32 m0, s34, {buf}\ns_nop 0\nbuffer_load_dwordx4 v{VDMA}, s[{srdreg}:{srdreg+3}], {soff} offen offset:{j*1024} lds")
        if need: a(f"{l}:")
    def rd_item(it, slot, parv, park):
        k, s, b = it
        if k == "pv": a(f"ds_read_b128 {vr(FS[slot],4)}, v{VA} offset:{VB[parv]-65536+s*4096+b*1024}")
        else: a(f"ds_read_b128 {vr(FS[slot],4)}, v{KA} offset:{KB[park]+b*8192+s*1024}")
    QKI = [("qk", s, kb) for s in range(8) for kb in range(2)]
    PVI = [("pv", s, db) for s in range(4) for db in range(4)]
    def pre(items, parv, park):
        for i in range(8): rd_item(items[i], i, parv, park)
    def MM(items, parv, park, fill=None, ld=True, g1=False, mid=None, pre_mid=None):
        n = len(items); SQ = SS[park]; qi = 0
        for i, it in enumerate(items):
            k, s, b = it
            if mid is not None and i == 16:
                a(f"{mid}:")
                for x in pre_mid: a(x)
            a(f"s_waitcnt lgkmcnt({min(7, n-1-i)})")
            if k == "pv":
                if fill is not None and s == 0 and b == 0 and not g1: a("s_nop 1")
                acc = vr(O+b*16, 16)
                a(f"v_mfma_f32_32x32x16_bf16 {acc}, {vr(FS[i%8],4)}, {vr(P+s*4,4)}, {acc}")
            else:
                acc = vr(SQ+b*16, 16)
                a(f"v_mfma_f32_32x32x16_bf16 {acc}, {vr(FS[i%8],4)}, {vr(Q+s*4,4)}, {'0' if s==0 else acc}")
            if i + 8 < n: rd_item(items[i+8], i % 8, parv, park)
            if k == "qk" and fill is not None:
                for x in fill[qi]: a(x)
                qi += 1
            i0 = i - (G0S if not g1 else 0)
            if ld and 0 <= i0 < 16 and i0 % 2 == 1:
                j = i0 // 2
                if j < 4: dpiece(12, "s39" if g1 else "s33", VB[parv ^ 1], j, 0)
                else: dpiece(8, "s32", KB[park ^ 1], j - 4, 2)
    def SM_parts(S):
        lr = a.label("noresc")
        A = [f"v_max3_f32 v24, v{S}, v{S+1}, v{S+2}", f"v_max3_f32 v25, v{S+16}, v{S+17}, v{S+18}"]
        for i in range(3, 15, 2):
            A += [f"v_max3_f32 v24, v24, v{S+i}, v{S+i+1}", f"v_max3_f32 v25, v25, v{S+16+i}, v{S+16+i+1}"]
        A2 = f"""v_max3_f32 v24, v24, v{S+15}, v25
        v_max_f32 v24, v24, v{S+31}
        v_mov_b32 v25, v24
        s_nop 1
        v_permlane32_swap_b32 v24, v25
        s_nop 1
        v_max_f32 v24, v24, v25
        v_mul_f32 v24, s35, v24
        v_max_f32 v25, v{VM}, v24
        v_sub_f32 v26, v25, v{VM}
        v_cmp_lt_f32 vcc, 0x41000000, v26
        s_cbranch_vccz {lr}
        v_sub_f32 v26, 0, v26
        v_exp_f32 v26, v26
        v_mov_b32 v{VM}, v25
        s_nop 0
        v_mov_b32 v27, v26
        v_mul_f32 v{VL}, v{VL}, v26
        """ + "\n".join(f"v_pk_mul_f32 {vr(O+i,2)}, {vr(O+i,2)}, v[26:27]" for i in range(0, 64, 2)) + f"\n{lr}:\nv_sub_f32 v28, 0, v{VM}"
        B = []
        for p in range(17):
            if p < 16:
                B += [f"v_fma_f32 v{S+2*p}, v{S+2*p}, s35, v28", f"v_fma_f32 v{S+2*p+1}, v{S+2*p+1}, s35, v28"]
            if p >= 1:
                q = p - 1
                B += [f"v_exp_f32 v{S+2*q}, v{S+2*q}", f"v_exp_f32 v{S+2*q+1}, v{S+2*q+1}"]
            if p >= 2:
                q = p - 2
                B += [f"v_add_f32 v{VL}, v{VL}, v{S+2*q}", f"v_add_f32 v29, v29, v{S+2*q+1}" if q else f"v_mov_b32 v29, v{S+1}",
                      f"v_cvt_pk_bf16_f32 v{P+q}, v{S+2*q}, v{S+2*q+1}"]
        B += ["s_nop 0", f"v_add_f32 v{VL}, v{VL}, v{S+30}", f"v_add_f32 v29, v29, v{S+31}", f"v_cvt_pk_bf16_f32 v{P+15}, v{S+30}, v{S+31}", f"v_add_f32 v{VL}, v{VL}, v29"]
        return A, A2, B
    def mask(S):
        a("v_mov_b32 v24, 0xf149f2ca")
        for kb in range(2):
            for r in range(16):
                c = kb*32 + (r//4)*8 + r % 4
                a(f"v_cmp_gt_i32 vcc, {c}, v{VTHR}\ns_nop 1\nv_cndmask_b32 v{S+kb*16+r}, v{S+kb*16+r}, v24, vcc")
    def top():
        a(f"""
        s_waitcnt vmcnt(0)
        s_barrier
        s_add_u32 s3, s31, 1
        s_lshl_b32 s33, s3, 15
        s_sub_u32 s38, s30, s3
        s_add_u32 s3, s31, 2
        s_lshl_b32 s32, s3, 15
        s_lshl_b32 s39, s31, 15
        s_cmp_eq_u32 s38, 0
        """)
    def publish(force_sel):
        l = a.label("pub")
        a(f"s_or_b32 s3, s26, s36\ns_cmp_lg_u32 s3, 0\ns_cbranch_scc1 {l}")
        if FORCE: a(f"s_cmp_{'eq' if force_sel == 0 else 'lg'}_u32 s25, 0\ns_cbranch_scc1 {l}")
        a(f"s_mov_b64 exec, 1\nbuffer_atomic_add v245, v247, s[64:67], s81 offen sc0\ns_mov_b64 exec, -1\n{l}:")
    def check():
        lp = a.label("wpf")
        if os.environ.get("NOPF") != "1": a(f"""
        s_cmp_lg_u32 s36, 0
        s_cbranch_scc1 {lp}
        s_lshl_b32 s83, s2, 2
        s_add_u32 s83, s83, s28
        s_cmp_ge_u32 s83, 576
        s_cbranch_scc1 {lp}
        s_sub_u32 s3, s83, 512
        s_mov_b32 s94, 0x400000
        s_cmp_lt_u32 s83, 512
        s_cselect_b32 s92, s86, s88
        s_cselect_b32 s93, s87, s89
        s_cselect_b32 s94, s94, 0x80000
        s_cselect_b32 s3, s83, s3
        s_mov_b32 s95, 0x00020000
        s_lshl_b32 s3, s3, 13
        v_lshlrev_b32 v244, 7, v2
        buffer_load_dword v244, v244, s[92:95], s3 offen
        {lp}:
        """)
        if FORCE: publish(1)
        l = a.label("chk")
        a(f"s_or_b32 s3, s26, s36\ns_cmp_lg_u32 s3, 0\ns_cbranch_scc1 {l}")
        a(f"s_mov_b64 exec, 1\nbuffer_atomic_or v246, v247, s[64:67], s81 offen sc0\ns_mov_b64 exec, -1\n{l}:")
    a("L_k2_pass:")
    a(f"""
    s_sub_u32 s29, 15, s25
    s_cmp_eq_u32 s36, 0
    s_cselect_b32 s29, s29, s25
    s_add_u32 s30, s29, 1
    s_lshl_b32 s3, s36, 15
    s_lshl_b32 s37, s28, 13
    s_add_u32 s3, s3, s37
    s_add_u32 s3, s3, 98304
    v_lshlrev_b32 v5, 4, v2
    v_add_u32 v5, s3, v5
    """)
    for s in range(8): a(f"ds_read_b128 {vr(Q+s*4,4)}, v5 offset:{s*1024}")
    dma(12, "0", VB[0])
    a(f"v_mov_b32 v{VM}, 0xe0ad78ec\nv_mov_b32 v{VL}, 0")
    for i in range(64): a(f"v_mov_b32 v{O+i}, 0")
    lk = a.label("nok1"); lk2 = a.label("nok1b")
    a(f"s_cmp_lt_u32 s30, 2\ns_cbranch_scc1 {lk}\ns_mov_b32 s32, 32768")
    dma(8, "s32", KB[1])
    a(f"s_waitcnt vmcnt(8)\ns_branch {lk2}\n{lk}:\ns_waitcnt vmcnt(4)\n{lk2}:")
    a("s_mov_b32 s31, 0\ns_waitcnt lgkmcnt(0)\ns_barrier")
    publish(0)
    pre(QKI, 0, 0)
    MM(QKI, 0, 0, None, False)
    a("s_cmp_lg_u32 s27, 0\ns_cbranch_scc1 L_k2_g1loop")
    a("L_k2_loop:")
    def k0pf():
        l = a.label("k0pf")
        a(f"s_cmp_lg_u32 s36, 0\ns_cbranch_scc1 {l}")
        dma(8, "0", KB[0])
        a(f"{l}:")
    def mkfill(A, A2, B):
        fill = [[] for _ in range(16)]
        fill[0] = A[8:12]; fill[1] = A[12:] + [A2]
        per = (len(B) + 13) // 14
        for i in range(14): fill[2+i] = B[i*per:(i+1)*per]
        return fill
    for par in range(2):
        top()
        a(f"s_cbranch_scc1 L_k2_tail{par}")
        stamp()
        items = QKI + PVI
        pre(items, par, par ^ 1)
        A, A2, B = SM_parts(SS[par])
        for x in A[:8]: a(x)
        MM(items, par, par ^ 1, mkfill(A, A2, B))
        a("s_add_u32 s31, s31, 1")
        stamp()
    a("s_branch L_k2_loop")
    for par in range(2):
        a(f"L_k2_tail{par}:")
        pre(PVI, par, par ^ 1)
        check()
        k0pf()
        a("s_nop 7")
        mask(SS[par])
        A, A2, B = SM_parts(SS[par])
        for x in A: a(x)
        a(A2)
        for x in B: a(x)
        a("s_nop 1")
        MM(PVI, par, par ^ 1, None, False)
        a("s_barrier\ns_branch L_k2_merge")
    a("L_k2_g1first:")
    pre(QKI, 1, 1)
    for j in range(4): dpiece(8, "s32", KB[0], j, 2)
    a("s_branch L_k2_g1qk0")
    a("L_k2_g1loop:")
    for par in range(2):
        top()
        a(f"s_cbranch_scc1 L_k2_g1tail{par}")
        stamp()
        if par == 0: a("s_cmp_eq_u32 s31, 0\ns_cbranch_scc1 L_k2_g1first")
        items = PVI + QKI
        pre(items, par ^ 1, par ^ 1)
        A, A2, B = SM_parts(SS[par])
        MM(items, par ^ 1, par ^ 1, mkfill(A, A2, B), True, True, f"L_k2_g1qk{par}", A[:8])
        a("s_add_u32 s31, s31, 1")
        stamp()
    a("s_branch L_k2_g1loop")
    for par in range(2):
        a(f"L_k2_g1tail{par}:")
        for j in range(4): dpiece(12, "s39", VB[par], j, 0)
        k0pf()
        if par == 0: a("s_cmp_eq_u32 s31, 0\ns_cbranch_scc1 L_k2_g1t0")
        pre(PVI, par ^ 1, par ^ 1)
        MM(PVI, par ^ 1, par ^ 1, None, False)
        if par == 0: a("L_k2_g1t0:")
        a("s_nop 7")
        mask(SS[par])
        A, A2, B = SM_parts(SS[par])
        for x in A: a(x)
        a(A2)
        for x in B: a(x)
        a("s_waitcnt vmcnt(0)\ns_barrier")
        pre(PVI, par, par ^ 1)
        MM(PVI, par, par ^ 1, None, False)
        if par == 0: a("s_branch L_k2_merge")
    a("L_k2_merge:")
    S = SS[0]
    ob_pre(a)
    a(f"""
    s_nop 15
    v_mov_b32 v25, v{VL}
    s_nop 1
    v_permlane32_swap_b32 v{VL}, v25
    s_nop 1
    v_add_f32 v{VL}, v{VL}, v25
    s_lshl_b32 s3, s26, 13
    s_add_u32 s3, s3, 65536
    v_lshlrev_b32 v5, 4, v2
    v_add_u32 v5, s3, v5
    s_lshl_b32 s3, s26, 9
    v_lshlrev_b32 v6, 2, v2
    v_add_u32 v6, s3, v6
    s_xor_b32 s37, s26, 4
    s_barrier
    ds_write_b32 v6, v{VM} offset:32768
    ds_write_b32 v6, v{VL} offset:33024
    s_or_b32 s3, s26, s36
    s_cmp_lg_u32 s3, 0
    s_cbranch_scc1 L_k2_nofl
    s_waitcnt vmcnt(0)
    v_and_b32 v24, 0xff, v245
    v_and_b32 v25, 0xff00, v245
    v_cmp_eq_u32 vcc, 7, v24
    v_and_b32 v24, 0xff, v246
    v_cndmask_b32 v25, 0, v25, vcc
    v_cmp_eq_u32 vcc, 8, v24
    v_or_b32 v24, 1, v25
    s_nop 0
    v_cndmask_b32 v25, v25, v24, vcc
    s_mov_b64 exec, 1
    ds_write_b32 v247, v25 offset:36864
    s_mov_b64 exec, -1
    L_k2_nofl:
    s_cmp_eq_u32 s27, 0
    s_cbranch_scc1 L_k2_m0
    """)
    def merge(g):
        lw = a.label("mw")
        keep = O + (0 if g == 0 else 32); send = O + (32 if g == 0 else 0)
        for q in range(8): a(f"ds_write_b128 v5, {vr(send+q*4,4)} offset:{q*1024}")
        a(f"""
        v_xor_b32 v5, 0x8000, v5
        v_xor_b32 v6, 0x800, v6
        s_waitcnt lgkmcnt(0)
        s_barrier
        ds_read_b32 v30, v247 offset:36864
        ds_read_b32 v24, v6 offset:32768
        ds_read_b32 v25, v6 offset:33024
        """)
        for q in range(8): a(f"ds_read_b128 {vr(S+q*4,4)}, v5 offset:{q*1024}")
        a(f"""
        s_waitcnt lgkmcnt(8)
        v_max_f32 v26, v{VM}, v24
        v_sub_f32 v27, v{VM}, v26
        v_sub_f32 v28, v24, v26
        v_exp_f32 v27, v27
        v_exp_f32 v28, v28
        s_nop 0
        v_mul_f32 v29, v27, v{VL}
        v_fma_f32 v29, v28, v25, v29
        v_rcp_f32 v29, v29
        s_nop 0
        v_mul_f32 v27, v27, v29
        v_mul_f32 v28, v28, v29
        s_lshl_b32 s3, s29, 2
        s_add_u32 s3, s3, s28
        s_mul_i32 s3, s3, {36*8192}
        s_lshl_b32 s37, s24, 13
        s_add_u32 s3, s3, s37
        s_add_u32 s3, s3, {g*4096}
        v_lshlrev_b32 v5, 4, v2
        s_waitcnt lgkmcnt(0)
        v_readfirstlane_b32 s37, v30
        s_cmp_eq_u32 s36, 0
        s_cselect_b32 s80, s37, s80
        s_cbranch_scc1 {lw}
        s_waitcnt vmcnt(0)
        {lw}:
        """)
        for i in range(32):
            a(f"v_mul_f32 v{keep+i}, v27, v{keep+i}\nv_fma_f32 v{keep+i}, v28, v{S+i}, v{keep+i}")
        for q in range(4):
            for p in range(4):
                a(f"v_cvt_pk_bf16_f32 v{P+q*4+p}, v{keep+q*8+2*p}, v{keep+q*8+2*p+1}")
            a(f"buffer_store_dwordx4 {vr(P+q*4,4)}, v5, s[20:23], s3 offen offset:{q*1024}")
    merge(1)
    a("s_branch L_k2_mdone\nL_k2_m0:")
    merge(0)
    a("L_k2_mdone:")
    ob_post(a)
    if INSTR:
        a(f"""
        s_cmp_lg_u32 s36, 0
        s_cbranch_scc1 L_nodump
        s_lshl_b32 s3, s2, 3
        s_add_u32 s3, s3, s26
        s_lshl_b32 s3, s3, 8
        v_lshlrev_b32 v5, 2, v2
        v_add_u32 v5, s3, v5
        s_add_u32 s64, s4, {hex(100<<20)}
        s_addc_u32 s65, s5, 0
        s_mov_b32 s66, 0x1000000
        s_mov_b32 s67, 0x00020000
        buffer_store_dword v244, v5, s[64:67], 0 offen
        L_nodump:
        """)
    a("""
    s_barrier
    s_add_u32 s36, s36, 1
    s_cmp_lt_u32 s36, 2
    s_cbranch_scc1 L_k2_pass
    """)
    a("L_k2_end:\ns_endpgm")
    return a.text()
```

```python
from common import *
from gemm import *
import k2
import os
NWG1 = 256
def pf(a):
    if os.environ.get("NOPF") == "1": return
    l = a.label("pf")
    a(f"""
    s_lshl_b32 s70, s2, 3
    s_add_u32 s70, s70, s42
    s_cmp_ge_u32 s70, 1920
    s_cbranch_scc1 {l}
    s_sub_u32 s71, s70, 512
    s_mov_b32 s74, 0x400000
    s_cmp_lt_u32 s70, 512
    s_cselect_b32 s72, s64, s66
    s_cselect_b32 s73, s65, s67
    s_cselect_b32 s74, 0x200000, s74
    s_cselect_b32 s71, s70, s71
    s_sub_u32 s3, s70, 1536
    s_cmp_ge_u32 s70, 1536
    s_cselect_b32 s72, s68, s72
    s_cselect_b32 s73, s69, s73
    s_cselect_b32 s74, 0x180000, s74
    s_cselect_b32 s71, s3, s71
    s_mov_b32 s75, 0x00020000
    s_lshl_b32 s71, s71, 12
    v_lshlrev_b32 v6, 6, v2
    buffer_load_dword v240, v6, s[72:75], s71 offen
    {l}:
    s_cmp_lg_u32 s70, 1920
    s_cbranch_scc1 {l}b
    s_movk_i32 s78, 16384
    s_mov_b32 s79, 0x00020000
    s_movk_i32 s82, 1024
    s_mov_b32 s83, 0x00020000
    v_lshlrev_b32 v6, 7, v2
    s_movk_i32 s3, 8192
    buffer_load_dword v241, v6, s[76:79], 0 offen
    buffer_load_dword v242, v6, s[76:79], s3 offen
    buffer_load_dword v243, v6, s[80:83], 0 offen
    {l}b:
    """)
def gen_k1():
    a = Asm()
    ACC = 64; XF = 192; WF = 224
    a(f"""
    s_cmp_ge_u32 s2, {NWG1}
    s_cbranch_scc1 L_k1_end
    s_load_dwordx8 s[4:11], s[0:1], 8
    s_load_dwordx2 s[20:21], s[0:1], 104
    s_load_dwordx2 s[64:65], s[0:1], 0
    s_load_dwordx2 s[66:67], s[0:1], 16
    s_load_dwordx2 s[68:69], s[0:1], 56
    s_load_dwordx2 s[76:77], s[0:1], 64
    s_load_dwordx2 s[80:81], s[0:1], 80
    s_and_b32 s40, s2, 7
    s_lshl_b32 s40, s40, 2
    s_bfe_u32 s3, s2, 0x20003
    s_add_u32 s40, s40, s3
    s_lshr_b32 s41, s2, 5
    v_lshrrev_b32 v1, 6, v0
    s_nop 0
    v_readfirstlane_b32 s42, v1
    v_and_b32 v2, 63, v0
    s_lshr_b32 s45, s40, 4
    s_and_b32 s44, s40, 15
    s_lshl_b32 s44, s44, 9
    s_lshr_b32 s48, s42, 2
    s_and_b32 s49, s42, 3
    s_lshl_b32 s46, s42, 5
    s_lshl_b32 s47, s41, 8
    s_add_u32 s46, s46, s47
    s_lshl_b32 s47, s48, 7
    s_waitcnt lgkmcnt(0)
    s_mov_b32 s24, s4
    s_mov_b32 s25, s5
    s_mov_b32 s26, 0x200000
    s_mov_b32 s27, 0x00020000
    s_cmp_eq_u32 s45, 0
    s_cselect_b32 s28, s8, s10
    s_cselect_b32 s29, s9, s11
    s_mov_b32 s30, 0x400000
    s_mov_b32 s31, 0x00020000
    s_mov_b32 s32, s20
    s_mov_b32 s33, s21
    s_mov_b32 s34, 0x10000000
    s_mov_b32 s35, 0x00020000
    s_or_b32 s3, s2, s42
    s_cmp_lg_u32 s3, 0
    s_cbranch_scc1 L_k1_nz
    v_lshlrev_b32 v5, 8, v2
    v_mov_b32 v6, 0
    s_mov_b32 s3, {hex(WS_CNT)}
    buffer_store_dword v6, v5, s[32:35], s3 offen
    L_k1_nz:
    s_mov_b32 s52, {8192*32}
    """)
    gemm_setup(a, "s46", "s47")
    a("""
    s_lshr_b32 s46, s49, 1
    s_lshl_b32 s46, s46, 13
    v_add_u32 v4, s46, v4
    s_and_b32 s46, s49, 1
    s_lshl_b32 s46, s46, 1
    """)
    for nb in range(2):
        a(f"s_add_u32 s47, s46, {nb}\nv_xor_b32 v5, s47, v3\nv_lshl_add_u32 v{RW+nb}, v5, 6, v4")
    a("""
    v_lshrrev_b32 v4, 4, v2
    v_and_b32 v5, 15, v2
    v_lshlrev_b32 v6, 2, v4
    v_xor_b32 v5, v5, v6
    v_lshlrev_b32 v5, 4, v5
    s_lshl_b32 s46, s48, 8
    s_add_u32 s46, s46, s44
    v_add_u32 v5, s46, v5
    s_lshl_b32 s46, s49, 3
    v_add_u32 v4, s46, v4
    """)
    for i in range(2):
        a(f"v_add_u32 v6, {4*i}, v4\nv_lshl_add_u32 v{VOW+i}, v6, 13, v5")
    gemm_prologue(a)
    pf(a)
    if os.environ.get("SPF") == "1": a("""
    s_lshl_b32 s70, s2, 3
    s_add_u32 s70, s70, s42
    s_cmp_ge_u32 s70, 1280
    s_cbranch_scc1 L_k1_npf0
    s_sub_u32 s71, s70, 256
    s_mov_b32 s74, 0x400000
    s_cmp_lt_u32 s70, 256
    s_cselect_b32 s72, s4, s8
    s_cselect_b32 s73, s5, s9
    s_cselect_b32 s74, 0x200000, s74
    s_cselect_b32 s71, s70, s71
    s_sub_u32 s3, s70, 768
    s_cmp_ge_u32 s70, 768
    s_cselect_b32 s72, s10, s72
    s_cselect_b32 s73, s11, s73
    s_cselect_b32 s71, s3, s71
    s_mov_b32 s75, 0x00020000
    s_lshl_b32 s71, s71, 13
    v_lshlrev_b32 v240, 7, v2
    buffer_load_dword v240, v240, s[72:75], s71 offen
    L_k1_npf0:
    """)
    a("""
    s_and_b32 s57, s40, 15
    s_lshl_b32 s57, s57, 1
    s_lshr_b32 s46, s49, 1
    s_add_u32 s57, s57, s46
    s_and_b32 s49, s49, 1
    """)
    if os.environ.get("TLB", "0") == "1": a(f"""
    s_lshl_b32 s84, s57, 19
    s_lshl_b32 s85, s45, 24
    s_add_u32 s84, s84, s85
    s_add_u32 s84, s84, {hex(WS_K)}
    s_lshl_b32 s85, s41, 16
    s_add_u32 s84, s84, s85
    s_lshl_b32 s85, s48, 15
    s_add_u32 s84, s84, s85
    v_lshlrev_b32 v240, 9, v2
    buffer_load_dword v240, v240, s[32:35], s84 offen
    """)
    a("""
    s_cmp_eq_u32 s45, 1
    s_cbranch_scc1 L_k1_vtype
    """)
    gemm_core(a, 4, [(0, 0), (1, 0)], ACC, XF, WF, False)
    a(f"""
    s_lshl_b32 s46, s57, 19
    s_add_u32 s46, s46, {hex(WS_K)}
    s_lshl_b32 s47, s41, 16
    s_add_u32 s46, s46, s47
    s_lshl_b32 s47, s48, 15
    s_add_u32 s46, s46, s47
    s_lshl_b32 s47, s49, 12
    s_add_u32 s46, s46, s47
    v_lshlrev_b32 v5, 4, v2
    """)
    a("s_waitcnt vmcnt(0)\ns_mov_b32 s90, s46\nv_mov_b32 v14, v5\nv_add_u32 v15, 2048, v5")
    for mb in range(4):
        for nb in range(2):
            for hf in range(2):
                b = ACC + (mb*2+nb)*16 + hf*8
                t = k2.HOME[mb*4+nb*2+hf]
                for p in range(4):
                    a(f"v_cvt_pk_bf16_f32 v{t+p}, v{b+2*p}, v{b+2*p+1}")
    a("s_branch L_k1_q")
    a("L_k1_vtype:")
    gemm_core(a, 4, [(0, 0), (1, 0)], ACC, XF, WF, True)
    a(f"""
    s_lshl_b32 s46, s57, 19
    s_add_u32 s46, s46, {hex(WS_V)}
    s_lshl_b32 s47, s41, 16
    s_add_u32 s46, s46, s47
    s_lshl_b32 s47, s48, 15
    s_add_u32 s46, s46, s47
    s_lshl_b32 s47, s49, 11
    s_add_u32 s46, s46, s47
    v_lshlrev_b32 v5, 4, v2
    """)
    a("s_waitcnt vmcnt(0)\ns_mov_b32 s90, s46\nv_mov_b32 v14, v5\nv_add_u32 v15, 4096, v5")
    for mb in range(4):
        for hf in range(2):
            for nb in range(2):
                b = ACC + (mb*2+nb)*16 + hf*8
                t = k2.HOME[mb*4+hf*2+nb]
                for p in range(4):
                    a(f"v_cvt_pk_bf16_f32 v{t+p}, v{b+2*p}, v{b+2*p+1}")
    a("L_k1_q:\ns_barrier")
    k2.qpro(a)
    a("L_k1_end:\ns_endpgm")
    return a.text()
```

```python
from common import *
from gemm import *
import k3
import struct, os
def f32bits(x): return struct.unpack("<I", struct.pack("<f", x))[0]
NWG2 = 256
O = 64; SS = [128, 160]; P = 192; Q = 208
FS = [36, 40, 44, 48, 52, 56, 60, 240]
KA = 8; VA = 16
VM = 20; VL = 21; VTHR = 22; VDMA = 23
KB = [0, 32768]; VB = [65536, 98304]
INSTR = os.environ.get("INSTR") == "1"
FORCE = os.environ.get("FORCE") == "1"
G0S = int(os.environ.get("G0S", "16"))
HOME = [216+4*i for i in range(10)] + [48+4*i for i in range(4)] + [32, 36]
def qpro(a):
    ACC = 64; XF = 160; WF = 168
    a(f"""
    s_load_dwordx2 s[4:5], s[0:1], 104
    s_load_dwordx2 s[24:25], s[0:1], 0
    s_load_dwordx2 s[28:29], s[0:1], 16
    s_load_dwordx2 s[6:7], s[0:1], 56
    s_load_dwordx2 s[8:9], s[0:1], 64
    s_and_b32 s40, s2, 7
    s_lshl_b32 s40, s40, 2
    s_bfe_u32 s3, s2, 0x20003
    s_add_u32 s40, s40, s3
    s_lshr_b32 s41, s2, 5
    v_lshrrev_b32 v1, 6, v0
    s_nop 0
    v_readfirstlane_b32 s42, v1
    v_and_b32 v2, 63, v0
    s_lshr_b32 s48, s42, 2
    s_and_b32 s49, s42, 3
    s_sub_u32 s46, 15, s41
    s_cmp_eq_u32 s48, 0
    s_cselect_b32 s46, s46, s41
    s_lshl_b32 s46, s46, 7
    s_lshl_b32 s47, s49, 5
    s_add_u32 s43, s46, s47
    s_lshl_b32 s47, s42, 5
    s_waitcnt lgkmcnt(0)
    s_mov_b32 s26, 0x200000
    s_mov_b32 s27, 0x00020000
    s_mov_b32 s30, 0x180000
    s_movk_i32 s44, 3072
    s_cmp_eq_u32 s48, 0
    s_cselect_b32 s28, s28, s6
    s_cselect_b32 s29, s29, s7
    s_cselect_b32 s30, 0x400000, s30
    s_cselect_b32 s44, 8192, s44
    s_mov_b32 s31, 0x00020000
    s_mov_b32 s32, s4
    s_mov_b32 s33, s5
    s_mov_b32 s34, 0x10000000
    s_mov_b32 s35, 0x00020000
    s_lshl_b32 s52, s44, 5
    """)
    gemm_setup(a, "s43", "s47")
    for b in range(4):
        a(f"v_xor_b32 v5, {b}, v3\nv_lshl_add_u32 v{RW+b}, v5, 6, v4")
    a(f"""
    v_lshrrev_b32 v5, 5, v2
    v_lshl_add_u32 v5, v5, 3, v3
    v_lshlrev_b32 v5, 7, v5
    v_and_b32 v6, 3, v2
    v_lshl_add_u32 v5, v6, 3, v5
    v_bfe_u32 v6, v2, 4, 1
    v_lshl_add_u32 v5, v6, 5, v5
    v_add_u32 v5, {WBASE + 8192}, v5
    v_lshrrev_b32 v6, 1, v3
    v_lshl_add_u32 v{RW+4}, v6, 6, v5
    v_xor_b32 v{RW+5}, 64, v{RW+4}
    s_cmp_eq_u32 s48, 0
    s_cbranch_scc1 L_k2_wq
    v_lshrrev_b32 v4, 3, v2
    v_bfe_u32 v6, v2, 4, 1
    v_lshlrev_b32 v6, 2, v6
    v_and_b32 v5, 7, v2
    v_xor_b32 v5, v5, v6
    v_lshrrev_b32 v6, 1, v5
    v_min_u32 v6, 2, v6
    v_lshlrev_b32 v6, 10, v6
    v_and_b32 v7, 1, v5
    v_lshl_add_u32 v6, v7, 4, v6
    s_lshl_b32 s46, s40, 5
    v_add_u32 v5, s46, v6
    s_lshl_b32 s46, s49, 3
    v_add_u32 v4, s46, v4
    v_mul_lo_u32 v6, v4, s44
    v_add_u32 v{VOW}, v6, v5
    v_mov_b32 v{VOW+1}, v{VOW}
    s_lshl_b32 s54, s49, 10
    s_add_u32 s54, s54, 8192
    s_branch L_k2_wdone
    L_k2_wq:
    v_lshrrev_b32 v4, 4, v2
    v_and_b32 v5, 15, v2
    v_lshlrev_b32 v6, 2, v4
    v_xor_b32 v5, v5, v6
    v_lshlrev_b32 v5, 4, v5
    s_lshl_b32 s46, s40, 8
    v_add_u32 v5, s46, v5
    s_lshl_b32 s46, s49, 3
    v_add_u32 v4, s46, v4
    """)
    for i in range(2):
        a(f"v_add_u32 v6, {4*i}, v4\nv_mul_lo_u32 v6, v6, s44\nv_add_u32 v{VOW+i}, v6, v5")
    a("L_k2_wdone:")
    srd(a, 8, "s8", "s9", 16384)
    a("""
    v_and_b32 v5, 15, v2
    v_lshlrev_b32 v5, 1, v5
    v_lshrrev_b32 v4, 5, v2
    v_lshl_add_u32 v5, v4, 7, v5
    s_lshl_b32 s3, s40, 9
    v_add_u32 v5, s3, v5
    """)
    for j in range(8):
        a(f"buffer_load_ushort v{40+j}, v5, s[8:11], 0 offen offset:{((j//4)*8 + j%4)*32}")
    gemm_prologue(a, True)
    def kvst(kk, s, n):
        if kk < 8 and n == 5:
            j = kk*2 + s
            a(f"buffer_store_dwordx4 {vr(HOME[j],4)}, v{14 + (j%4)//2}, s[32:35], s90 offen offset:{(j%2)*1024}")
            if j % 4 == 3: a("s_add_u32 s90, s90, 8192")
    if os.environ.get("XPF", "0") == "1": a("""
    s_lshl_b32 s46, s43, 10
    s_and_b32 s47, s40, 3
    s_lshl_b32 s47, s47, 13
    s_add_u32 s46, s46, s47
    v_lshlrev_b32 v244, 7, v2
    buffer_load_dword v244, v244, s[24:27], s46 offen
    s_cmp_ge_u32 s42, 2
    s_cbranch_scc1 L_k2_nxpf
    s_lshl_b32 s46, s41, 19
    s_lshl_b32 s47, s42, 18
    s_add_u32 s46, s46, s47
    s_lshl_b32 s47, s40, 8
    s_add_u32 s46, s46, s47
    v_lshrrev_b32 v245, 1, v2
    v_lshlrev_b32 v245, 13, v245
    v_and_b32 v246, 1, v2
    v_lshl_add_u32 v245, v246, 7, v245
    buffer_load_dword v245, v245, s[28:31], s46 offen
    L_k2_nxpf:
    """)
    gemm_core(a, 1, [(0,0),(1,0),(2,0),(3,0),(4,0,2048,512),(5,0,2048,512)], ACC, XF, WF, False, kvst, True, lambda kk, s: 1 if 0 <= kk < 8 else 0)
    a(f"""
    v_and_b32 v3, 31, v2
    v_lshrrev_b32 v4, 5, v2
    s_lshl_b32 s46, s40, 3
    s_add_u32 s46, s46, s41
    s_lshl_b32 s46, s46, 16
    s_lshl_b32 s47, s42, 13
    s_add_u32 s46, s46, s47
    s_add_u32 s91, s46, {hex(WS_Q)}
    v_lshlrev_b32 v5, 4, v2
    v_add_u32 v14, 4096, v5
    s_barrier
    """)
    for n in range(8, 11):
        nb, hf = n // 2, n % 2
        b = ACC + nb*16 + hf*8; t = XF + (n-8)*4
        for p in range(4): a(f"v_cvt_pk_bf16_f32 v{t+p}, v{b+2*p}, v{b+2*p+1}")
    W = 28; TK = 128; TQ = 144; AF = 48; BF = 52; KACC = 216
    a("v_cmp_lt_u32 vcc, 15, v3\nv_mov_b32 v6, 0\nv_mov_b32 v7, 0x80008000\ns_nop 0\nv_cndmask_b32 v6, v6, v7, vcc")
    for p in range(4):
        a(f"v_lshl_or_b32 v{W+p}, v{41+2*p}, 16, v{40+2*p}\nv_xor_b32 v{W+p}, v{W+p}, v6")
    a(f"""
    s_nop 1
    v_mfma_f32_32x32x16_bf16 {vr(TK,16)}, {vr(W,4)}, {vr(XF+4,4)}, 0
    """)
    for n in range(8):
        nb, hf = n // 2, n % 2
        b = ACC + nb*16 + hf*8; t = Q + n*4
        for p in range(4): a(f"v_cvt_pk_bf16_f32 v{t+p}, v{b+2*p}, v{b+2*p+1}")
        a(f"buffer_store_dwordx4 {vr(t,4)}, {'v5' if n < 4 else 'v14'}, s[32:35], s91 offen offset:{(n%4)*1024}")
    a(f"""
    s_mov_b32 s56, s40
    s_mov_b32 s40, {k3.LOG2E}
    s_lshl_b32 s28, s42, 12
    s_add_u32 s28, s28, 32768
    v_lshlrev_b32 v33, 6, v3
    v_add_u32 v33, s28, v33
    v_lshl_add_u32 v34, v4, 3, v33
    v_lshl_add_u32 v33, v4, 4, v33
    v_bfe_u32 v7, v2, 2, 2
    v_lshl_add_u32 v6, v4, 3, v7
    v_lshlrev_b32 v6, 6, v6
    v_and_b32 v7, 3, v2
    v_lshl_add_u32 v6, v7, 3, v6
    v_bfe_u32 v7, v2, 4, 1
    v_lshl_add_u32 v6, v7, 5, v6
    v_add_u32 v35, s28, v6
    v_mov_b32 v40, 0
    v_mov_b32 v41, 0
    v_mov_b32 v42, 0
    v_mov_b32 v43, 0
    v_mov_b32 v7, 0x3f80
    v_cmp_eq_u32 vcc, 0, v4
    s_nop 1
    v_cndmask_b32 v40, v40, v7, vcc
    ds_write_b128 v33, v[40:43] offset:{2048+32}
    ds_write_b128 v33, {vr(XF+8,4)} offset:2048
    """)
    k3.rnd16(a, TK, 44)
    k3.softmax16(a, TK, 44)
    for p in range(8): a(f"v_cvt_pk_bf16_f32 v{64+p}, v{TK+2*p}, v{TK+2*p+1}")
    for q in range(4): a(f"ds_write_b64 v34, {vr(64+2*q,2)} offset:{q*16}")
    a("s_waitcnt lgkmcnt(0)")
    for ks in range(2):
        a(f"""
        ds_read_b64_tr_b16 {vr(AF+ks*8,2)}, v35 offset:{ks*1024}
        ds_read_b64_tr_b16 {vr(AF+ks*8+2,2)}, v35 offset:{ks*1024+256}
        ds_read_b64_tr_b16 {vr(BF+ks*8,2)}, v35 offset:{2048+ks*1024}
        ds_read_b64_tr_b16 {vr(BF+ks*8+2,2)}, v35 offset:{2048+ks*1024+256}
        """)
    a("s_waitcnt lgkmcnt(0)")
    for ks in range(2):
        a(f"v_mfma_f32_32x32x16_bf16 {vr(KACC,16)}, {vr(AF+ks*8,4)}, {vr(BF+ks*8,4)}, {'0' if ks==0 else vr(KACC,16)}")
    a(f"""
    s_lshl_b32 s46, s56, 11
    s_add_u32 s46, s46, s43
    v_add_u32 v6, s46, v3
    v_lshlrev_b32 v6, 5, v6
    v_lshl_add_u32 v6, v4, 4, v6
    s_mov_b32 s47, {hex(WS_QKVB)}
    buffer_store_dwordx4 {vr(XF,4)}, v6, s[32:35], s47 offen sc1
    s_nop 7
    s_nop 7
    v_lshlrev_b32 v5, 4, v2
    v_add_u32 v6, s28, v5
    """)
    for q in range(4): a(f"ds_write_b128 v6, {vr(KACC+q*4,4)} offset:{32768+q*1024}")
    a(f"""
    s_waitcnt lgkmcnt(0)
    s_barrier
    s_cmp_ge_u32 s42, 4
    s_cbranch_scc1 L_k2_nored
    s_lshl_b32 s3, s42, 10
    v_add_u32 v5, s3, v5
    v_add_u32 v7, 0x8000, v5
    """)
    for w in range(8): a(f"ds_read_b128 {vr(64+w*4,4)}, v7 offset:{32768+w*4096}")
    a("s_waitcnt lgkmcnt(0)")
    for i in range(4):
        a(f"""v_add_f32 v{64+i}, v{64+i}, v{68+i}
        v_add_f32 v{72+i}, v{72+i}, v{76+i}
        v_add_f32 v{80+i}, v{80+i}, v{84+i}
        v_add_f32 v{88+i}, v{88+i}, v{92+i}
        v_add_f32 v{64+i}, v{64+i}, v{72+i}
        v_add_f32 v{80+i}, v{80+i}, v{88+i}
        v_add_f32 v{64+i}, v{64+i}, v{80+i}""")
    a(f"""
    s_lshl_b32 s3, s56, 3
    s_add_u32 s3, s3, s41
    s_lshl_b32 s3, s3, 12
    s_add_u32 s3, s3, {hex(WS_KVP)}
    buffer_store_dwordx4 v[64:67], v5, s[32:35], s3 offen sc1
    L_k2_nored:
    s_barrier
    """)
PART = 160; QB = 176; WPH = 180; GX = 208; GW = 212
def ob_qload(a):
    a(f"""
    s_lshl_b32 s3, s24, 11
    s_add_u32 s3, s3, s82
    v_add_u32 v6, s3, v3
    v_lshlrev_b32 v6, 5, v6
    v_lshl_add_u32 v6, v4, 4, v6
    s_mov_b32 s3, {hex(WS_QKVB)}
    buffer_load_dwordx4 {vr(QB,4)}, v6, s[64:67], s3 offen sc1
    """)
def ob_tok(a, j):
    a(f"""
    s_sub_u32 s82, 15, {j}
    s_cmp_eq_u32 s27, 0
    s_cselect_b32 s82, s82, {j}
    s_lshl_b32 s82, s82, 7
    s_lshl_b32 s3, s28, 5
    s_add_u32 s82, s82, s3
    """)
def ob_pre(a):
    a(f"""
    s_cmp_eq_u32 s36, 0
    s_cbranch_scc1 L_k2_nopf
    v_and_b32 v3, 31, v2
    v_lshrrev_b32 v4, 5, v2
    s_lshl_b32 s83, s2, 3
    s_add_u32 s83, s83, s26
    s_lshl_b32 s3, s83, 10
    v_lshlrev_b32 v6, 4, v2
    buffer_load_dwordx4 {vr(GX,4)}, v6, s[72:75], s3 offen
    buffer_load_dwordx4 {vr(GW,4)}, v6, s[76:79], 0 offen
    s_bitcmp0_b32 s80, 0
    s_cbranch_scc1 L_k2_nopf
    """)
    ob_tok(a, "s25")
    ob_qload(a)
    a("""
    v_and_b32 v5, 15, v3
    v_lshlrev_b32 v5, 1, v5
    v_lshl_add_u32 v5, v4, 7, v5
    s_lshl_b32 s3, s24, 9
    v_add_u32 v5, s3, v5
    """)
    for j in range(8):
        a(f"buffer_load_ushort v{WPH+j}, v5, s[68:71], 0 offen offset:{((j//4)*8 + j%4)*32}")
    a(f"""
    s_lshl_b32 s3, s24, 15
    s_lshl_b32 s37, s27, 14
    s_add_u32 s3, s3, s37
    s_lshl_b32 s37, s28, 10
    s_add_u32 s3, s3, s37
    s_add_u32 s3, s3, {hex(WS_KVP)}
    v_lshlrev_b32 v5, 4, v2
    v_cmp_gt_u32 vcc, 17, v3
    s_nop 1
    s_mov_b64 exec, vcc
    """)
    for c in range(4):
        a(f"buffer_load_dwordx4 {vr(PART+c*4,4)}, v5, s[64:67], s3 offen sc1\ns_add_u32 s3, s3, 4096")
    a("s_mov_b64 exec, -1\nL_k2_nopf:")
def ob_post(a):
    W = 36; T = 40; PF = 48; KVF = 56; D2 = 128; EX = 64
    a(f"""
    s_cmp_eq_u32 s36, 0
    s_cbranch_scc1 L_k2_obskip
    s_mov_b32 s40, {k3.LOG2E}
    s_bitcmp0_b32 s80, 0
    s_cbranch_scc1 L_k2_gate
    """)
    for r in range(4):
        a(f"""v_add_f32 v{PART+r}, v{PART+r}, v{PART+4+r}
        v_add_f32 v{PART+8+r}, v{PART+8+r}, v{PART+12+r}
        v_add_f32 v{PART+r}, v{PART+r}, v{PART+8+r}""")
    a(f"""
    v_lshlrev_b32 v5, 4, v2
    s_lshl_b32 s3, s26, 10
    v_add_u32 v6, s3, v5
    ds_write_b128 v6, {vr(PART,4)}
    v_cmp_lt_u32 vcc, 15, v3
    v_mov_b32 v6, 0
    v_mov_b32 v7, 0x80008000
    s_nop 0
    v_cndmask_b32 v6, v6, v7, vcc
    """)
    for p in range(4):
        a(f"v_lshl_or_b32 v{W+p}, v{WPH+1+2*p}, 16, v{WPH+2*p}\nv_xor_b32 v{W+p}, v{W+p}, v6")
    a("s_waitcnt lgkmcnt(0)\ns_barrier")
    for w in range(8): a(f"ds_read_b128 {vr(EX+w*4,4)}, v5 offset:{w*1024}")
    a("L_k2_obloop:")
    a(f"""
    v_mfma_f32_32x32x16_bf16 {vr(D2,16)}, {vr(W,4)}, {vr(QB,4)}, 0
    s_lshr_b32 s3, s82, 5
    s_mul_i32 s3, s3, {36*8192}
    s_lshl_b32 s37, s24, 10
    s_add_u32 s3, s3, s37
    s_add_u32 s84, s3, {32*8192}
    s_waitcnt lgkmcnt(0)
    """)
    for r in range(16): a(f"v_add_f32 v{EX+32+r}, v{EX+r}, v{EX+16+r}")
    for p in range(8): a(f"v_cvt_pk_bf16_f32 v{KVF+p}, v{EX+32+2*p}, v{EX+33+2*p}")
    k3.rnd16(a, D2, T)
    k3.softmax16(a, D2, T)
    for p in range(8): a(f"v_cvt_pk_bf16_f32 v{PF+p}, v{D2+2*p}, v{D2+2*p+1}")
    a(f"""
    s_nop 1
    v_mfma_f32_32x32x16_bf16 {vr(D2,16)}, {vr(KVF,4)}, {vr(PF,4)}, 0
    v_mfma_f32_32x32x16_bf16 {vr(D2,16)}, {vr(KVF+4,4)}, {vr(PF+4,4)}, {vr(D2,16)}
    s_nop 15
    s_nop 3
    v_mov_b32 v{T}, v{D2+8}
    v_mov_b32 v{T+1}, v{D2+8}
    s_nop 1
    v_permlane32_swap_b32 v{T}, v{T+1}
    s_nop 1
    v_cvt_pk_bf16_f32 v{T}, v{T}, v{T}
    v_and_b32 v{T}, 0xffff0000, v{T}
    v_add_f32 v{T}, 0x358637bd, v{T}
    v_cvt_pk_bf16_f32 v{T}, v{T}, v{T}
    v_and_b32 v{T}, 0xffff0000, v{T}
    v_rcp_f32 v{T}, v{T}
    """)
    for i in range(4):
        a(f"v_cvt_pk_bf16_f32 v{T+1}, v{D2+2*i}, v{D2+2*i+1}\nv_lshlrev_b32 v{D2+2*i}, 16, v{T+1}\nv_and_b32 v{D2+2*i+1}, 0xffff0000, v{T+1}")
    for i in range(8): a(f"v_mul_f32 v{D2+i}, v{D2+i}, v{T}")
    for p in range(4): a(f"v_cvt_pk_bf16_f32 v{T+4+p}, v{D2+2*p}, v{D2+2*p+1}")
    a(f"""
    buffer_store_dwordx4 {vr(T+4,4)}, v5, s[20:23], s84 offen
    s_lshr_b32 s3, s80, 8
    s_cmp_eq_u32 s3, 0
    s_cbranch_scc1 L_k2_gate
    s_ff1_i32_b32 s85, s3
    s_add_u32 s3, s85, 8
    s_bitset0_b32 s80, s3
    """)
    ob_tok(a, "s85")
    ob_qload(a)
    a("s_waitcnt vmcnt(0)\ns_branch L_k2_obloop\nL_k2_gate:\nv_mov_b32 v8, 0\nv_mov_b32 v9, 0")
    for i in range(4):
        a(f"""
        v_lshlrev_b32 v10, 16, v{GX+i}
        v_lshlrev_b32 v11, 16, v{GW+i}
        v_fmac_f32 v8, v10, v11
        v_and_b32 v10, 0xffff0000, v{GX+i}
        v_and_b32 v11, 0xffff0000, v{GW+i}
        v_fmac_f32 v9, v10, v11
        """)
    a("v_add_f32 v8, v8, v9")
    for off in (0x041F, 0x081F, 0x101F, 0x201F, 0x401F):
        a(f"ds_swizzle_b32 v9, v8 offset:{hex(off)}\ns_waitcnt lgkmcnt(0)\nv_add_f32 v8, v8, v9")
    a(f"""
    v_mov_b32 v9, v8
    s_nop 1
    v_permlane32_swap_b32 v8, v9
    s_nop 1
    v_add_f32 v8, v8, v9
    v_cvt_pk_bf16_f32 v8, v8, v8
    v_and_b32 v8, 0xffff0000, v8
    v_mul_f32 v8, s40, v8
    v_sub_f32 v8, 0, v8
    v_exp_f32 v8, v8
    s_nop 0
    v_add_f32 v8, 1.0, v8
    v_rcp_f32 v8, v8
    s_nop 0
    v_cvt_pk_bf16_f32 v8, v8, v8
    v_and_b32 v8, 0xffff0000, v8
    s_lshl_b32 s3, s83, 2
    s_add_u32 s3, s3, {hex(WS_G)}
    s_mov_b64 exec, 1
    buffer_store_dword v8, v247, s[64:67], s3 offen
    s_mov_b64 exec, -1
    L_k2_obskip:
    """)
def gen_k2():
    a = Asm()
    def stamp():
        if INSTR: a("s_memtime s[60:61]\ns_waitcnt lgkmcnt(0)\ns_and_b32 s59, s59, 63\ns_mov_b32 m0, s59\ns_nop 3\nv_writelane_b32 v244, s60, m0\ns_add_u32 s59, s59, 1")
    a(f"""
    s_cmp_ge_u32 s2, {NWG2}
    s_cbranch_scc1 L_k2_end
    """)
    a(f"""
    s_load_dwordx2 s[4:5], s[0:1], 104
    s_load_dwordx2 s[72:73], s[0:1], 0
    s_load_dwordx2 s[68:69], s[0:1], 64
    s_load_dwordx2 s[76:77], s[0:1], 80
    s_load_dwordx2 s[86:87], s[0:1], 40
    s_load_dwordx2 s[88:89], s[0:1], 72
    s_and_b32 s24, s2, 7
    s_lshl_b32 s24, s24, 2
    s_bfe_u32 s3, s2, 0x20003
    s_add_u32 s24, s24, s3
    s_lshr_b32 s25, s2, 5
    v_lshrrev_b32 v1, 6, v0
    s_nop 0
    v_readfirstlane_b32 s26, v1
    v_and_b32 v2, 63, v0
    s_lshr_b32 s27, s26, 2
    s_and_b32 s28, s26, 3
    s_lshl_b32 s34, s26, 12
    s_mov_b32 s35, {hex(f32bits(128**-0.5 * 1.4426950408889634))}
    s_lshl_b32 s3, s24, 19
    s_waitcnt lgkmcnt(0)
    s_add_u32 s6, s4, s3
    s_addc_u32 s7, s5, 0
    """)
    srd_ws(a, 8, 6, WS_K, 0x80000)
    srd_ws(a, 12, 6, WS_V, 0x80000)
    srd_ws(a, 16, 6, WS_Q, 0x80000)
    srd_ws(a, 20, 4, WS_CTXO, 2048*CTX_PITCH)
    srd(a, 64, "s4", "s5", 0x10000000)
    a(f"""
    s_movk_i32 s70, 16384
    s_mov_b32 s71, 0x00020000
    s_mov_b32 s74, 0x200000
    s_mov_b32 s75, 0x00020000
    s_movk_i32 s78, 1024
    s_mov_b32 s79, 0x00020000
    s_lshl_b32 s81, s24, 8
    s_add_u32 s81, s81, {hex(WS_CNT)}
    s_mov_b32 s80, 1
    v_mov_b32 v245, 1
    v_mov_b32 v247, 0
    s_add_u32 s3, s25, 8
    s_lshl_b32 s3, 1, s3
    v_mov_b32 v246, s3
    v_and_b32 v3, 31, v2
    v_lshrrev_b32 v4, 5, v2
    v_lshlrev_b32 v{VDMA}, 4, v2
    v_add_u32 v{VDMA}, s34, v{VDMA}
    s_lshl_b32 s3, s27, 14
    v_lshlrev_b32 v5, 4, v2
    v_add_u32 v{KA}, s3, v5
    v_add_u32 v{VA}, 0x10000, v{KA}
    s_lshl_b32 s3, s28, 5
    s_lshl_b32 s37, s27, 6
    s_sub_u32 s3, s3, s37
    v_lshlrev_b32 v5, 2, v4
    v_sub_u32 v5, v3, v5
    v_add_u32 v{VTHR}, s3, v5
    s_mov_b32 s36, 0
    s_mov_b32 s59, 0
    """)
    if INSTR: a("v_mov_b32 v244, 0")

    def dma(srdreg, soff, buf):
        a(f"s_add_u32 m0, s34, {buf}\ns_nop 0")
        for j in range(4):
            a(f"buffer_load_dwordx4 v{VDMA}, s[{srdreg}:{srdreg+3}], {soff} offen offset:{j*1024} lds")
    def dpiece(srdreg, soff, buf, j, need):
        if need:
            l = a.label("nd")
            a(f"s_cmp_lt_u32 s38, {need}\ns_cbranch_scc1 {l}")
        a(f"s_add_u32 m0, s34, {buf}\ns_nop 0\nbuffer_load_dwordx4 v{VDMA}, s[{srdreg}:{srdreg+3}], {soff} offen offset:{j*1024} lds")
        if need: a(f"{l}:")
    def rd_item(it, slot, parv, park):
        k, s, b = it
        if k == "pv": a(f"ds_read_b128 {vr(FS[slot],4)}, v{VA} offset:{VB[parv]-65536+s*4096+b*1024}")
        else: a(f"ds_read_b128 {vr(FS[slot],4)}, v{KA} offset:{KB[park]+b*8192+s*1024}")
    QKI = [("qk", s, kb) for s in range(8) for kb in range(2)]
    PVI = [("pv", s, db) for s in range(4) for db in range(4)]
    def pre(items, parv, park):
        for i in range(8): rd_item(items[i], i, parv, park)
    def MM(items, parv, park, fill=None, ld=True, g1=False, mid=None, pre_mid=None):
        n = len(items); SQ = SS[park]; qi = 0
        for i, it in enumerate(items):
            k, s, b = it
            if mid is not None and i == 16:
                a(f"{mid}:")
                for x in pre_mid: a(x)
            a(f"s_waitcnt lgkmcnt({min(7, n-1-i)})")
            if k == "pv":
                if fill is not None and s == 0 and b == 0 and not g1: a("s_nop 1")
                acc = vr(O+b*16, 16)
                a(f"v_mfma_f32_32x32x16_bf16 {acc}, {vr(FS[i%8],4)}, {vr(P+s*4,4)}, {acc}")
            else:
                acc = vr(SQ+b*16, 16)
                a(f"v_mfma_f32_32x32x16_bf16 {acc}, {vr(FS[i%8],4)}, {vr(Q+s*4,4)}, {'0' if s==0 else acc}")
            if i + 8 < n: rd_item(items[i+8], i % 8, parv, park)
            if k == "qk" and fill is not None:
                for x in fill[qi]: a(x)
                qi += 1
            i0 = i - (G0S if not g1 else 0)
            if ld and 0 <= i0 < 16 and i0 % 2 == 1:
                j = i0 // 2
                if j < 4: dpiece(12, "s39" if g1 else "s33", VB[parv ^ 1], j, 0)
                else: dpiece(8, "s32", KB[park ^ 1], j - 4, 2)
    def SM_parts(S):
        lr = a.label("noresc")
        A = [f"v_max3_f32 v24, v{S}, v{S+1}, v{S+2}", f"v_max3_f32 v25, v{S+16}, v{S+17}, v{S+18}"]
        for i in range(3, 15, 2):
            A += [f"v_max3_f32 v24, v24, v{S+i}, v{S+i+1}", f"v_max3_f32 v25, v25, v{S+16+i}, v{S+16+i+1}"]
        A2 = f"""v_max3_f32 v24, v24, v{S+15}, v25
        v_max_f32 v24, v24, v{S+31}
        v_mov_b32 v25, v24
        s_nop 1
        v_permlane32_swap_b32 v24, v25
        s_nop 1
        v_max_f32 v24, v24, v25
        v_mul_f32 v24, s35, v24
        v_max_f32 v25, v{VM}, v24
        v_sub_f32 v26, v25, v{VM}
        v_cmp_lt_f32 vcc, 0x41000000, v26
        s_cbranch_vccz {lr}
        v_sub_f32 v26, 0, v26
        v_exp_f32 v26, v26
        v_mov_b32 v{VM}, v25
        s_nop 0
        v_mov_b32 v27, v26
        v_mul_f32 v{VL}, v{VL}, v26
        """ + "\n".join(f"v_pk_mul_f32 {vr(O+i,2)}, {vr(O+i,2)}, v[26:27]" for i in range(0, 64, 2)) + f"\n{lr}:\nv_sub_f32 v28, 0, v{VM}"
        B = []
        for p in range(17):
            if p < 16:
                B += [f"v_fma_f32 v{S+2*p}, v{S+2*p}, s35, v28", f"v_fma_f32 v{S+2*p+1}, v{S+2*p+1}, s35, v28"]
            if p >= 1:
                q = p - 1
                B += [f"v_exp_f32 v{S+2*q}, v{S+2*q}", f"v_exp_f32 v{S+2*q+1}, v{S+2*q+1}"]
            if p >= 2:
                q = p - 2
                B += [f"v_add_f32 v{VL}, v{VL}, v{S+2*q}", f"v_add_f32 v29, v29, v{S+2*q+1}" if q else f"v_mov_b32 v29, v{S+1}",
                      f"v_cvt_pk_bf16_f32 v{P+q}, v{S+2*q}, v{S+2*q+1}"]
        B += ["s_nop 0", f"v_add_f32 v{VL}, v{VL}, v{S+30}", f"v_add_f32 v29, v29, v{S+31}", f"v_cvt_pk_bf16_f32 v{P+15}, v{S+30}, v{S+31}", f"v_add_f32 v{VL}, v{VL}, v29"]
        return A, A2, B
    def mask(S):
        a("v_mov_b32 v24, 0xf149f2ca")
        for kb in range(2):
            for r in range(16):
                c = kb*32 + (r//4)*8 + r % 4
                a(f"v_cmp_gt_i32 vcc, {c}, v{VTHR}\ns_nop 1\nv_cndmask_b32 v{S+kb*16+r}, v{S+kb*16+r}, v24, vcc")
    def top():
        a(f"""
        s_waitcnt vmcnt(0)
        s_barrier
        s_add_u32 s3, s31, 1
        s_lshl_b32 s33, s3, 15
        s_sub_u32 s38, s30, s3
        s_add_u32 s3, s31, 2
        s_lshl_b32 s32, s3, 15
        s_lshl_b32 s39, s31, 15
        s_cmp_eq_u32 s38, 0
        """)
    def publish(force_sel):
        l = a.label("pub")
        a(f"s_or_b32 s3, s26, s36\ns_cmp_lg_u32 s3, 0\ns_cbranch_scc1 {l}")
        if FORCE: a(f"s_cmp_{'eq' if force_sel == 0 else 'lg'}_u32 s25, 0\ns_cbranch_scc1 {l}")
        a(f"s_mov_b64 exec, 1\nbuffer_atomic_add v245, v247, s[64:67], s81 offen sc0\ns_mov_b64 exec, -1\n{l}:")
    def check():
        lp = a.label("wpf")
        if os.environ.get("NOPF") != "1": a(f"""
        s_cmp_lg_u32 s36, 0
        s_cbranch_scc1 {lp}
        s_lshl_b32 s83, s2, 2
        s_add_u32 s83, s83, s28
        s_cmp_ge_u32 s83, 576
        s_cbranch_scc1 {lp}
        s_sub_u32 s3, s83, 512
        s_mov_b32 s94, 0x400000
        s_cmp_lt_u32 s83, 512
        s_cselect_b32 s92, s86, s88
        s_cselect_b32 s93, s87, s89
        s_cselect_b32 s94, s94, 0x80000
        s_cselect_b32 s3, s83, s3
        s_mov_b32 s95, 0x00020000
        s_lshl_b32 s3, s3, 13
        v_lshlrev_b32 v244, 7, v2
        buffer_load_dword v244, v244, s[92:95], s3 offen
        {lp}:
        """)
    a(f"""
    s_lshl_b32 s3, s24, 3
    s_add_u32 s3, s3, s25
    s_lshl_b32 s3, s3, 16
    s_lshl_b32 s37, s26, 12
    s_add_u32 s3, s3, s37
    s_add_u32 s3, s3, {hex(WS_Q)}
    s_lshl_b32 s37, s26, 13
    s_add_u32 s37, s37, 98304
    """)
    for hh in range(2):
        a(f"s_add_u32 m0, s37, {hh*4096}\ns_nop 0")
        for j in range(4): a(f"buffer_load_dwordx4 v{VDMA}, s[64:67], s3 offen offset:{j*1024} lds")
        a("s_add_u32 s3, s3, 4096")
    dma(8, "0", KB[0])
    a("s_waitcnt vmcnt(4)\ns_barrier")
    a("L_k2_pass:")
    a(f"""
    s_sub_u32 s29, 15, s25
    s_cmp_eq_u32 s36, 0
    s_cselect_b32 s29, s29, s25
    s_add_u32 s30, s29, 1
    s_lshl_b32 s3, s36, 15
    s_lshl_b32 s37, s28, 13
    s_add_u32 s3, s3, s37
    s_add_u32 s3, s3, 98304
    v_lshlrev_b32 v5, 4, v2
    v_add_u32 v5, s3, v5
    """)
    for s in range(8): a(f"ds_read_b128 {vr(Q+s*4,4)}, v5 offset:{s*1024}")
    dma(12, "0", VB[0])
    a(f"v_mov_b32 v{VM}, 0xe0ad78ec\nv_mov_b32 v{VL}, 0")
    for i in range(64): a(f"v_mov_b32 v{O+i}, 0")
    lk = a.label("nok1"); lk2 = a.label("nok1b")
    a(f"s_cmp_lt_u32 s30, 2\ns_cbranch_scc1 {lk}\ns_mov_b32 s32, 32768")
    dma(8, "s32", KB[1])
    a(f"s_waitcnt vmcnt(8)\ns_branch {lk2}\n{lk}:\ns_waitcnt vmcnt(4)\n{lk2}:")
    a("s_mov_b32 s31, 0\ns_waitcnt lgkmcnt(0)\ns_barrier")
    pre(QKI, 0, 0)
    MM(QKI, 0, 0, None, False)
    a("s_cmp_lg_u32 s27, 0\ns_cbranch_scc1 L_k2_g1loop")
    a("L_k2_loop:")
    def k0pf():
        l = a.label("k0pf")
        a(f"s_cmp_lg_u32 s36, 0\ns_cbranch_scc1 {l}")
        dma(8, "0", KB[0])
        a(f"{l}:")
    def mkfill(A, A2, B):
        fill = [[] for _ in range(16)]
        fill[0] = A[8:12]; fill[1] = A[12:] + [A2]
        per = (len(B) + 13) // 14
        for i in range(14): fill[2+i] = B[i*per:(i+1)*per]
        return fill
    for par in range(2):
        top()
        a(f"s_cbranch_scc1 L_k2_tail{par}")
        stamp()
        items = QKI + PVI
        pre(items, par, par ^ 1)
        A, A2, B = SM_parts(SS[par])
        for x in A[:8]: a(x)
        MM(items, par, par ^ 1, mkfill(A, A2, B))
        a("s_add_u32 s31, s31, 1")
        stamp()
    a("s_branch L_k2_loop")
    for par in range(2):
        a(f"L_k2_tail{par}:")
        pre(PVI, par, par ^ 1)
        check()
        k0pf()
        a("s_nop 7")
        mask(SS[par])
        A, A2, B = SM_parts(SS[par])
        for x in A: a(x)
        a(A2)
        for x in B: a(x)
        a("s_nop 1")
        MM(PVI, par, par ^ 1, None, False)
        a("s_barrier\ns_branch L_k2_merge")
    a("L_k2_g1first:")
    pre(QKI, 1, 1)
    for j in range(4): dpiece(8, "s32", KB[0], j, 2)
    a("s_branch L_k2_g1qk0")
    a("L_k2_g1loop:")
    for par in range(2):
        top()
        a(f"s_cbranch_scc1 L_k2_g1tail{par}")
        stamp()
        if par == 0: a("s_cmp_eq_u32 s31, 0\ns_cbranch_scc1 L_k2_g1first")
        items = PVI + QKI
        pre(items, par ^ 1, par ^ 1)
        A, A2, B = SM_parts(SS[par])
        MM(items, par ^ 1, par ^ 1, mkfill(A, A2, B), True, True, f"L_k2_g1qk{par}", A[:8])
        a("s_add_u32 s31, s31, 1")
        stamp()
    a("s_branch L_k2_g1loop")
    for par in range(2):
        a(f"L_k2_g1tail{par}:")
        for j in range(4): dpiece(12, "s39", VB[par], j, 0)
        k0pf()
        if par == 0: a("s_cmp_eq_u32 s31, 0\ns_cbranch_scc1 L_k2_g1t0")
        pre(PVI, par ^ 1, par ^ 1)
        MM(PVI, par ^ 1, par ^ 1, None, False)
        if par == 0: a("L_k2_g1t0:")
        a("s_nop 7")
        mask(SS[par])
        A, A2, B = SM_parts(SS[par])
        for x in A: a(x)
        a(A2)
        for x in B: a(x)
        a("s_waitcnt vmcnt(0)\ns_barrier")
        pre(PVI, par, par ^ 1)
        MM(PVI, par, par ^ 1, None, False)
        if par == 0: a("s_branch L_k2_merge")
    a("L_k2_merge:")
    S = SS[0]
    ob_pre(a)
    a(f"""
    s_nop 15
    v_mov_b32 v25, v{VL}
    s_nop 1
    v_permlane32_swap_b32 v{VL}, v25
    s_nop 1
    v_add_f32 v{VL}, v{VL}, v25
    s_lshl_b32 s3, s26, 13
    s_add_u32 s3, s3, 65536
    v_lshlrev_b32 v5, 4, v2
    v_add_u32 v5, s3, v5
    s_lshl_b32 s3, s26, 9
    v_lshlrev_b32 v6, 2, v2
    v_add_u32 v6, s3, v6
    s_xor_b32 s37, s26, 4
    s_barrier
    ds_write_b32 v6, v{VM} offset:32768
    ds_write_b32 v6, v{VL} offset:33024
    s_cmp_eq_u32 s27, 0
    s_cbranch_scc1 L_k2_m0
    """)
    def merge(g):
        lw = a.label("mw")
        keep = O + (0 if g == 0 else 32); send = O + (32 if g == 0 else 0)
        for q in range(8): a(f"ds_write_b128 v5, {vr(send+q*4,4)} offset:{q*1024}")
        a(f"""
        v_xor_b32 v5, 0x8000, v5
        v_xor_b32 v6, 0x800, v6
        s_waitcnt lgkmcnt(0)
        s_barrier
        ds_read_b32 v24, v6 offset:32768
        ds_read_b32 v25, v6 offset:33024
        """)
        for q in range(8): a(f"ds_read_b128 {vr(S+q*4,4)}, v5 offset:{q*1024}")
        a(f"""
        s_waitcnt lgkmcnt(8)
        v_max_f32 v26, v{VM}, v24
        v_sub_f32 v27, v{VM}, v26
        v_sub_f32 v28, v24, v26
        v_exp_f32 v27, v27
        v_exp_f32 v28, v28
        s_nop 0
        v_mul_f32 v29, v27, v{VL}
        v_fma_f32 v29, v28, v25, v29
        v_rcp_f32 v29, v29
        s_nop 0
        v_mul_f32 v27, v27, v29
        v_mul_f32 v28, v28, v29
        s_lshl_b32 s3, s29, 2
        s_add_u32 s3, s3, s28
        s_mul_i32 s3, s3, {36*8192}
        s_lshl_b32 s37, s24, 13
        s_add_u32 s3, s3, s37
        s_add_u32 s3, s3, {g*4096}
        v_lshlrev_b32 v5, 4, v2
        s_waitcnt lgkmcnt(0)
        s_cmp_eq_u32 s36, 0
        s_cbranch_scc1 {lw}
        s_waitcnt vmcnt(0)
        {lw}:
        """)
        for i in range(32):
            a(f"v_mul_f32 v{keep+i}, v27, v{keep+i}\nv_fma_f32 v{keep+i}, v28, v{S+i}, v{keep+i}")
        for q in range(4):
            for p in range(4):
                a(f"v_cvt_pk_bf16_f32 v{P+q*4+p}, v{keep+q*8+2*p}, v{keep+q*8+2*p+1}")
            a(f"buffer_store_dwordx4 {vr(P+q*4,4)}, v5, s[20:23], s3 offen offset:{q*1024}")
    merge(1)
    a("s_branch L_k2_mdone\nL_k2_m0:")
    merge(0)
    a("L_k2_mdone:")
    ob_post(a)
    if INSTR:
        a(f"""
        s_cmp_lg_u32 s36, 0
        s_cbranch_scc1 L_nodump
        s_lshl_b32 s3, s2, 3
        s_add_u32 s3, s3, s26
        s_lshl_b32 s3, s3, 8
        v_lshlrev_b32 v5, 2, v2
        v_add_u32 v5, s3, v5
        s_add_u32 s64, s4, {hex(100<<20)}
        s_addc_u32 s65, s5, 0
        s_mov_b32 s66, 0x1000000
        s_mov_b32 s67, 0x00020000
        buffer_store_dword v244, v5, s[64:67], 0 offen
        L_nodump:
        """)
    a("""
    s_barrier
    s_add_u32 s36, s36, 1
    s_cmp_lt_u32 s36, 2
    s_cbranch_scc1 L_k2_pass
    """)
    a("L_k2_end:\ns_endpgm")
    return a.text()
```

```python
from common import *
from gemm import *
import k2
import os
NWG1 = 256
def pf(a):
    if os.environ.get("NOPF") == "1": return
    l = a.label("pf")
    a(f"""
    s_lshl_b32 s70, s2, 3
    s_add_u32 s70, s70, s42
    s_cmp_ge_u32 s70, 1920
    s_cbranch_scc1 {l}
    s_sub_u32 s71, s70, 512
    s_mov_b32 s74, 0x400000
    s_cmp_lt_u32 s70, 512
    s_cselect_b32 s72, s64, s66
    s_cselect_b32 s73, s65, s67
    s_cselect_b32 s74, 0x200000, s74
    s_cselect_b32 s71, s70, s71
    s_sub_u32 s3, s70, 1536
    s_cmp_ge_u32 s70, 1536
    s_cselect_b32 s72, s68, s72
    s_cselect_b32 s73, s69, s73
    s_cselect_b32 s74, 0x180000, s74
    s_cselect_b32 s71, s3, s71
    s_mov_b32 s75, 0x00020000
    s_lshl_b32 s71, s71, 12
    v_lshlrev_b32 v6, 6, v2
    buffer_load_dword v240, v6, s[72:75], s71 offen
    {l}:
    s_cmp_lg_u32 s70, 1920
    s_cbranch_scc1 {l}b
    s_movk_i32 s78, 16384
    s_mov_b32 s79, 0x00020000
    s_movk_i32 s82, 1024
    s_mov_b32 s83, 0x00020000
    v_lshlrev_b32 v6, 7, v2
    s_movk_i32 s3, 8192
    buffer_load_dword v241, v6, s[76:79], 0 offen
    buffer_load_dword v242, v6, s[76:79], s3 offen
    buffer_load_dword v243, v6, s[80:83], 0 offen
    {l}b:
    """)
def gen_k1():
    a = Asm()
    ACC = 64; XF = 192; WF = 224
    a(f"""
    s_cmp_ge_u32 s2, {NWG1}
    s_cbranch_scc1 L_k1_end
    s_load_dwordx8 s[4:11], s[0:1], 8
    s_load_dwordx2 s[20:21], s[0:1], 104
    s_load_dwordx2 s[64:65], s[0:1], 0
    s_load_dwordx2 s[66:67], s[0:1], 16
    s_load_dwordx2 s[68:69], s[0:1], 56
    s_load_dwordx2 s[76:77], s[0:1], 64
    s_load_dwordx2 s[80:81], s[0:1], 80
    s_and_b32 s40, s2, 7
    s_lshl_b32 s40, s40, 2
    s_bfe_u32 s3, s2, 0x20003
    s_add_u32 s40, s40, s3
    s_lshr_b32 s41, s2, 5
    v_lshrrev_b32 v1, 6, v0
    s_nop 0
    v_readfirstlane_b32 s42, v1
    v_and_b32 v2, 63, v0
    s_lshr_b32 s45, s40, 4
    s_and_b32 s44, s40, 15
    s_lshl_b32 s44, s44, 9
    s_lshr_b32 s48, s42, 2
    s_and_b32 s49, s42, 3
    s_lshl_b32 s46, s42, 5
    s_lshl_b32 s47, s41, 8
    s_add_u32 s46, s46, s47
    s_lshl_b32 s47, s48, 7
    s_waitcnt lgkmcnt(0)
    s_mov_b32 s24, s4
    s_mov_b32 s25, s5
    s_mov_b32 s26, 0x200000
    s_mov_b32 s27, 0x00020000
    s_cmp_eq_u32 s45, 0
    s_cselect_b32 s28, s8, s10
    s_cselect_b32 s29, s9, s11
    s_mov_b32 s30, 0x400000
    s_mov_b32 s31, 0x00020000
    s_mov_b32 s32, s20
    s_mov_b32 s33, s21
    s_mov_b32 s34, 0x10000000
    s_mov_b32 s35, 0x00020000
    s_or_b32 s3, s2, s42
    s_cmp_lg_u32 s3, 0
    s_cbranch_scc1 L_k1_nz
    v_lshlrev_b32 v5, 8, v2
    v_mov_b32 v6, 0
    s_mov_b32 s3, {hex(WS_CNT)}
    buffer_store_dword v6, v5, s[32:35], s3 offen
    L_k1_nz:
    s_mov_b32 s52, {8192*32}
    """)
    gemm_setup(a, "s46", "s47")
    a("""
    s_lshr_b32 s46, s49, 1
    s_lshl_b32 s46, s46, 13
    v_add_u32 v4, s46, v4
    s_and_b32 s46, s49, 1
    s_lshl_b32 s46, s46, 1
    """)
    for nb in range(2):
        a(f"s_add_u32 s47, s46, {nb}\nv_xor_b32 v5, s47, v3\nv_lshl_add_u32 v{RW+nb}, v5, 6, v4")
    a("""
    v_lshrrev_b32 v4, 4, v2
    v_and_b32 v5, 15, v2
    v_lshlrev_b32 v6, 2, v4
    v_xor_b32 v5, v5, v6
    v_lshlrev_b32 v5, 4, v5
    s_lshl_b32 s46, s48, 8
    s_add_u32 s46, s46, s44
    v_add_u32 v5, s46, v5
    s_lshl_b32 s46, s49, 3
    v_add_u32 v4, s46, v4
    """)
    for i in range(2):
        a(f"v_add_u32 v6, {4*i}, v4\nv_lshl_add_u32 v{VOW+i}, v6, 13, v5")
    gemm_prologue(a)
    PFK = int(os.environ.get("PFK", "6"))
    if PFK < 0: pf(a)
    def ex(kk, s, n):
        if kk == PFK and s == 0 and n == 7: pf(a)
    if os.environ.get("SPF") == "1": a("""
    s_lshl_b32 s70, s2, 3
    s_add_u32 s70, s70, s42
    s_cmp_ge_u32 s70, 1280
    s_cbranch_scc1 L_k1_npf0
    s_sub_u32 s71, s70, 256
    s_mov_b32 s74, 0x400000
    s_cmp_lt_u32 s70, 256
    s_cselect_b32 s72, s4, s8
    s_cselect_b32 s73, s5, s9
    s_cselect_b32 s74, 0x200000, s74
    s_cselect_b32 s71, s70, s71
    s_sub_u32 s3, s70, 768
    s_cmp_ge_u32 s70, 768
    s_cselect_b32 s72, s10, s72
    s_cselect_b32 s73, s11, s73
    s_cselect_b32 s71, s3, s71
    s_mov_b32 s75, 0x00020000
    s_lshl_b32 s71, s71, 13
    v_lshlrev_b32 v240, 7, v2
    buffer_load_dword v240, v240, s[72:75], s71 offen
    L_k1_npf0:
    """)
    a("""
    s_and_b32 s57, s40, 15
    s_lshl_b32 s57, s57, 1
    s_lshr_b32 s46, s49, 1
    s_add_u32 s57, s57, s46
    s_and_b32 s49, s49, 1
    """)
    if os.environ.get("TLB", "0") == "1": a(f"""
    s_lshl_b32 s84, s57, 19
    s_lshl_b32 s85, s45, 24
    s_add_u32 s84, s84, s85
    s_add_u32 s84, s84, {hex(WS_K)}
    s_lshl_b32 s85, s41, 16
    s_add_u32 s84, s84, s85
    s_lshl_b32 s85, s48, 15
    s_add_u32 s84, s84, s85
    v_lshlrev_b32 v240, 9, v2
    buffer_load_dword v240, v240, s[32:35], s84 offen
    """)
    a("""
    s_cmp_eq_u32 s45, 1
    s_cbranch_scc1 L_k1_vtype
    """)
    gemm_core(a, 4, [(0, 0), (1, 0)], ACC, XF, WF, False, ex)
    a(f"""
    s_lshl_b32 s46, s57, 19
    s_add_u32 s46, s46, {hex(WS_K)}
    s_lshl_b32 s47, s41, 16
    s_add_u32 s46, s46, s47
    s_lshl_b32 s47, s48, 15
    s_add_u32 s46, s46, s47
    s_lshl_b32 s47, s49, 12
    s_add_u32 s46, s46, s47
    v_lshlrev_b32 v5, 4, v2
    """)
    a("s_waitcnt vmcnt(0)\ns_mov_b32 s90, s46\nv_mov_b32 v14, v5\nv_add_u32 v15, 2048, v5")
    for mb in range(4):
        for nb in range(2):
            for hf in range(2):
                b = ACC + (mb*2+nb)*16 + hf*8
                t = k2.HOME[mb*4+nb*2+hf]
                for p in range(4):
                    a(f"v_cvt_pk_bf16_f32 v{t+p}, v{b+2*p}, v{b+2*p+1}")
    a("s_branch L_k1_q")
    a("L_k1_vtype:")
    gemm_core(a, 4, [(0, 0), (1, 0)], ACC, XF, WF, True, ex)
    a(f"""
    s_lshl_b32 s46, s57, 19
    s_add_u32 s46, s46, {hex(WS_V)}
    s_lshl_b32 s47, s41, 16
    s_add_u32 s46, s46, s47
    s_lshl_b32 s47, s48, 15
    s_add_u32 s46, s46, s47
    s_lshl_b32 s47, s49, 11
    s_add_u32 s46, s46, s47
    v_lshlrev_b32 v5, 4, v2
    """)
    a("s_waitcnt vmcnt(0)\ns_mov_b32 s90, s46\nv_mov_b32 v14, v5\nv_add_u32 v15, 4096, v5")
    for mb in range(4):
        for hf in range(2):
            for nb in range(2):
                b = ACC + (mb*2+nb)*16 + hf*8
                t = k2.HOME[mb*4+hf*2+nb]
                for p in range(4):
                    a(f"v_cvt_pk_bf16_f32 v{t+p}, v{b+2*p}, v{b+2*p+1}")
    a("L_k1_q:\ns_barrier")
    k2.qpro(a)
    a("L_k1_end:\ns_endpgm")
    return a.text()
```

```python
from common import *
from gemm import *
import k3
import struct, os
def f32bits(x): return struct.unpack("<I", struct.pack("<f", x))[0]
NWG2 = 256
O = 64; SS = [128, 160]; P = 192; Q = 208
FS = [36, 40, 44, 48, 52, 56, 60, 240]
KA = 8; VA = 16
VM = 20; VL = 21; VTHR = 22; VDMA = 23
KB = [0, 32768]; VB = [65536, 98304]
INSTR = os.environ.get("INSTR") == "1"
FORCE = os.environ.get("FORCE") == "1"
SPR = os.environ.get("SPR", "1") == "1"
G0S = int(os.environ.get("G0S", "16"))
HOME = [216+4*i for i in range(10)] + [48+4*i for i in range(4)] + [32, 36]
def qpro(a):
    ACC = 64; XF = 160; WF = 168
    a(f"""
    s_load_dwordx2 s[4:5], s[0:1], 104
    s_load_dwordx2 s[24:25], s[0:1], 0
    s_load_dwordx2 s[28:29], s[0:1], 16
    s_load_dwordx2 s[6:7], s[0:1], 56
    s_load_dwordx2 s[8:9], s[0:1], 64
    s_and_b32 s40, s2, 7
    s_lshl_b32 s40, s40, 2
    s_bfe_u32 s3, s2, 0x20003
    s_add_u32 s40, s40, s3
    s_lshr_b32 s41, s2, 5
    v_lshrrev_b32 v1, 6, v0
    s_nop 0
    v_readfirstlane_b32 s42, v1
    v_and_b32 v2, 63, v0
    s_lshr_b32 s48, s42, 2
    s_and_b32 s49, s42, 3
    s_sub_u32 s46, 15, s41
    s_cmp_eq_u32 s48, 0
    s_cselect_b32 s46, s46, s41
    s_lshl_b32 s46, s46, 7
    s_lshl_b32 s47, s49, 5
    s_add_u32 s43, s46, s47
    s_lshl_b32 s47, s42, 5
    s_waitcnt lgkmcnt(0)
    s_mov_b32 s26, 0x200000
    s_mov_b32 s27, 0x00020000
    s_mov_b32 s30, 0x180000
    s_movk_i32 s44, 3072
    s_cmp_eq_u32 s48, 0
    s_cselect_b32 s28, s28, s6
    s_cselect_b32 s29, s29, s7
    s_cselect_b32 s30, 0x400000, s30
    s_cselect_b32 s44, 8192, s44
    s_mov_b32 s31, 0x00020000
    s_mov_b32 s32, s4
    s_mov_b32 s33, s5
    s_mov_b32 s34, 0x10000000
    s_mov_b32 s35, 0x00020000
    s_lshl_b32 s52, s44, 5
    """)
    gemm_setup(a, "s43", "s47")
    for b in range(4):
        a(f"v_xor_b32 v5, {b}, v3\nv_lshl_add_u32 v{RW+b}, v5, 6, v4")
    a(f"""
    v_lshrrev_b32 v5, 5, v2
    v_lshl_add_u32 v5, v5, 3, v3
    v_lshlrev_b32 v5, 7, v5
    v_and_b32 v6, 3, v2
    v_lshl_add_u32 v5, v6, 3, v5
    v_bfe_u32 v6, v2, 4, 1
    v_lshl_add_u32 v5, v6, 5, v5
    v_add_u32 v5, {WBASE + 8192}, v5
    v_lshrrev_b32 v6, 1, v3
    v_lshl_add_u32 v{RW+4}, v6, 6, v5
    v_xor_b32 v{RW+5}, 64, v{RW+4}
    s_cmp_eq_u32 s48, 0
    s_cbranch_scc1 L_k2_wq
    v_lshrrev_b32 v4, 3, v2
    v_bfe_u32 v6, v2, 4, 1
    v_lshlrev_b32 v6, 2, v6
    v_and_b32 v5, 7, v2
    v_xor_b32 v5, v5, v6
    v_lshrrev_b32 v6, 1, v5
    v_min_u32 v6, 2, v6
    v_lshlrev_b32 v6, 10, v6
    v_and_b32 v7, 1, v5
    v_lshl_add_u32 v6, v7, 4, v6
    s_lshl_b32 s46, s40, 5
    v_add_u32 v5, s46, v6
    s_lshl_b32 s46, s49, 3
    v_add_u32 v4, s46, v4
    v_mul_lo_u32 v6, v4, s44
    v_add_u32 v{VOW}, v6, v5
    v_mov_b32 v{VOW+1}, v{VOW}
    s_lshl_b32 s54, s49, 10
    s_add_u32 s54, s54, 8192
    s_branch L_k2_wdone
    L_k2_wq:
    v_lshrrev_b32 v4, 4, v2
    v_and_b32 v5, 15, v2
    v_lshlrev_b32 v6, 2, v4
    v_xor_b32 v5, v5, v6
    v_lshlrev_b32 v5, 4, v5
    s_lshl_b32 s46, s40, 8
    v_add_u32 v5, s46, v5
    s_lshl_b32 s46, s49, 3
    v_add_u32 v4, s46, v4
    """)
    for i in range(2):
        a(f"v_add_u32 v6, {4*i}, v4\nv_mul_lo_u32 v6, v6, s44\nv_add_u32 v{VOW+i}, v6, v5")
    a("L_k2_wdone:")
    srd(a, 8, "s8", "s9", 16384)
    a("""
    v_and_b32 v5, 15, v2
    v_lshlrev_b32 v5, 1, v5
    v_lshrrev_b32 v4, 5, v2
    v_lshl_add_u32 v5, v4, 7, v5
    s_lshl_b32 s3, s40, 9
    v_add_u32 v5, s3, v5
    """)
    for j in range(8):
        a(f"buffer_load_ushort v{40+j}, v5, s[8:11], 0 offen offset:{((j//4)*8 + j%4)*32}")
    gemm_prologue(a, True)
    def kvst(kk, s, n):
        if n == 5 and (s == 0 if SPR else kk < 8):
            j = kk if SPR else kk*2 + s
            a(f"buffer_store_dwordx4 {vr(HOME[j],4)}, v{14 + (j%4)//2}, s[32:35], s90 offen offset:{(j%2)*1024}")
            if j % 4 == 3: a("s_add_u32 s90, s90, 8192")
    if os.environ.get("XPF", "0") == "1": a("""
    s_lshl_b32 s46, s43, 10
    s_and_b32 s47, s40, 3
    s_lshl_b32 s47, s47, 13
    s_add_u32 s46, s46, s47
    v_lshlrev_b32 v244, 7, v2
    buffer_load_dword v244, v244, s[24:27], s46 offen
    s_cmp_ge_u32 s42, 2
    s_cbranch_scc1 L_k2_nxpf
    s_lshl_b32 s46, s41, 19
    s_lshl_b32 s47, s42, 18
    s_add_u32 s46, s46, s47
    s_lshl_b32 s47, s40, 8
    s_add_u32 s46, s46, s47
    v_lshrrev_b32 v245, 1, v2
    v_lshlrev_b32 v245, 13, v245
    v_and_b32 v246, 1, v2
    v_lshl_add_u32 v245, v246, 7, v245
    buffer_load_dword v245, v245, s[28:31], s46 offen
    L_k2_nxpf:
    """)
    gemm_core(a, 1, [(0,0),(1,0),(2,0),(3,0),(4,0,2048,512),(5,0,2048,512)], ACC, XF, WF, False, kvst, True, (lambda kk, s: 1 if (kk >= 0 and s == 0) else 0) if SPR else (lambda kk, s: 1 if 0 <= kk < 8 else 0))
    a(f"""
    v_and_b32 v3, 31, v2
    v_lshrrev_b32 v4, 5, v2
    s_lshl_b32 s46, s40, 3
    s_add_u32 s46, s46, s41
    s_lshl_b32 s46, s46, 16
    s_lshl_b32 s47, s42, 13
    s_add_u32 s46, s46, s47
    s_add_u32 s91, s46, {hex(WS_Q)}
    v_lshlrev_b32 v5, 4, v2
    v_add_u32 v14, 4096, v5
    s_barrier
    """)
    for n in range(8, 11):
        nb, hf = n // 2, n % 2
        b = ACC + nb*16 + hf*8; t = XF + (n-8)*4
        for p in range(4): a(f"v_cvt_pk_bf16_f32 v{t+p}, v{b+2*p}, v{b+2*p+1}")
    W = 28; TK = 128; TQ = 144; AF = 48; BF = 52; KACC = 216
    a("v_cmp_lt_u32 vcc, 15, v3\nv_mov_b32 v6, 0\nv_mov_b32 v7, 0x80008000\ns_nop 0\nv_cndmask_b32 v6, v6, v7, vcc")
    for p in range(4):
        a(f"v_lshl_or_b32 v{W+p}, v{41+2*p}, 16, v{40+2*p}\nv_xor_b32 v{W+p}, v{W+p}, v6")
    a(f"""
    s_nop 1
    v_mfma_f32_32x32x16_bf16 {vr(TK,16)}, {vr(W,4)}, {vr(XF+4,4)}, 0
    """)
    for n in range(8):
        nb, hf = n // 2, n % 2
        b = ACC + nb*16 + hf*8; t = Q + n*4
        for p in range(4): a(f"v_cvt_pk_bf16_f32 v{t+p}, v{b+2*p}, v{b+2*p+1}")
        a(f"buffer_store_dwordx4 {vr(t,4)}, {'v5' if n < 4 else 'v14'}, s[32:35], s91 offen offset:{(n%4)*1024}")
    a(f"""
    s_mov_b32 s56, s40
    s_mov_b32 s40, {k3.LOG2E}
    s_lshl_b32 s28, s42, 12
    s_add_u32 s28, s28, 32768
    v_lshlrev_b32 v33, 6, v3
    v_add_u32 v33, s28, v33
    v_lshl_add_u32 v34, v4, 3, v33
    v_lshl_add_u32 v33, v4, 4, v33
    v_bfe_u32 v7, v2, 2, 2
    v_lshl_add_u32 v6, v4, 3, v7
    v_lshlrev_b32 v6, 6, v6
    v_and_b32 v7, 3, v2
    v_lshl_add_u32 v6, v7, 3, v6
    v_bfe_u32 v7, v2, 4, 1
    v_lshl_add_u32 v6, v7, 5, v6
    v_add_u32 v35, s28, v6
    v_mov_b32 v40, 0
    v_mov_b32 v41, 0
    v_mov_b32 v42, 0
    v_mov_b32 v43, 0
    v_mov_b32 v7, 0x3f80
    v_cmp_eq_u32 vcc, 0, v4
    s_nop 1
    v_cndmask_b32 v40, v40, v7, vcc
    ds_write_b128 v33, v[40:43] offset:{2048+32}
    ds_write_b128 v33, {vr(XF+8,4)} offset:2048
    """)
    k3.rnd16(a, TK, 44)
    k3.softmax16(a, TK, 44)
    for p in range(8): a(f"v_cvt_pk_bf16_f32 v{64+p}, v{TK+2*p}, v{TK+2*p+1}")
    for q in range(4): a(f"ds_write_b64 v34, {vr(64+2*q,2)} offset:{q*16}")
    a("s_waitcnt lgkmcnt(0)")
    for ks in range(2):
        a(f"""
        ds_read_b64_tr_b16 {vr(AF+ks*8,2)}, v35 offset:{ks*1024}
        ds_read_b64_tr_b16 {vr(AF+ks*8+2,2)}, v35 offset:{ks*1024+256}
        ds_read_b64_tr_b16 {vr(BF+ks*8,2)}, v35 offset:{2048+ks*1024}
        ds_read_b64_tr_b16 {vr(BF+ks*8+2,2)}, v35 offset:{2048+ks*1024+256}
        """)
    a("s_waitcnt lgkmcnt(0)")
    for ks in range(2):
        a(f"v_mfma_f32_32x32x16_bf16 {vr(KACC,16)}, {vr(AF+ks*8,4)}, {vr(BF+ks*8,4)}, {'0' if ks==0 else vr(KACC,16)}")
    a(f"""
    s_lshl_b32 s46, s56, 11
    s_add_u32 s46, s46, s43
    v_add_u32 v6, s46, v3
    v_lshlrev_b32 v6, 5, v6
    v_lshl_add_u32 v6, v4, 4, v6
    s_mov_b32 s47, {hex(WS_QKVB)}
    buffer_store_dwordx4 {vr(XF,4)}, v6, s[32:35], s47 offen sc1
    s_nop 7
    s_nop 7
    v_lshlrev_b32 v5, 4, v2
    v_add_u32 v6, s28, v5
    """)
    for q in range(4): a(f"ds_write_b128 v6, {vr(KACC+q*4,4)} offset:{32768+q*1024}")
    a(f"""
    s_waitcnt lgkmcnt(0)
    s_barrier
    s_cmp_ge_u32 s42, 4
    s_cbranch_scc1 L_k2_nored
    s_lshl_b32 s3, s42, 10
    v_add_u32 v5, s3, v5
    v_add_u32 v7, 0x8000, v5
    """)
    for w in range(8): a(f"ds_read_b128 {vr(64+w*4,4)}, v7 offset:{32768+w*4096}")
    a("s_waitcnt lgkmcnt(0)")
    for i in range(4):
        a(f"""v_add_f32 v{64+i}, v{64+i}, v{68+i}
        v_add_f32 v{72+i}, v{72+i}, v{76+i}
        v_add_f32 v{80+i}, v{80+i}, v{84+i}
        v_add_f32 v{88+i}, v{88+i}, v{92+i}
        v_add_f32 v{64+i}, v{64+i}, v{72+i}
        v_add_f32 v{80+i}, v{80+i}, v{88+i}
        v_add_f32 v{64+i}, v{64+i}, v{80+i}""")
    a(f"""
    s_lshl_b32 s3, s56, 3
    s_add_u32 s3, s3, s41
    s_lshl_b32 s3, s3, 12
    s_add_u32 s3, s3, {hex(WS_KVP)}
    buffer_store_dwordx4 v[64:67], v5, s[32:35], s3 offen sc1
    L_k2_nored:
    s_barrier
    """)
PART = 160; QB = 176; WPH = 180; GX = 208; GW = 212
def ob_qload(a):
    a(f"""
    s_lshl_b32 s3, s24, 11
    s_add_u32 s3, s3, s82
    v_add_u32 v6, s3, v3
    v_lshlrev_b32 v6, 5, v6
    v_lshl_add_u32 v6, v4, 4, v6
    s_mov_b32 s3, {hex(WS_QKVB)}
    buffer_load_dwordx4 {vr(QB,4)}, v6, s[64:67], s3 offen sc1
    """)
def ob_tok(a, j):
    a(f"""
    s_sub_u32 s82, 15, {j}
    s_cmp_eq_u32 s27, 0
    s_cselect_b32 s82, s82, {j}
    s_lshl_b32 s82, s82, 7
    s_lshl_b32 s3, s28, 5
    s_add_u32 s82, s82, s3
    """)
def ob_pre(a):
    a(f"""
    s_cmp_eq_u32 s36, 0
    s_cbranch_scc1 L_k2_nopf
    v_and_b32 v3, 31, v2
    v_lshrrev_b32 v4, 5, v2
    s_lshl_b32 s83, s2, 3
    s_add_u32 s83, s83, s26
    s_lshl_b32 s3, s83, 10
    v_lshlrev_b32 v6, 4, v2
    buffer_load_dwordx4 {vr(GX,4)}, v6, s[72:75], s3 offen
    buffer_load_dwordx4 {vr(GW,4)}, v6, s[76:79], 0 offen
    s_bitcmp0_b32 s80, 0
    s_cbranch_scc1 L_k2_nopf
    """)
    ob_tok(a, "s25")
    ob_qload(a)
    a("""
    v_and_b32 v5, 15, v3
    v_lshlrev_b32 v5, 1, v5
    v_lshl_add_u32 v5, v4, 7, v5
    s_lshl_b32 s3, s24, 9
    v_add_u32 v5, s3, v5
    """)
    for j in range(8):
        a(f"buffer_load_ushort v{WPH+j}, v5, s[68:71], 0 offen offset:{((j//4)*8 + j%4)*32}")
    a(f"""
    s_lshl_b32 s3, s24, 15
    s_lshl_b32 s37, s27, 14
    s_add_u32 s3, s3, s37
    s_lshl_b32 s37, s28, 10
    s_add_u32 s3, s3, s37
    s_add_u32 s3, s3, {hex(WS_KVP)}
    v_lshlrev_b32 v5, 4, v2
    v_cmp_gt_u32 vcc, 17, v3
    s_nop 1
    s_mov_b64 exec, vcc
    """)
    for c in range(4):
        a(f"buffer_load_dwordx4 {vr(PART+c*4,4)}, v5, s[64:67], s3 offen sc1\ns_add_u32 s3, s3, 4096")
    a("s_mov_b64 exec, -1\nL_k2_nopf:")
def ob_post(a):
    W = 36; T = 40; PF = 48; KVF = 56; D2 = 128; EX = 64
    a(f"""
    s_cmp_eq_u32 s36, 0
    s_cbranch_scc1 L_k2_obskip
    s_mov_b32 s40, {k3.LOG2E}
    s_bitcmp0_b32 s80, 0
    s_cbranch_scc1 L_k2_gate
    """)
    for r in range(4):
        a(f"""v_add_f32 v{PART+r}, v{PART+r}, v{PART+4+r}
        v_add_f32 v{PART+8+r}, v{PART+8+r}, v{PART+12+r}
        v_add_f32 v{PART+r}, v{PART+r}, v{PART+8+r}""")
    a(f"""
    v_lshlrev_b32 v5, 4, v2
    s_lshl_b32 s3, s26, 10
    v_add_u32 v6, s3, v5
    ds_write_b128 v6, {vr(PART,4)}
    v_cmp_lt_u32 vcc, 15, v3
    v_mov_b32 v6, 0
    v_mov_b32 v7, 0x80008000
    s_nop 0
    v_cndmask_b32 v6, v6, v7, vcc
    """)
    for p in range(4):
        a(f"v_lshl_or_b32 v{W+p}, v{WPH+1+2*p}, 16, v{WPH+2*p}\nv_xor_b32 v{W+p}, v{W+p}, v6")
    a("s_waitcnt lgkmcnt(0)\ns_barrier")
    for w in range(8): a(f"ds_read_b128 {vr(EX+w*4,4)}, v5 offset:{w*1024}")
    a("L_k2_obloop:")
    a(f"""
    v_mfma_f32_32x32x16_bf16 {vr(D2,16)}, {vr(W,4)}, {vr(QB,4)}, 0
    s_lshr_b32 s3, s82, 5
    s_mul_i32 s3, s3, {36*8192}
    s_lshl_b32 s37, s24, 10
    s_add_u32 s3, s3, s37
    s_add_u32 s84, s3, {32*8192}
    s_waitcnt lgkmcnt(0)
    """)
    for r in range(16): a(f"v_add_f32 v{EX+32+r}, v{EX+r}, v{EX+16+r}")
    for p in range(8): a(f"v_cvt_pk_bf16_f32 v{KVF+p}, v{EX+32+2*p}, v{EX+33+2*p}")
    k3.rnd16(a, D2, T)
    k3.softmax16(a, D2, T)
    for p in range(8): a(f"v_cvt_pk_bf16_f32 v{PF+p}, v{D2+2*p}, v{D2+2*p+1}")
    a(f"""
    s_nop 1
    v_mfma_f32_32x32x16_bf16 {vr(D2,16)}, {vr(KVF,4)}, {vr(PF,4)}, 0
    v_mfma_f32_32x32x16_bf16 {vr(D2,16)}, {vr(KVF+4,4)}, {vr(PF+4,4)}, {vr(D2,16)}
    s_nop 15
    s_nop 3
    v_mov_b32 v{T}, v{D2+8}
    v_mov_b32 v{T+1}, v{D2+8}
    s_nop 1
    v_permlane32_swap_b32 v{T}, v{T+1}
    s_nop 1
    v_cvt_pk_bf16_f32 v{T}, v{T}, v{T}
    v_and_b32 v{T}, 0xffff0000, v{T}
    v_add_f32 v{T}, 0x358637bd, v{T}
    v_cvt_pk_bf16_f32 v{T}, v{T}, v{T}
    v_and_b32 v{T}, 0xffff0000, v{T}
    v_rcp_f32 v{T}, v{T}
    """)
    for i in range(4):
        a(f"v_cvt_pk_bf16_f32 v{T+1}, v{D2+2*i}, v{D2+2*i+1}\nv_lshlrev_b32 v{D2+2*i}, 16, v{T+1}\nv_and_b32 v{D2+2*i+1}, 0xffff0000, v{T+1}")
    for i in range(8): a(f"v_mul_f32 v{D2+i}, v{D2+i}, v{T}")
    for p in range(4): a(f"v_cvt_pk_bf16_f32 v{T+4+p}, v{D2+2*p}, v{D2+2*p+1}")
    a(f"""
    buffer_store_dwordx4 {vr(T+4,4)}, v5, s[20:23], s84 offen
    s_lshr_b32 s3, s80, 8
    s_cmp_eq_u32 s3, 0
    s_cbranch_scc1 L_k2_gate
    s_ff1_i32_b32 s85, s3
    s_add_u32 s3, s85, 8
    s_bitset0_b32 s80, s3
    """)
    ob_tok(a, "s85")
    ob_qload(a)
    a("s_waitcnt vmcnt(0)\ns_branch L_k2_obloop\nL_k2_gate:\nv_mov_b32 v8, 0\nv_mov_b32 v9, 0")
    for i in range(4):
        a(f"""
        v_lshlrev_b32 v10, 16, v{GX+i}
        v_lshlrev_b32 v11, 16, v{GW+i}
        v_fmac_f32 v8, v10, v11
        v_and_b32 v10, 0xffff0000, v{GX+i}
        v_and_b32 v11, 0xffff0000, v{GW+i}
        v_fmac_f32 v9, v10, v11
        """)
    a("v_add_f32 v8, v8, v9")
    for off in (0x041F, 0x081F, 0x101F, 0x201F, 0x401F):
        a(f"ds_swizzle_b32 v9, v8 offset:{hex(off)}\ns_waitcnt lgkmcnt(0)\nv_add_f32 v8, v8, v9")
    a(f"""
    v_mov_b32 v9, v8
    s_nop 1
    v_permlane32_swap_b32 v8, v9
    s_nop 1
    v_add_f32 v8, v8, v9
    v_cvt_pk_bf16_f32 v8, v8, v8
    v_and_b32 v8, 0xffff0000, v8
    v_mul_f32 v8, s40, v8
    v_sub_f32 v8, 0, v8
    v_exp_f32 v8, v8
    s_nop 0
    v_add_f32 v8, 1.0, v8
    v_rcp_f32 v8, v8
    s_nop 0
    v_cvt_pk_bf16_f32 v8, v8, v8
    v_and_b32 v8, 0xffff0000, v8
    s_lshl_b32 s3, s83, 2
    s_add_u32 s3, s3, {hex(WS_G)}
    s_mov_b64 exec, 1
    buffer_store_dword v8, v247, s[64:67], s3 offen
    s_mov_b64 exec, -1
    L_k2_obskip:
    """)
def gen_k2():
    a = Asm()
    def stamp():
        if INSTR: a("s_memtime s[60:61]\ns_waitcnt lgkmcnt(0)\ns_and_b32 s59, s59, 63\ns_mov_b32 m0, s59\ns_nop 3\nv_writelane_b32 v244, s60, m0\ns_add_u32 s59, s59, 1")
    a(f"""
    s_cmp_ge_u32 s2, {NWG2}
    s_cbranch_scc1 L_k2_end
    """)
    a(f"""
    s_load_dwordx2 s[4:5], s[0:1], 104
    s_load_dwordx2 s[72:73], s[0:1], 0
    s_load_dwordx2 s[68:69], s[0:1], 64
    s_load_dwordx2 s[76:77], s[0:1], 80
    s_load_dwordx2 s[86:87], s[0:1], 40
    s_load_dwordx2 s[88:89], s[0:1], 72
    s_and_b32 s24, s2, 7
    s_lshl_b32 s24, s24, 2
    s_bfe_u32 s3, s2, 0x20003
    s_add_u32 s24, s24, s3
    s_lshr_b32 s25, s2, 5
    v_lshrrev_b32 v1, 6, v0
    s_nop 0
    v_readfirstlane_b32 s26, v1
    v_and_b32 v2, 63, v0
    s_lshr_b32 s27, s26, 2
    s_and_b32 s28, s26, 3
    s_lshl_b32 s34, s26, 12
    s_mov_b32 s35, {hex(f32bits(128**-0.5 * 1.4426950408889634))}
    s_lshl_b32 s3, s24, 19
    s_waitcnt lgkmcnt(0)
    s_add_u32 s6, s4, s3
    s_addc_u32 s7, s5, 0
    """)
    srd_ws(a, 8, 6, WS_K, 0x80000)
    srd_ws(a, 12, 6, WS_V, 0x80000)
    srd_ws(a, 16, 6, WS_Q, 0x80000)
    srd_ws(a, 20, 4, WS_CTXO, 2048*CTX_PITCH)
    srd(a, 64, "s4", "s5", 0x10000000)
    a(f"""
    s_movk_i32 s70, 16384
    s_mov_b32 s71, 0x00020000
    s_mov_b32 s74, 0x200000
    s_mov_b32 s75, 0x00020000
    s_movk_i32 s78, 1024
    s_mov_b32 s79, 0x00020000
    s_lshl_b32 s81, s24, 8
    s_add_u32 s81, s81, {hex(WS_CNT)}
    s_mov_b32 s80, 1
    v_mov_b32 v245, 1
    v_mov_b32 v247, 0
    s_add_u32 s3, s25, 8
    s_lshl_b32 s3, 1, s3
    v_mov_b32 v246, s3
    v_and_b32 v3, 31, v2
    v_lshrrev_b32 v4, 5, v2
    v_lshlrev_b32 v{VDMA}, 4, v2
    v_add_u32 v{VDMA}, s34, v{VDMA}
    s_lshl_b32 s3, s27, 14
    v_lshlrev_b32 v5, 4, v2
    v_add_u32 v{KA}, s3, v5
    v_add_u32 v{VA}, 0x10000, v{KA}
    s_lshl_b32 s3, s28, 5
    s_lshl_b32 s37, s27, 6
    s_sub_u32 s3, s3, s37
    v_lshlrev_b32 v5, 2, v4
    v_sub_u32 v5, v3, v5
    v_add_u32 v{VTHR}, s3, v5
    s_mov_b32 s36, 0
    s_mov_b32 s59, 0
    """)
    if INSTR: a("v_mov_b32 v244, 0")

    def dma(srdreg, soff, buf):
        a(f"s_add_u32 m0, s34, {buf}\ns_nop 0")
        for j in range(4):
            a(f"buffer_load_dwordx4 v{VDMA}, s[{srdreg}:{srdreg+3}], {soff} offen offset:{j*1024} lds")
    def dpiece(srdreg, soff, buf, j, need):
        if need:
            l = a.label("nd")
            a(f"s_cmp_lt_u32 s38, {need}\ns_cbranch_scc1 {l}")
        a(f"s_add_u32 m0, s34, {buf}\ns_nop 0\nbuffer_load_dwordx4 v{VDMA}, s[{srdreg}:{srdreg+3}], {soff} offen offset:{j*1024} lds")
        if need: a(f"{l}:")
    def rd_item(it, slot, parv, park):
        k, s, b = it
        if k == "pv": a(f"ds_read_b128 {vr(FS[slot],4)}, v{VA} offset:{VB[parv]-65536+s*4096+b*1024}")
        else: a(f"ds_read_b128 {vr(FS[slot],4)}, v{KA} offset:{KB[park]+b*8192+s*1024}")
    QKI = [("qk", s, kb) for s in range(8) for kb in range(2)]
    PVI = [("pv", s, db) for s in range(4) for db in range(4)]
    def pre(items, parv, park):
        for i in range(8): rd_item(items[i], i, parv, park)
    def MM(items, parv, park, fill=None, ld=True, g1=False, mid=None, pre_mid=None):
        n = len(items); SQ = SS[park]; qi = 0
        for i, it in enumerate(items):
            k, s, b = it
            if mid is not None and i == 16:
                a(f"{mid}:")
                for x in pre_mid: a(x)
            a(f"s_waitcnt lgkmcnt({min(7, n-1-i)})")
            if k == "pv":
                if fill is not None and s == 0 and b == 0 and not g1: a("s_nop 1")
                acc = vr(O+b*16, 16)
                a(f"v_mfma_f32_32x32x16_bf16 {acc}, {vr(FS[i%8],4)}, {vr(P+s*4,4)}, {acc}")
            else:
                acc = vr(SQ+b*16, 16)
                a(f"v_mfma_f32_32x32x16_bf16 {acc}, {vr(FS[i%8],4)}, {vr(Q+s*4,4)}, {'0' if s==0 else acc}")
            if i + 8 < n: rd_item(items[i+8], i % 8, parv, park)
            if k == "qk" and fill is not None:
                for x in fill[qi]: a(x)
                qi += 1
            i0 = i - (G0S if not g1 else 0)
            if ld and 0 <= i0 < 16 and i0 % 2 == 1:
                j = i0 // 2
                if j < 4: dpiece(12, "s39" if g1 else "s33", VB[parv ^ 1], j, 0)
                else: dpiece(8, "s32", KB[park ^ 1], j - 4, 2)
    def SM_parts(S):
        lr = a.label("noresc")
        A = [f"v_max3_f32 v24, v{S}, v{S+1}, v{S+2}", f"v_max3_f32 v25, v{S+16}, v{S+17}, v{S+18}"]
        for i in range(3, 15, 2):
            A += [f"v_max3_f32 v24, v24, v{S+i}, v{S+i+1}", f"v_max3_f32 v25, v25, v{S+16+i}, v{S+16+i+1}"]
        A2 = f"""v_max3_f32 v24, v24, v{S+15}, v25
        v_max_f32 v24, v24, v{S+31}
        v_mov_b32 v25, v24
        s_nop 1
        v_permlane32_swap_b32 v24, v25
        s_nop 1
        v_max_f32 v24, v24, v25
        v_mul_f32 v24, s35, v24
        v_max_f32 v25, v{VM}, v24
        v_sub_f32 v26, v25, v{VM}
        v_cmp_lt_f32 vcc, 0x41000000, v26
        s_cbranch_vccz {lr}
        v_sub_f32 v26, 0, v26
        v_exp_f32 v26, v26
        v_mov_b32 v{VM}, v25
        s_nop 0
        v_mov_b32 v27, v26
        v_mul_f32 v{VL}, v{VL}, v26
        """ + "\n".join(f"v_pk_mul_f32 {vr(O+i,2)}, {vr(O+i,2)}, v[26:27]" for i in range(0, 64, 2)) + f"\n{lr}:\nv_sub_f32 v28, 0, v{VM}"
        B = []
        for p in range(17):
            if p < 16:
                B += [f"v_fma_f32 v{S+2*p}, v{S+2*p}, s35, v28", f"v_fma_f32 v{S+2*p+1}, v{S+2*p+1}, s35, v28"]
            if p >= 1:
                q = p - 1
                B += [f"v_exp_f32 v{S+2*q}, v{S+2*q}", f"v_exp_f32 v{S+2*q+1}, v{S+2*q+1}"]
            if p >= 2:
                q = p - 2
                B += [f"v_add_f32 v{VL}, v{VL}, v{S+2*q}", f"v_add_f32 v29, v29, v{S+2*q+1}" if q else f"v_mov_b32 v29, v{S+1}",
                      f"v_cvt_pk_bf16_f32 v{P+q}, v{S+2*q}, v{S+2*q+1}"]
        B += ["s_nop 0", f"v_add_f32 v{VL}, v{VL}, v{S+30}", f"v_add_f32 v29, v29, v{S+31}", f"v_cvt_pk_bf16_f32 v{P+15}, v{S+30}, v{S+31}", f"v_add_f32 v{VL}, v{VL}, v29"]
        return A, A2, B
    def mask(S):
        a("v_mov_b32 v24, 0xf149f2ca")
        for kb in range(2):
            for r in range(16):
                c = kb*32 + (r//4)*8 + r % 4
                a(f"v_cmp_gt_i32 vcc, {c}, v{VTHR}\ns_nop 1\nv_cndmask_b32 v{S+kb*16+r}, v{S+kb*16+r}, v24, vcc")
    def top():
        a(f"""
        s_waitcnt vmcnt(0)
        s_barrier
        s_add_u32 s3, s31, 1
        s_lshl_b32 s33, s3, 15
        s_sub_u32 s38, s30, s3
        s_add_u32 s3, s31, 2
        s_lshl_b32 s32, s3, 15
        s_lshl_b32 s39, s31, 15
        s_cmp_eq_u32 s38, 0
        """)
    def publish(force_sel):
        l = a.label("pub")
        a(f"s_or_b32 s3, s26, s36\ns_cmp_lg_u32 s3, 0\ns_cbranch_scc1 {l}")
        if FORCE: a(f"s_cmp_{'eq' if force_sel == 0 else 'lg'}_u32 s25, 0\ns_cbranch_scc1 {l}")
        a(f"s_mov_b64 exec, 1\nbuffer_atomic_add v245, v247, s[64:67], s81 offen sc0\ns_mov_b64 exec, -1\n{l}:")
    def check():
        lp = a.label("wpf")
        if os.environ.get("NOPF") != "1": a(f"""
        s_cmp_lg_u32 s36, 0
        s_cbranch_scc1 {lp}
        s_lshl_b32 s83, s2, 2
        s_add_u32 s83, s83, s28
        s_cmp_ge_u32 s83, 576
        s_cbranch_scc1 {lp}
        s_sub_u32 s3, s83, 512
        s_mov_b32 s94, 0x400000
        s_cmp_lt_u32 s83, 512
        s_cselect_b32 s92, s86, s88
        s_cselect_b32 s93, s87, s89
        s_cselect_b32 s94, s94, 0x80000
        s_cselect_b32 s3, s83, s3
        s_mov_b32 s95, 0x00020000
        s_lshl_b32 s3, s3, 13
        v_lshlrev_b32 v244, 7, v2
        buffer_load_dword v244, v244, s[92:95], s3 offen
        {lp}:
        """)
    a(f"""
    s_lshl_b32 s3, s24, 3
    s_add_u32 s3, s3, s25
    s_lshl_b32 s3, s3, 16
    s_lshl_b32 s37, s26, 12
    s_add_u32 s3, s3, s37
    s_add_u32 s3, s3, {hex(WS_Q)}
    s_lshl_b32 s37, s26, 13
    s_add_u32 s37, s37, 98304
    """)
    for hh in range(2):
        a(f"s_add_u32 m0, s37, {hh*4096}\ns_nop 0")
        for j in range(4): a(f"buffer_load_dwordx4 v{VDMA}, s[64:67], s3 offen offset:{j*1024} lds")
        a("s_add_u32 s3, s3, 4096")
    dma(8, "0", KB[0])
    a("s_waitcnt vmcnt(4)\ns_barrier")
    a("L_k2_pass:")
    a(f"""
    s_sub_u32 s29, 15, s25
    s_cmp_eq_u32 s36, 0
    s_cselect_b32 s29, s29, s25
    s_add_u32 s30, s29, 1
    s_lshl_b32 s3, s36, 15
    s_lshl_b32 s37, s28, 13
    s_add_u32 s3, s3, s37
    s_add_u32 s3, s3, 98304
    v_lshlrev_b32 v5, 4, v2
    v_add_u32 v5, s3, v5
    """)
    for s in range(8): a(f"ds_read_b128 {vr(Q+s*4,4)}, v5 offset:{s*1024}")
    dma(12, "0", VB[0])
    a(f"v_mov_b32 v{VM}, 0xe0ad78ec\nv_mov_b32 v{VL}, 0")
    for i in range(64): a(f"v_mov_b32 v{O+i}, 0")
    lk = a.label("nok1"); lk2 = a.label("nok1b")
    a(f"s_cmp_lt_u32 s30, 2\ns_cbranch_scc1 {lk}\ns_mov_b32 s32, 32768")
    dma(8, "s32", KB[1])
    a(f"s_waitcnt vmcnt(8)\ns_branch {lk2}\n{lk}:\ns_waitcnt vmcnt(4)\n{lk2}:")
    a("s_mov_b32 s31, 0\ns_waitcnt lgkmcnt(0)\ns_barrier")
    pre(QKI, 0, 0)
    MM(QKI, 0, 0, None, False)
    a("s_cmp_lg_u32 s27, 0\ns_cbranch_scc1 L_k2_g1loop")
    a("L_k2_loop:")
    def k0pf():
        l = a.label("k0pf")
        a(f"s_cmp_lg_u32 s36, 0\ns_cbranch_scc1 {l}")
        dma(8, "0", KB[0])
        a(f"{l}:")
    def mkfill(A, A2, B):
        fill = [[] for _ in range(16)]
        fill[0] = A[8:12]; fill[1] = A[12:] + [A2]
        per = (len(B) + 13) // 14
        for i in range(14): fill[2+i] = B[i*per:(i+1)*per]
        return fill
    for par in range(2):
        top()
        a(f"s_cbranch_scc1 L_k2_tail{par}")
        stamp()
        items = QKI + PVI
        pre(items, par, par ^ 1)
        A, A2, B = SM_parts(SS[par])
        for x in A[:8]: a(x)
        MM(items, par, par ^ 1, mkfill(A, A2, B))
        a("s_add_u32 s31, s31, 1")
        stamp()
    a("s_branch L_k2_loop")
    for par in range(2):
        a(f"L_k2_tail{par}:")
        pre(PVI, par, par ^ 1)
        check()
        k0pf()
        a("s_nop 7")
        mask(SS[par])
        A, A2, B = SM_parts(SS[par])
        for x in A: a(x)
        a(A2)
        for x in B: a(x)
        a("s_nop 1")
        MM(PVI, par, par ^ 1, None, False)
        a("s_barrier\ns_branch L_k2_merge")
    a("L_k2_g1first:")
    pre(QKI, 1, 1)
    for j in range(4): dpiece(8, "s32", KB[0], j, 2)
    a("s_branch L_k2_g1qk0")
    a("L_k2_g1loop:")
    for par in range(2):
        top()
        a(f"s_cbranch_scc1 L_k2_g1tail{par}")
        stamp()
        if par == 0: a("s_cmp_eq_u32 s31, 0\ns_cbranch_scc1 L_k2_g1first")
        items = PVI + QKI
        pre(items, par ^ 1, par ^ 1)
        A, A2, B = SM_parts(SS[par])
        MM(items, par ^ 1, par ^ 1, mkfill(A, A2, B), True, True, f"L_k2_g1qk{par}", A[:8])
        a("s_add_u32 s31, s31, 1")
        stamp()
    a("s_branch L_k2_g1loop")
    for par in range(2):
        a(f"L_k2_g1tail{par}:")
        for j in range(4): dpiece(12, "s39", VB[par], j, 0)
        k0pf()
        if par == 0: a("s_cmp_eq_u32 s31, 0\ns_cbranch_scc1 L_k2_g1t0")
        pre(PVI, par ^ 1, par ^ 1)
        MM(PVI, par ^ 1, par ^ 1, None, False)
        if par == 0: a("L_k2_g1t0:")
        a("s_nop 7")
        mask(SS[par])
        A, A2, B = SM_parts(SS[par])
        for x in A: a(x)
        a(A2)
        for x in B: a(x)
        a("s_waitcnt vmcnt(0)\ns_barrier")
        pre(PVI, par, par ^ 1)
        MM(PVI, par, par ^ 1, None, False)
        if par == 0: a("s_branch L_k2_merge")
    a("L_k2_merge:")
    S = SS[0]
    ob_pre(a)
    a(f"""
    s_nop 15
    v_mov_b32 v25, v{VL}
    s_nop 1
    v_permlane32_swap_b32 v{VL}, v25
    s_nop 1
    v_add_f32 v{VL}, v{VL}, v25
    s_lshl_b32 s3, s26, 13
    s_add_u32 s3, s3, 65536
    v_lshlrev_b32 v5, 4, v2
    v_add_u32 v5, s3, v5
    s_lshl_b32 s3, s26, 9
    v_lshlrev_b32 v6, 2, v2
    v_add_u32 v6, s3, v6
    s_xor_b32 s37, s26, 4
    s_barrier
    ds_write_b32 v6, v{VM} offset:32768
    ds_write_b32 v6, v{VL} offset:33024
    s_cmp_eq_u32 s27, 0
    s_cbranch_scc1 L_k2_m0
    """)
    def merge(g):
        lw = a.label("mw")
        keep = O + (0 if g == 0 else 32); send = O + (32 if g == 0 else 0)
        for q in range(8): a(f"ds_write_b128 v5, {vr(send+q*4,4)} offset:{q*1024}")
        a(f"""
        v_xor_b32 v5, 0x8000, v5
        v_xor_b32 v6, 0x800, v6
        s_waitcnt lgkmcnt(0)
        s_barrier
        ds_read_b32 v24, v6 offset:32768
        ds_read_b32 v25, v6 offset:33024
        """)
        for q in range(8): a(f"ds_read_b128 {vr(S+q*4,4)}, v5 offset:{q*1024}")
        a(f"""
        s_waitcnt lgkmcnt(8)
        v_max_f32 v26, v{VM}, v24
        v_sub_f32 v27, v{VM}, v26
        v_sub_f32 v28, v24, v26
        v_exp_f32 v27, v27
        v_exp_f32 v28, v28
        s_nop 0
        v_mul_f32 v29, v27, v{VL}
        v_fma_f32 v29, v28, v25, v29
        v_rcp_f32 v29, v29
        s_nop 0
        v_mul_f32 v27, v27, v29
        v_mul_f32 v28, v28, v29
        s_lshl_b32 s3, s29, 2
        s_add_u32 s3, s3, s28
        s_mul_i32 s3, s3, {36*8192}
        s_lshl_b32 s37, s24, 13
        s_add_u32 s3, s3, s37
        s_add_u32 s3, s3, {g*4096}
        v_lshlrev_b32 v5, 4, v2
        s_waitcnt lgkmcnt(0)
        s_cmp_eq_u32 s36, 0
        s_cbranch_scc1 {lw}
        s_waitcnt vmcnt(0)
        {lw}:
        """)
        for i in range(32):
            a(f"v_mul_f32 v{keep+i}, v27, v{keep+i}\nv_fma_f32 v{keep+i}, v28, v{S+i}, v{keep+i}")
        for q in range(4):
            for p in range(4):
                a(f"v_cvt_pk_bf16_f32 v{P+q*4+p}, v{keep+q*8+2*p}, v{keep+q*8+2*p+1}")
            a(f"buffer_store_dwordx4 {vr(P+q*4,4)}, v5, s[20:23], s3 offen offset:{q*1024}")
    merge(1)
    a("s_branch L_k2_mdone\nL_k2_m0:")
    merge(0)
    a("L_k2_mdone:")
    ob_post(a)
    if INSTR:
        a(f"""
        s_cmp_lg_u32 s36, 0
        s_cbranch_scc1 L_nodump
        s_lshl_b32 s3, s2, 3
        s_add_u32 s3, s3, s26
        s_lshl_b32 s3, s3, 8
        v_lshlrev_b32 v5, 2, v2
        v_add_u32 v5, s3, v5
        s_add_u32 s64, s4, {hex(100<<20)}
        s_addc_u32 s65, s5, 0
        s_mov_b32 s66, 0x1000000
        s_mov_b32 s67, 0x00020000
        buffer_store_dword v244, v5, s[64:67], 0 offen
        L_nodump:
        """)
    a("""
    s_barrier
    s_add_u32 s36, s36, 1
    s_cmp_lt_u32 s36, 2
    s_cbranch_scc1 L_k2_pass
    """)
    a("L_k2_end:\ns_endpgm")
    return a.text()
```

```python
from common import *
XB = 32768; WBASE = 98304; WST = 16384
GEMM_LDS = 163840
VOX = 8; VOW = 12; RX = 16; RW = 24
def gemm_setup(a, rowbase_sgpr, xrow_sgpr):
    a(f"""
    v_lshrrev_b32 v3, 3, v2
    v_add_u32 v3, {rowbase_sgpr}, v3
    v_lshrrev_b32 v4, 4, v2
    v_and_b32 v5, 7, v2
    v_xor_b32 v5, v5, v4
    v_xor_b32 v6, 4, v5
    v_lshlrev_b32 v5, 4, v5
    v_lshlrev_b32 v6, 4, v6
    """)
    for i in range(4):
        a(f"v_add_u32 v7, {8*i}, v3\nv_lshl_add_u32 v{VOX+i}, v7, 10, v{5 + (i&1)}")
    a(f"""
    v_and_b32 v3, 31, v2
    v_lshrrev_b32 v4, 5, v2
    v_add_u32 v5, {xrow_sgpr}, v3
    v_bfe_u32 v6, v3, 1, 3
    v_xor_b32 v6, v6, v4
    v_lshlrev_b32 v6, 4, v6
    v_lshl_add_u32 v{RX}, v5, 7, v6
    """)
    for c in range(1, 4): a(f"v_xor_b32 v{RX+c}, {c*32}, v{RX}")
    for c in range(4): a(f"v_add_u32 v{RX+4+c}, {2*XB}, v{RX+c}")
    a(f"""
    v_bfe_u32 v3, v2, 2, 2
    v_lshl_add_u32 v4, v4, 3, v3
    v_lshlrev_b32 v4, 8, v4
    v_and_b32 v5, 3, v2
    v_lshlrev_b32 v5, 3, v5
    v_bfe_u32 v6, v2, 4, 1
    v_lshl_add_u32 v5, v6, 5, v5
    v_add_u32 v4, v4, v5
    v_add_u32 v4, {WBASE}, v4
    s_bfe_u32 s50, s2, 0x20003
    s_lshl_b32 s50, s50, 1
    s_lshr_b32 s51, s2, 5
    s_add_u32 s50, s50, s51
    s_and_b32 s50, s50, 7
    s_lshl_b32 s51, s52, 1
    s_mul_i32 s51, s51, s50
    s_lshl_b32 s50, s50, 7
    s_lshl_b32 s55, s52, 4
    s_lshl_b32 s53, s42, 12
    s_lshl_b32 s54, s42, 11
    """)
ADV = "s_add_u32 s51, s51, s52\ns_cmp_eq_u32 s51, s55\ns_cselect_b32 s51, 0, s51"
def vwait(a, n0, n1):
    if n0 == n1:
        a(f"s_waitcnt vmcnt({n0})")
        return
    l1 = a.label("vw"); l2 = a.label("vw")
    a(f"s_cbranch_vccnz {l1}\ns_waitcnt vmcnt({n0})\ns_branch {l2}\n{l1}:\ns_waitcnt vmcnt({n1})\n{l2}:")
def gemm_core(a, nmb, wfr, ACC, XF, WF, swap, extra=None, compact=False, nst=None, rx=RX, rw=RW, xrot=0, barx=None):
    nw = len(wfr)
    def xp(p, i):
        j = (p & 1)*2 + i
        a(f"s_add_u32 m0, s53, {(((p>>1)+xrot)%3)*XB + j*1024}\ns_nop 0\nbuffer_load_dwordx4 v{VOX+j}, s[24:27], s50 offen lds")
        if j == 3: a("s_add_u32 s50, s50, 128\ns_and_b32 s50, s50, 1023")
    def wp(k, i, g=0):
        if compact and g == 1 and i == 1: return
        a(f"s_add_u32 m0, s54, {WBASE + (k%4)*WST + i*1024}\ns_nop 0\nbuffer_load_dwordx4 v{VOW+i}, s[28:31], s51 offen lds")
        if i == 1 or (compact and g == 1): a(ADV)
    nm = nmb*nw
    slots = {0: (0, 0), nm//2: (1, 0), nm//4 if nm == 8 else 1: (0, 1), nm//2 + (nm//4 if nm == 8 else 1): (1, 1)}
    issued = []
    def rd(kk, s, it):
        k, n = it
        b = ((kk >> 1) + xrot) % 3; c = (kk & 1)*2 + s
        if k == "x":
            a(f"ds_read_b128 {vr(XF+(s*nmb+n)*4,4)}, v{rx+(4 if b==2 else 0)+c} offset:{(b%2)*XB+n*4096}")
            issued.append((kk, s, k, n))
        else:
            r, eo = wfr[n][:2]; ss, sec = wfr[n][2:] if len(wfr[n]) > 2 else (4096, 1024)
            d = WF + (s*nw + n)*4
            o = (kk % 4)*WST + s*ss + eo
            a(f"ds_read_b64_tr_b16 {vr(d,2)}, v{rw+r} offset:{o}")
            a(f"ds_read_b64_tr_b16 {vr(d+2,2)}, v{rw+r} offset:{o+sec}")
            issued.append(None); issued.append((kk, s, k, n))
    if nmb == 4: order = [("w", 0), ("x", 0), ("w", 1), ("x", 1), ("x", 2), ("x", 3)]
    else: order = [("x", 0)] + [("w", n) for n in range(nw)]
    lastw = [99]
    def need(tags):
        i = max(issued.index(t) for t in tags)
        c = min(len(issued) - 1 - i, 15)
        if c < lastw[0]:
            a(f"s_waitcnt lgkmcnt({c})")
        lastw[0] = min(c, lastw[0])
    def half(kk, s, G, nxt, bar):
        n = 0; q = list(order) if nxt else []
        for mb in range(nmb):
            for nb in range(nw):
                acc = vr(ACC+(mb*nw+nb)*16, 16)
                xf = vr(XF+(s*nmb+mb)*4, 4); wf = vr(WF+(s*nw+nb)*4, 4)
                c = "0" if (kk == 0 and s == 0) else acc
                need([(kk, s, "x", mb), (kk, s, "w", nb)])
                if swap: a(f"v_mfma_f32_32x32x16_bf16 {acc}, {xf}, {wf}, {c}")
                else: a(f"v_mfma_f32_32x32x16_bf16 {acc}, {wf}, {xf}, {c}")
                if n == 0 and bar is not None:
                    ex = (nst(kk-1, 1) + nst(kk, 0)) if nst else 0
                    if barx and barx(kk): vwait(a, *barx(kk))
                    else: vwait(a, bar + ex, ((bar - 1 if bar else 0) if compact else bar) + ex)
                    a("s_barrier")
                cnt = 2 if (nmb == 1 and n == 0) else 1
                for _ in range(cnt):
                    if q:
                        rd(nxt[0], nxt[1], q.pop(0)); lastw[0] = 99
                if G and n in slots:
                    i, g = slots[n]
                    if not (compact and s == 1 and g == 1 and i == 1):
                        l = a.label("sk")
                        a(f"s_cbranch_vcc{'nz' if g == 0 else 'z'} {l}")
                        G[i](g)
                        a(f"{l}:")
                if extra is not None: extra(kk, s, n)
                n += 1
    vwait(a, 8, 6 if compact else 8)
    a("s_barrier")
    for it in order: rd(0, 0, it)
    for kk in range(16):
        half(kk, 0, [lambda g, kk=kk: xp(kk+3, 0), lambda g, kk=kk: xp(kk+3, 1)] if 1 <= kk <= 12 else [], (kk, 1), None)
        half(kk, 1, [lambda g, kk=kk: wp(kk+3, 0, g), lambda g, kk=kk: wp(kk+3, 1, g)] if kk <= 12 else [],
             (kk+1, 0) if kk < 15 else None, (4 if kk-1 <= 11 else (2 if kk-1 == 12 else 0)) if kk < 15 else None)
    a("s_nop 15")
def gemm_prologue(a, compact=False):
    a("s_cmp_ge_u32 s42, 4\ns_cselect_b64 vcc, -1, 0")
    def xp(p, i):
        j = (p & 1)*2 + i
        a(f"s_add_u32 m0, s53, {((p>>1)%3)*XB + j*1024}\ns_nop 0\nbuffer_load_dwordx4 v{VOX+j}, s[24:27], s50 offen lds")
        if j == 3: a("s_add_u32 s50, s50, 128\ns_and_b32 s50, s50, 1023")
    def wp(k, i):
        if compact and i == 1:
            l = a.label("pw"); a(f"s_cbranch_vccnz {l}")
        a(f"s_add_u32 m0, s54, {WBASE + (k%4)*WST + i*1024}\ns_nop 0\nbuffer_load_dwordx4 v{VOW+i}, s[28:31], s51 offen lds")
        if compact and i == 1: a(f"{l}:")
        if i == 1: a(ADV)
    for p in (0, 1):
        for i in range(2): xp(p, i)
    for i in range(2): wp(0, i)
    for k in (1, 2):
        for i in range(2): wp(k, i)
        for i in range(2): xp(k+1, i)

def gemm_pieces(a, compact, xrot):
    def xp(p, i):
        j = (p & 1)*2 + i
        a(f"s_add_u32 m0, s53, {(((p>>1)+xrot)%3)*XB + j*1024}\ns_nop 0\nbuffer_load_dwordx4 v{VOX+j}, s[24:27], s50 offen lds")
        if j == 3: a("s_add_u32 s50, s50, 128\ns_and_b32 s50, s50, 1023")
    def wp(k, i):
        if compact and i == 1:
            l = a.label("pw"); a(f"s_cbranch_vccnz {l}")
        a(f"s_add_u32 m0, s54, {WBASE + (k%4)*WST + i*1024}\ns_nop 0\nbuffer_load_dwordx4 v{VOW+i}, s[28:31], s51 offen lds")
        if compact and i == 1: a(f"{l}:")
        if i == 1: a(ADV)
    return xp, wp
```

```python
from common import *
from gemm import *
import k2
import os
NWG1 = 256
def pf(a):
    if os.environ.get("NOPF") == "1": return
    l = a.label("pf")
    a(f"""
    s_lshl_b32 s70, s2, 3
    s_add_u32 s70, s70, s42
    s_cmp_ge_u32 s70, 1920
    s_cbranch_scc1 {l}
    s_sub_u32 s71, s70, 512
    s_mov_b32 s74, 0x400000
    s_cmp_lt_u32 s70, 512
    s_cselect_b32 s72, s64, s66
    s_cselect_b32 s73, s65, s67
    s_cselect_b32 s74, 0x200000, s74
    s_cselect_b32 s71, s70, s71
    s_sub_u32 s3, s70, 1536
    s_cmp_ge_u32 s70, 1536
    s_cselect_b32 s72, s68, s72
    s_cselect_b32 s73, s69, s73
    s_cselect_b32 s74, 0x180000, s74
    s_cselect_b32 s71, s3, s71
    s_mov_b32 s75, 0x00020000
    s_lshl_b32 s71, s71, 12
    v_lshlrev_b32 v6, 6, v2
    buffer_load_dword v240, v6, s[72:75], s71 offen
    {l}:
    s_cmp_lg_u32 s70, 1920
    s_cbranch_scc1 {l}b
    s_movk_i32 s78, 16384
    s_mov_b32 s79, 0x00020000
    s_movk_i32 s82, 1024
    s_mov_b32 s83, 0x00020000
    v_lshlrev_b32 v6, 7, v2
    s_movk_i32 s3, 8192
    buffer_load_dword v241, v6, s[76:79], 0 offen
    buffer_load_dword v242, v6, s[76:79], s3 offen
    buffer_load_dword v243, v6, s[80:83], 0 offen
    {l}b:
    """)
def gen_k1():
    a = Asm()
    ACC = 64; XF = 192; WF = 224
    a(f"""
    s_cmp_ge_u32 s2, {NWG1}
    s_cbranch_scc1 L_k1_end
    s_load_dwordx8 s[4:11], s[0:1], 8
    s_load_dwordx2 s[20:21], s[0:1], 104
    s_load_dwordx2 s[64:65], s[0:1], 0
    s_load_dwordx2 s[66:67], s[0:1], 16
    s_load_dwordx2 s[68:69], s[0:1], 56
    s_load_dwordx2 s[76:77], s[0:1], 64
    s_load_dwordx2 s[80:81], s[0:1], 80
    s_and_b32 s40, s2, 7
    s_lshl_b32 s40, s40, 2
    s_bfe_u32 s3, s2, 0x20003
    s_add_u32 s40, s40, s3
    s_lshr_b32 s41, s2, 5
    v_lshrrev_b32 v1, 6, v0
    s_nop 0
    v_readfirstlane_b32 s42, v1
    v_and_b32 v2, 63, v0
    s_lshr_b32 s45, s40, 4
    s_and_b32 s44, s40, 15
    s_lshl_b32 s44, s44, 9
    s_lshr_b32 s48, s42, 2
    s_and_b32 s49, s42, 3
    s_lshl_b32 s46, s42, 5
    s_lshl_b32 s47, s41, 8
    s_add_u32 s46, s46, s47
    s_lshl_b32 s47, s48, 7
    s_waitcnt lgkmcnt(0)
    s_mov_b32 s24, s4
    s_mov_b32 s25, s5
    s_mov_b32 s26, 0x200000
    s_mov_b32 s27, 0x00020000
    s_cmp_eq_u32 s45, 0
    s_cselect_b32 s28, s8, s10
    s_cselect_b32 s29, s9, s11
    s_mov_b32 s30, 0x400000
    s_mov_b32 s31, 0x00020000
    s_mov_b32 s32, s20
    s_mov_b32 s33, s21
    s_mov_b32 s34, 0x10000000
    s_mov_b32 s35, 0x00020000
    s_or_b32 s3, s2, s42
    s_cmp_lg_u32 s3, 0
    s_cbranch_scc1 L_k1_nz
    v_lshlrev_b32 v5, 8, v2
    v_mov_b32 v6, 0
    s_mov_b32 s3, {hex(WS_CNT)}
    buffer_store_dword v6, v5, s[32:35], s3 offen
    L_k1_nz:
    s_mov_b32 s52, {8192*32}
    """)
    gemm_setup(a, "s46", "s47")
    a("""
    s_lshr_b32 s46, s49, 1
    s_lshl_b32 s46, s46, 13
    v_add_u32 v4, s46, v4
    s_and_b32 s46, s49, 1
    s_lshl_b32 s46, s46, 1
    """)
    for nb in range(2):
        a(f"s_add_u32 s47, s46, {nb}\nv_xor_b32 v5, s47, v3\nv_lshl_add_u32 v{RW+nb}, v5, 6, v4")
    a("""
    v_lshrrev_b32 v4, 4, v2
    v_and_b32 v5, 15, v2
    v_lshlrev_b32 v6, 2, v4
    v_xor_b32 v5, v5, v6
    v_lshlrev_b32 v5, 4, v5
    s_lshl_b32 s46, s48, 8
    s_add_u32 s46, s46, s44
    v_add_u32 v5, s46, v5
    s_lshl_b32 s46, s49, 3
    v_add_u32 v4, s46, v4
    """)
    for i in range(2):
        a(f"v_add_u32 v6, {4*i}, v4\nv_lshl_add_u32 v{VOW+i}, v6, 13, v5")
    gemm_prologue(a)
    PFK = int(os.environ.get("PFK", "-1"))
    if PFK < 0: pf(a)
    for c in range(8): a(f"v_mov_b32 v{48+c}, v{RX+c}")
    for c in range(2): a(f"v_mov_b32 v{56+c}, v{RW+c}")
    xq, wq = gemm_pieces(a, True, 2)
    def mk(sfx):
        def ex(kk, s, n):
            if (kk, s, n) == (13, 0, 1): k2.qpro_setup(a, sfx)
            if kk == 13 and s == 0 and n in (3, 4, 5, 6): xq((n-3)//2, (n-3)%2)
            if kk in (13, 14) and s == 1 and n in (2, 4): wq(kk-13, (n-2)//2)
            if kk == 15 and s == 0 and n in (1, 2, 3, 4): xq(2 + (n-1)//2, (n-1)%2)
        return ex
    barx = lambda kk: {13: (14, 14), 14: (14, 13)}.get(kk)
    if os.environ.get("SPF") == "1": a("""
    s_lshl_b32 s70, s2, 3
    s_add_u32 s70, s70, s42
    s_cmp_ge_u32 s70, 1280
    s_cbranch_scc1 L_k1_npf0
    s_sub_u32 s71, s70, 256
    s_mov_b32 s74, 0x400000
    s_cmp_lt_u32 s70, 256
    s_cselect_b32 s72, s4, s8
    s_cselect_b32 s73, s5, s9
    s_cselect_b32 s74, 0x200000, s74
    s_cselect_b32 s71, s70, s71
    s_sub_u32 s3, s70, 768
    s_cmp_ge_u32 s70, 768
    s_cselect_b32 s72, s10, s72
    s_cselect_b32 s73, s11, s73
    s_cselect_b32 s71, s3, s71
    s_mov_b32 s75, 0x00020000
    s_lshl_b32 s71, s71, 13
    v_lshlrev_b32 v240, 7, v2
    buffer_load_dword v240, v240, s[72:75], s71 offen
    L_k1_npf0:
    """)
    a("""
    s_and_b32 s57, s40, 15
    s_lshl_b32 s57, s57, 1
    s_lshr_b32 s46, s49, 1
    s_add_u32 s57, s57, s46
    s_and_b32 s49, s49, 1
    """)
    if os.environ.get("TLB", "0") == "1": a(f"""
    s_lshl_b32 s84, s57, 19
    s_lshl_b32 s85, s45, 24
    s_add_u32 s84, s84, s85
    s_add_u32 s84, s84, {hex(WS_K)}
    s_lshl_b32 s85, s41, 16
    s_add_u32 s84, s84, s85
    s_lshl_b32 s85, s48, 15
    s_add_u32 s84, s84, s85
    v_lshlrev_b32 v240, 9, v2
    buffer_load_dword v240, v240, s[32:35], s84 offen
    """)
    a("""
    s_cmp_eq_u32 s45, 1
    s_cbranch_scc1 L_k1_vtype
    """)
    a(f"""
    s_lshl_b32 s46, s57, 19
    s_add_u32 s46, s46, {hex(WS_K)}
    s_lshl_b32 s47, s41, 16
    s_add_u32 s46, s46, s47
    s_lshl_b32 s47, s48, 15
    s_add_u32 s46, s46, s47
    s_lshl_b32 s47, s49, 12
    s_add_u32 s46, s46, s47
    v_lshlrev_b32 v5, 4, v2
    """)
    a("s_mov_b32 s90, s46\nv_mov_b32 v14, v5\nv_add_u32 v15, 2048, v5")
    gemm_core(a, 4, [(0, 0), (1, 0)], ACC, XF, WF, False, mk('k'), rx=48, rw=56, barx=barx)
    for mb in range(4):
        for nb in range(2):
            for hf in range(2):
                b = ACC + (mb*2+nb)*16 + hf*8
                t = k2.HOME[mb*4+nb*2+hf]
                for p in range(4):
                    a(f"v_cvt_pk_bf16_f32 v{t+p}, v{b+2*p}, v{b+2*p+1}")
    a("s_branch L_k1_q")
    a("L_k1_vtype:")
    a(f"""
    s_lshl_b32 s46, s57, 19
    s_add_u32 s46, s46, {hex(WS_V)}
    s_lshl_b32 s47, s41, 16
    s_add_u32 s46, s46, s47
    s_lshl_b32 s47, s48, 15
    s_add_u32 s46, s46, s47
    s_lshl_b32 s47, s49, 11
    s_add_u32 s46, s46, s47
    v_lshlrev_b32 v5, 4, v2
    """)
    a("s_mov_b32 s90, s46\nv_mov_b32 v14, v5\nv_add_u32 v15, 4096, v5")
    gemm_core(a, 4, [(0, 0), (1, 0)], ACC, XF, WF, True, mk('v'), rx=48, rw=56, barx=barx)
    for mb in range(4):
        for hf in range(2):
            for nb in range(2):
                b = ACC + (mb*2+nb)*16 + hf*8
                t = k2.HOME[mb*4+hf*2+nb]
                for p in range(4):
                    a(f"v_cvt_pk_bf16_f32 v{t+p}, v{b+2*p}, v{b+2*p+1}")
    a("L_k1_q:\ns_barrier")
    for i in range(2): wq(2, i)
    k2.qpro(a)
    a("L_k1_end:\ns_endpgm")
    return a.text()
```

```python
from common import *
from gemm import *
import k3
import struct, os
def f32bits(x): return struct.unpack("<I", struct.pack("<f", x))[0]
NWG2 = 256
O = 64; SS = [128, 160]; P = 192; Q = 208
FS = [36, 40, 44, 48, 52, 56, 60, 240]
KA = 8; VA = 16
VM = 20; VL = 21; VTHR = 22; VDMA = 23
KB = [0, 32768]; VB = [65536, 98304]
INSTR = os.environ.get("INSTR") == "1"
FORCE = os.environ.get("FORCE") == "1"
SPR = os.environ.get("SPR", "1") == "1"
G0S = int(os.environ.get("G0S", "16"))
HOME = [216+4*i for i in range(10)] + [48+4*i for i in range(4)] + [32, 36]
def qpro_setup(a, sfx):
    a(f"""
    s_load_dwordx2 s[4:5], s[0:1], 104
    s_load_dwordx2 s[24:25], s[0:1], 0
    s_load_dwordx2 s[28:29], s[0:1], 16
    s_load_dwordx2 s[6:7], s[0:1], 56
    s_load_dwordx2 s[8:9], s[0:1], 64
    s_and_b32 s40, s2, 7
    s_lshl_b32 s40, s40, 2
    s_bfe_u32 s3, s2, 0x20003
    s_add_u32 s40, s40, s3
    s_lshr_b32 s41, s2, 5
    v_lshrrev_b32 v1, 6, v0
    s_nop 0
    v_readfirstlane_b32 s42, v1
    v_and_b32 v2, 63, v0
    s_lshr_b32 s48, s42, 2
    s_and_b32 s49, s42, 3
    s_sub_u32 s46, 15, s41
    s_cmp_eq_u32 s48, 0
    s_cselect_b32 s46, s46, s41
    s_lshl_b32 s46, s46, 7
    s_lshl_b32 s47, s49, 5
    s_add_u32 s43, s46, s47
    s_lshl_b32 s47, s42, 5
    s_waitcnt lgkmcnt(0)
    s_mov_b32 s26, 0x200000
    s_mov_b32 s27, 0x00020000
    s_mov_b32 s30, 0x180000
    s_movk_i32 s44, 3072
    s_cmp_eq_u32 s48, 0
    s_cselect_b32 s28, s28, s6
    s_cselect_b32 s29, s29, s7
    s_cselect_b32 s30, 0x400000, s30
    s_cselect_b32 s44, 8192, s44
    s_mov_b32 s31, 0x00020000
    s_mov_b32 s32, s4
    s_mov_b32 s33, s5
    s_mov_b32 s34, 0x10000000
    s_mov_b32 s35, 0x00020000
    s_lshl_b32 s52, s44, 5
    """)
    gemm_setup(a, "s43", "s47")
    for b in range(4):
        a(f"v_xor_b32 v5, {b}, v3\nv_lshl_add_u32 v{RW+b}, v5, 6, v4")
    a(f"""
    v_lshrrev_b32 v5, 5, v2
    v_lshl_add_u32 v5, v5, 3, v3
    v_lshlrev_b32 v5, 7, v5
    v_and_b32 v6, 3, v2
    v_lshl_add_u32 v5, v6, 3, v5
    v_bfe_u32 v6, v2, 4, 1
    v_lshl_add_u32 v5, v6, 5, v5
    v_add_u32 v5, {WBASE + 8192}, v5
    v_lshrrev_b32 v6, 1, v3
    v_lshl_add_u32 v{RW+4}, v6, 6, v5
    v_xor_b32 v{RW+5}, 64, v{RW+4}
    s_cmp_eq_u32 s48, 0
    s_cbranch_scc1 L_k2_wq{sfx}
    v_lshrrev_b32 v4, 3, v2
    v_bfe_u32 v6, v2, 4, 1
    v_lshlrev_b32 v6, 2, v6
    v_and_b32 v5, 7, v2
    v_xor_b32 v5, v5, v6
    v_lshrrev_b32 v6, 1, v5
    v_min_u32 v6, 2, v6
    v_lshlrev_b32 v6, 10, v6
    v_and_b32 v7, 1, v5
    v_lshl_add_u32 v6, v7, 4, v6
    s_lshl_b32 s46, s40, 5
    v_add_u32 v5, s46, v6
    s_lshl_b32 s46, s49, 3
    v_add_u32 v4, s46, v4
    v_mul_lo_u32 v6, v4, s44
    v_add_u32 v{VOW}, v6, v5
    v_mov_b32 v{VOW+1}, v{VOW}
    s_lshl_b32 s54, s49, 10
    s_add_u32 s54, s54, 8192
    s_branch L_k2_wdone{sfx}
    L_k2_wq{sfx}:
    v_lshrrev_b32 v4, 4, v2
    v_and_b32 v5, 15, v2
    v_lshlrev_b32 v6, 2, v4
    v_xor_b32 v5, v5, v6
    v_lshlrev_b32 v5, 4, v5
    s_lshl_b32 s46, s40, 8
    v_add_u32 v5, s46, v5
    s_lshl_b32 s46, s49, 3
    v_add_u32 v4, s46, v4
    """)
    for i in range(2):
        a(f"v_add_u32 v6, {4*i}, v4\nv_mul_lo_u32 v6, v6, s44\nv_add_u32 v{VOW+i}, v6, v5")
    a(f"L_k2_wdone{sfx}:")
    srd(a, 8, "s8", "s9", 16384)
    a("""
    v_and_b32 v5, 15, v2
    v_lshlrev_b32 v5, 1, v5
    v_lshrrev_b32 v4, 5, v2
    v_lshl_add_u32 v5, v4, 7, v5
    s_lshl_b32 s3, s40, 9
    v_add_u32 v5, s3, v5
    """)
    for j in range(8):
        a(f"buffer_load_ushort v{40+j}, v5, s[8:11], 0 offen offset:{((j//4)*8 + j%4)*32}")
def qpro(a):
    ACC = 64; XF = 160; WF = 168
    def kvst(kk, s, n):
        if n == 5 and (s == 0 if SPR else kk < 8):
            j = kk if SPR else kk*2 + s
            a(f"buffer_store_dwordx4 {vr(HOME[j],4)}, v{14 + (j%4)//2}, s[32:35], s90 offen offset:{(j%2)*1024}")
            if j % 4 == 3: a("s_add_u32 s90, s90, 8192")
    if os.environ.get("XPF", "0") == "1": a("""
    s_lshl_b32 s46, s43, 10
    s_and_b32 s47, s40, 3
    s_lshl_b32 s47, s47, 13
    s_add_u32 s46, s46, s47
    v_lshlrev_b32 v244, 7, v2
    buffer_load_dword v244, v244, s[24:27], s46 offen
    s_cmp_ge_u32 s42, 2
    s_cbranch_scc1 L_k2_nxpf
    s_lshl_b32 s46, s41, 19
    s_lshl_b32 s47, s42, 18
    s_add_u32 s46, s46, s47
    s_lshl_b32 s47, s40, 8
    s_add_u32 s46, s46, s47
    v_lshrrev_b32 v245, 1, v2
    v_lshlrev_b32 v245, 13, v245
    v_and_b32 v246, 1, v2
    v_lshl_add_u32 v245, v246, 7, v245
    buffer_load_dword v245, v245, s[28:31], s46 offen
    L_k2_nxpf:
    """)
    gemm_core(a, 1, [(0,0),(1,0),(2,0),(3,0),(4,0,2048,512),(5,0,2048,512)], ACC, XF, WF, False, kvst, True, (lambda kk, s: 1 if (kk >= 0 and s == 0) else 0) if SPR else (lambda kk, s: 1 if 0 <= kk < 8 else 0), xrot=2)
    a(f"""
    v_and_b32 v3, 31, v2
    v_lshrrev_b32 v4, 5, v2
    s_lshl_b32 s46, s40, 3
    s_add_u32 s46, s46, s41
    s_lshl_b32 s46, s46, 16
    s_lshl_b32 s47, s42, 13
    s_add_u32 s46, s46, s47
    s_add_u32 s91, s46, {hex(WS_Q)}
    v_lshlrev_b32 v5, 4, v2
    v_add_u32 v14, 4096, v5
    s_barrier
    """)
    for n in range(8, 11):
        nb, hf = n // 2, n % 2
        b = ACC + nb*16 + hf*8; t = XF + (n-8)*4
        for p in range(4): a(f"v_cvt_pk_bf16_f32 v{t+p}, v{b+2*p}, v{b+2*p+1}")
    W = 28; TK = 128; TQ = 144; AF = 48; BF = 52; KACC = 216
    a("v_cmp_lt_u32 vcc, 15, v3\nv_mov_b32 v6, 0\nv_mov_b32 v7, 0x80008000\ns_nop 0\nv_cndmask_b32 v6, v6, v7, vcc")
    for p in range(4):
        a(f"v_lshl_or_b32 v{W+p}, v{41+2*p}, 16, v{40+2*p}\nv_xor_b32 v{W+p}, v{W+p}, v6")
    a(f"""
    s_nop 1
    v_mfma_f32_32x32x16_bf16 {vr(TK,16)}, {vr(W,4)}, {vr(XF+4,4)}, 0
    """)
    for n in range(8):
        nb, hf = n // 2, n % 2
        b = ACC + nb*16 + hf*8; t = Q + n*4
        for p in range(4): a(f"v_cvt_pk_bf16_f32 v{t+p}, v{b+2*p}, v{b+2*p+1}")
        a(f"buffer_store_dwordx4 {vr(t,4)}, {'v5' if n < 4 else 'v14'}, s[32:35], s91 offen offset:{(n%4)*1024}")
    a(f"""
    s_mov_b32 s56, s40
    s_mov_b32 s40, {k3.LOG2E}
    s_lshl_b32 s28, s42, 12
    s_add_u32 s28, s28, 32768
    v_lshlrev_b32 v33, 6, v3
    v_add_u32 v33, s28, v33
    v_lshl_add_u32 v34, v4, 3, v33
    v_lshl_add_u32 v33, v4, 4, v33
    v_bfe_u32 v7, v2, 2, 2
    v_lshl_add_u32 v6, v4, 3, v7
    v_lshlrev_b32 v6, 6, v6
    v_and_b32 v7, 3, v2
    v_lshl_add_u32 v6, v7, 3, v6
    v_bfe_u32 v7, v2, 4, 1
    v_lshl_add_u32 v6, v7, 5, v6
    v_add_u32 v35, s28, v6
    v_mov_b32 v40, 0
    v_mov_b32 v41, 0
    v_mov_b32 v42, 0
    v_mov_b32 v43, 0
    v_mov_b32 v7, 0x3f80
    v_cmp_eq_u32 vcc, 0, v4
    s_nop 1
    v_cndmask_b32 v40, v40, v7, vcc
    ds_write_b128 v33, v[40:43] offset:{2048+32}
    ds_write_b128 v33, {vr(XF+8,4)} offset:2048
    """)
    k3.rnd16(a, TK, 44)
    k3.softmax16(a, TK, 44)
    for p in range(8): a(f"v_cvt_pk_bf16_f32 v{64+p}, v{TK+2*p}, v{TK+2*p+1}")
    for q in range(4): a(f"ds_write_b64 v34, {vr(64+2*q,2)} offset:{q*16}")
    a("s_waitcnt lgkmcnt(0)")
    for ks in range(2):
        a(f"""
        ds_read_b64_tr_b16 {vr(AF+ks*8,2)}, v35 offset:{ks*1024}
        ds_read_b64_tr_b16 {vr(AF+ks*8+2,2)}, v35 offset:{ks*1024+256}
        ds_read_b64_tr_b16 {vr(BF+ks*8,2)}, v35 offset:{2048+ks*1024}
        ds_read_b64_tr_b16 {vr(BF+ks*8+2,2)}, v35 offset:{2048+ks*1024+256}
        """)
    a("s_waitcnt lgkmcnt(0)")
    for ks in range(2):
        a(f"v_mfma_f32_32x32x16_bf16 {vr(KACC,16)}, {vr(AF+ks*8,4)}, {vr(BF+ks*8,4)}, {'0' if ks==0 else vr(KACC,16)}")
    a(f"""
    s_lshl_b32 s46, s56, 11
    s_add_u32 s46, s46, s43
    v_add_u32 v6, s46, v3
    v_lshlrev_b32 v6, 5, v6
    v_lshl_add_u32 v6, v4, 4, v6
    s_mov_b32 s47, {hex(WS_QKVB)}
    buffer_store_dwordx4 {vr(XF,4)}, v6, s[32:35], s47 offen sc1
    s_nop 7
    s_nop 7
    v_lshlrev_b32 v5, 4, v2
    v_add_u32 v6, s28, v5
    """)
    for q in range(4): a(f"ds_write_b128 v6, {vr(KACC+q*4,4)} offset:{32768+q*1024}")
    a(f"""
    s_waitcnt lgkmcnt(0)
    s_barrier
    s_cmp_ge_u32 s42, 4
    s_cbranch_scc1 L_k2_nored
    s_lshl_b32 s3, s42, 10
    v_add_u32 v5, s3, v5
    v_add_u32 v7, 0x8000, v5
    """)
    for w in range(8): a(f"ds_read_b128 {vr(64+w*4,4)}, v7 offset:{32768+w*4096}")
    a("s_waitcnt lgkmcnt(0)")
    for i in range(4):
        a(f"""v_add_f32 v{64+i}, v{64+i}, v{68+i}
        v_add_f32 v{72+i}, v{72+i}, v{76+i}
        v_add_f32 v{80+i}, v{80+i}, v{84+i}
        v_add_f32 v{88+i}, v{88+i}, v{92+i}
        v_add_f32 v{64+i}, v{64+i}, v{72+i}
        v_add_f32 v{80+i}, v{80+i}, v{88+i}
        v_add_f32 v{64+i}, v{64+i}, v{80+i}""")
    a(f"""
    s_lshl_b32 s3, s56, 3
    s_add_u32 s3, s3, s41
    s_lshl_b32 s3, s3, 12
    s_add_u32 s3, s3, {hex(WS_KVP)}
    buffer_store_dwordx4 v[64:67], v5, s[32:35], s3 offen sc1
    L_k2_nored:
    s_barrier
    """)
PART = 160; QB = 176; WPH = 180; GX = 208; GW = 212
def ob_qload(a):
    a(f"""
    s_lshl_b32 s3, s24, 11
    s_add_u32 s3, s3, s82
    v_add_u32 v6, s3, v3
    v_lshlrev_b32 v6, 5, v6
    v_lshl_add_u32 v6, v4, 4, v6
    s_mov_b32 s3, {hex(WS_QKVB)}
    buffer_load_dwordx4 {vr(QB,4)}, v6, s[64:67], s3 offen sc1
    """)
def ob_tok(a, j):
    a(f"""
    s_sub_u32 s82, 15, {j}
    s_cmp_eq_u32 s27, 0
    s_cselect_b32 s82, s82, {j}
    s_lshl_b32 s82, s82, 7
    s_lshl_b32 s3, s28, 5
    s_add_u32 s82, s82, s3
    """)
def ob_pre(a):
    a(f"""
    s_cmp_eq_u32 s36, 0
    s_cbranch_scc1 L_k2_nopf
    v_and_b32 v3, 31, v2
    v_lshrrev_b32 v4, 5, v2
    s_lshl_b32 s83, s2, 3
    s_add_u32 s83, s83, s26
    s_lshl_b32 s3, s83, 10
    v_lshlrev_b32 v6, 4, v2
    buffer_load_dwordx4 {vr(GX,4)}, v6, s[72:75], s3 offen
    buffer_load_dwordx4 {vr(GW,4)}, v6, s[76:79], 0 offen
    s_bitcmp0_b32 s80, 0
    s_cbranch_scc1 L_k2_nopf
    """)
    ob_tok(a, "s25")
    ob_qload(a)
    a("""
    v_and_b32 v5, 15, v3
    v_lshlrev_b32 v5, 1, v5
    v_lshl_add_u32 v5, v4, 7, v5
    s_lshl_b32 s3, s24, 9
    v_add_u32 v5, s3, v5
    """)
    for j in range(8):
        a(f"buffer_load_ushort v{WPH+j}, v5, s[68:71], 0 offen offset:{((j//4)*8 + j%4)*32}")
    a(f"""
    s_lshl_b32 s3, s24, 15
    s_lshl_b32 s37, s27, 14
    s_add_u32 s3, s3, s37
    s_lshl_b32 s37, s28, 10
    s_add_u32 s3, s3, s37
    s_add_u32 s3, s3, {hex(WS_KVP)}
    v_lshlrev_b32 v5, 4, v2
    v_cmp_gt_u32 vcc, 17, v3
    s_nop 1
    s_mov_b64 exec, vcc
    """)
    for c in range(4):
        a(f"buffer_load_dwordx4 {vr(PART+c*4,4)}, v5, s[64:67], s3 offen sc1\ns_add_u32 s3, s3, 4096")
    a("s_mov_b64 exec, -1\nL_k2_nopf:")
def ob_post(a):
    W = 36; T = 40; PF = 48; KVF = 56; D2 = 128; EX = 64
    a(f"""
    s_cmp_eq_u32 s36, 0
    s_cbranch_scc1 L_k2_obskip
    s_mov_b32 s40, {k3.LOG2E}
    s_bitcmp0_b32 s80, 0
    s_cbranch_scc1 L_k2_gate
    """)
    for r in range(4):
        a(f"""v_add_f32 v{PART+r}, v{PART+r}, v{PART+4+r}
        v_add_f32 v{PART+8+r}, v{PART+8+r}, v{PART+12+r}
        v_add_f32 v{PART+r}, v{PART+r}, v{PART+8+r}""")
    a(f"""
    v_lshlrev_b32 v5, 4, v2
    s_lshl_b32 s3, s26, 10
    v_add_u32 v6, s3, v5
    ds_write_b128 v6, {vr(PART,4)}
    v_cmp_lt_u32 vcc, 15, v3
    v_mov_b32 v6, 0
    v_mov_b32 v7, 0x80008000
    s_nop 0
    v_cndmask_b32 v6, v6, v7, vcc
    """)
    for p in range(4):
        a(f"v_lshl_or_b32 v{W+p}, v{WPH+1+2*p}, 16, v{WPH+2*p}\nv_xor_b32 v{W+p}, v{W+p}, v6")
    a("s_waitcnt lgkmcnt(0)\ns_barrier")
    for w in range(8): a(f"ds_read_b128 {vr(EX+w*4,4)}, v5 offset:{w*1024}")
    a("L_k2_obloop:")
    a(f"""
    v_mfma_f32_32x32x16_bf16 {vr(D2,16)}, {vr(W,4)}, {vr(QB,4)}, 0
    s_lshr_b32 s3, s82, 5
    s_mul_i32 s3, s3, {36*8192}
    s_lshl_b32 s37, s24, 10
    s_add_u32 s3, s3, s37
    s_add_u32 s84, s3, {32*8192}
    s_waitcnt lgkmcnt(0)
    """)
    for r in range(16): a(f"v_add_f32 v{EX+32+r}, v{EX+r}, v{EX+16+r}")
    for p in range(8): a(f"v_cvt_pk_bf16_f32 v{KVF+p}, v{EX+32+2*p}, v{EX+33+2*p}")
    k3.rnd16(a, D2, T)
    k3.softmax16(a, D2, T)
    for p in range(8): a(f"v_cvt_pk_bf16_f32 v{PF+p}, v{D2+2*p}, v{D2+2*p+1}")
    a(f"""
    s_nop 1
    v_mfma_f32_32x32x16_bf16 {vr(D2,16)}, {vr(KVF,4)}, {vr(PF,4)}, 0
    v_mfma_f32_32x32x16_bf16 {vr(D2,16)}, {vr(KVF+4,4)}, {vr(PF+4,4)}, {vr(D2,16)}
    s_nop 15
    s_nop 3
    v_mov_b32 v{T}, v{D2+8}
    v_mov_b32 v{T+1}, v{D2+8}
    s_nop 1
    v_permlane32_swap_b32 v{T}, v{T+1}
    s_nop 1
    v_cvt_pk_bf16_f32 v{T}, v{T}, v{T}
    v_and_b32 v{T}, 0xffff0000, v{T}
    v_add_f32 v{T}, 0x358637bd, v{T}
    v_cvt_pk_bf16_f32 v{T}, v{T}, v{T}
    v_and_b32 v{T}, 0xffff0000, v{T}
    v_rcp_f32 v{T}, v{T}
    """)
    for i in range(4):
        a(f"v_cvt_pk_bf16_f32 v{T+1}, v{D2+2*i}, v{D2+2*i+1}\nv_lshlrev_b32 v{D2+2*i}, 16, v{T+1}\nv_and_b32 v{D2+2*i+1}, 0xffff0000, v{T+1}")
    for i in range(8): a(f"v_mul_f32 v{D2+i}, v{D2+i}, v{T}")
    for p in range(4): a(f"v_cvt_pk_bf16_f32 v{T+4+p}, v{D2+2*p}, v{D2+2*p+1}")
    a(f"""
    buffer_store_dwordx4 {vr(T+4,4)}, v5, s[20:23], s84 offen
    s_lshr_b32 s3, s80, 8
    s_cmp_eq_u32 s3, 0
    s_cbranch_scc1 L_k2_gate
    s_ff1_i32_b32 s85, s3
    s_add_u32 s3, s85, 8
    s_bitset0_b32 s80, s3
    """)
    ob_tok(a, "s85")
    ob_qload(a)
    a("s_waitcnt vmcnt(0)\ns_branch L_k2_obloop\nL_k2_gate:\nv_mov_b32 v8, 0\nv_mov_b32 v9, 0")
    for i in range(4):
        a(f"""
        v_lshlrev_b32 v10, 16, v{GX+i}
        v_lshlrev_b32 v11, 16, v{GW+i}
        v_fmac_f32 v8, v10, v11
        v_and_b32 v10, 0xffff0000, v{GX+i}
        v_and_b32 v11, 0xffff0000, v{GW+i}
        v_fmac_f32 v9, v10, v11
        """)
    a("v_add_f32 v8, v8, v9")
    for off in (0x041F, 0x081F, 0x101F, 0x201F, 0x401F):
        a(f"ds_swizzle_b32 v9, v8 offset:{hex(off)}\ns_waitcnt lgkmcnt(0)\nv_add_f32 v8, v8, v9")
    a(f"""
    v_mov_b32 v9, v8
    s_nop 1
    v_permlane32_swap_b32 v8, v9
    s_nop 1
    v_add_f32 v8, v8, v9
    v_cvt_pk_bf16_f32 v8, v8, v8
    v_and_b32 v8, 0xffff0000, v8
    v_mul_f32 v8, s40, v8
    v_sub_f32 v8, 0, v8
    v_exp_f32 v8, v8
    s_nop 0
    v_add_f32 v8, 1.0, v8
    v_rcp_f32 v8, v8
    s_nop 0
    v_cvt_pk_bf16_f32 v8, v8, v8
    v_and_b32 v8, 0xffff0000, v8
    s_lshl_b32 s3, s83, 2
    s_add_u32 s3, s3, {hex(WS_G)}
    s_mov_b64 exec, 1
    buffer_store_dword v8, v247, s[64:67], s3 offen
    s_mov_b64 exec, -1
    L_k2_obskip:
    """)
def gen_k2():
    a = Asm()
    def stamp():
        if INSTR: a("s_memtime s[60:61]\ns_waitcnt lgkmcnt(0)\ns_and_b32 s59, s59, 63\ns_mov_b32 m0, s59\ns_nop 3\nv_writelane_b32 v244, s60, m0\ns_add_u32 s59, s59, 1")
    a(f"""
    s_cmp_ge_u32 s2, {NWG2}
    s_cbranch_scc1 L_k2_end
    """)
    a(f"""
    s_load_dwordx2 s[4:5], s[0:1], 104
    s_load_dwordx2 s[72:73], s[0:1], 0
    s_load_dwordx2 s[68:69], s[0:1], 64
    s_load_dwordx2 s[76:77], s[0:1], 80
    s_load_dwordx2 s[86:87], s[0:1], 40
    s_load_dwordx2 s[88:89], s[0:1], 72
    s_and_b32 s24, s2, 7
    s_lshl_b32 s24, s24, 2
    s_bfe_u32 s3, s2, 0x20003
    s_add_u32 s24, s24, s3
    s_lshr_b32 s25, s2, 5
    v_lshrrev_b32 v1, 6, v0
    s_nop 0
    v_readfirstlane_b32 s26, v1
    v_and_b32 v2, 63, v0
    s_lshr_b32 s27, s26, 2
    s_and_b32 s28, s26, 3
    s_lshl_b32 s34, s26, 12
    s_mov_b32 s35, {hex(f32bits(128**-0.5 * 1.4426950408889634))}
    s_lshl_b32 s3, s24, 19
    s_waitcnt lgkmcnt(0)
    s_add_u32 s6, s4, s3
    s_addc_u32 s7, s5, 0
    """)
    srd_ws(a, 8, 6, WS_K, 0x80000)
    srd_ws(a, 12, 6, WS_V, 0x80000)
    srd_ws(a, 16, 6, WS_Q, 0x80000)
    srd_ws(a, 20, 4, WS_CTXO, 2048*CTX_PITCH)
    srd(a, 64, "s4", "s5", 0x10000000)
    a(f"""
    s_movk_i32 s70, 16384
    s_mov_b32 s71, 0x00020000
    s_mov_b32 s74, 0x200000
    s_mov_b32 s75, 0x00020000
    s_movk_i32 s78, 1024
    s_mov_b32 s79, 0x00020000
    s_lshl_b32 s81, s24, 8
    s_add_u32 s81, s81, {hex(WS_CNT)}
    s_mov_b32 s80, 1
    v_mov_b32 v245, 1
    v_mov_b32 v247, 0
    s_add_u32 s3, s25, 8
    s_lshl_b32 s3, 1, s3
    v_mov_b32 v246, s3
    v_and_b32 v3, 31, v2
    v_lshrrev_b32 v4, 5, v2
    v_lshlrev_b32 v{VDMA}, 4, v2
    v_add_u32 v{VDMA}, s34, v{VDMA}
    s_lshl_b32 s3, s27, 14
    v_lshlrev_b32 v5, 4, v2
    v_add_u32 v{KA}, s3, v5
    v_add_u32 v{VA}, 0x10000, v{KA}
    s_lshl_b32 s3, s28, 5
    s_lshl_b32 s37, s27, 6
    s_sub_u32 s3, s3, s37
    v_lshlrev_b32 v5, 2, v4
    v_sub_u32 v5, v3, v5
    v_add_u32 v{VTHR}, s3, v5
    s_mov_b32 s36, 0
    s_mov_b32 s59, 0
    """)
    if INSTR: a("v_mov_b32 v244, 0")

    def dma(srdreg, soff, buf):
        a(f"s_add_u32 m0, s34, {buf}\ns_nop 0")
        for j in range(4):
            a(f"buffer_load_dwordx4 v{VDMA}, s[{srdreg}:{srdreg+3}], {soff} offen offset:{j*1024} lds")
    def dpiece(srdreg, soff, buf, j, need):
        if need:
            l = a.label("nd")
            a(f"s_cmp_lt_u32 s38, {need}\ns_cbranch_scc1 {l}")
        a(f"s_add_u32 m0, s34, {buf}\ns_nop 0\nbuffer_load_dwordx4 v{VDMA}, s[{srdreg}:{srdreg+3}], {soff} offen offset:{j*1024} lds")
        if need: a(f"{l}:")
    def rd_item(it, slot, parv, park):
        k, s, b = it
        if k == "pv": a(f"ds_read_b128 {vr(FS[slot],4)}, v{VA} offset:{VB[parv]-65536+s*4096+b*1024}")
        else: a(f"ds_read_b128 {vr(FS[slot],4)}, v{KA} offset:{KB[park]+b*8192+s*1024}")
    QKI = [("qk", s, kb) for s in range(8) for kb in range(2)]
    PVI = [("pv", s, db) for s in range(4) for db in range(4)]
    def pre(items, parv, park):
        for i in range(8): rd_item(items[i], i, parv, park)
    def MM(items, parv, park, fill=None, ld=True, g1=False, mid=None, pre_mid=None):
        n = len(items); SQ = SS[park]; qi = 0
        for i, it in enumerate(items):
            k, s, b = it
            if mid is not None and i == 16:
                a(f"{mid}:")
                for x in pre_mid: a(x)
            a(f"s_waitcnt lgkmcnt({min(7, n-1-i)})")
            if k == "pv":
                if fill is not None and s == 0 and b == 0 and not g1: a("s_nop 1")
                acc = vr(O+b*16, 16)
                a(f"v_mfma_f32_32x32x16_bf16 {acc}, {vr(FS[i%8],4)}, {vr(P+s*4,4)}, {acc}")
            else:
                acc = vr(SQ+b*16, 16)
                a(f"v_mfma_f32_32x32x16_bf16 {acc}, {vr(FS[i%8],4)}, {vr(Q+s*4,4)}, {'0' if s==0 else acc}")
            if i + 8 < n: rd_item(items[i+8], i % 8, parv, park)
            if k == "qk" and fill is not None:
                for x in fill[qi]: a(x)
                qi += 1
            i0 = i - (G0S if not g1 else 0)
            if ld and 0 <= i0 < 16 and i0 % 2 == 1:
                j = i0 // 2
                if j < 4: dpiece(12, "s39" if g1 else "s33", VB[parv ^ 1], j, 0)
                else: dpiece(8, "s32", KB[park ^ 1], j - 4, 2)
    def SM_parts(S):
        lr = a.label("noresc")
        A = [f"v_max3_f32 v24, v{S}, v{S+1}, v{S+2}", f"v_max3_f32 v25, v{S+16}, v{S+17}, v{S+18}"]
        for i in range(3, 15, 2):
            A += [f"v_max3_f32 v24, v24, v{S+i}, v{S+i+1}", f"v_max3_f32 v25, v25, v{S+16+i}, v{S+16+i+1}"]
        A2 = f"""v_max3_f32 v24, v24, v{S+15}, v25
        v_max_f32 v24, v24, v{S+31}
        v_mov_b32 v25, v24
        s_nop 1
        v_permlane32_swap_b32 v24, v25
        s_nop 1
        v_max_f32 v24, v24, v25
        v_mul_f32 v24, s35, v24
        v_max_f32 v25, v{VM}, v24
        v_sub_f32 v26, v25, v{VM}
        v_cmp_lt_f32 vcc, 0x41000000, v26
        s_cbranch_vccz {lr}
        v_sub_f32 v26, 0, v26
        v_exp_f32 v26, v26
        v_mov_b32 v{VM}, v25
        s_nop 0
        v_mov_b32 v27, v26
        v_mul_f32 v{VL}, v{VL}, v26
        """ + "\n".join(f"v_pk_mul_f32 {vr(O+i,2)}, {vr(O+i,2)}, v[26:27]" for i in range(0, 64, 2)) + f"\n{lr}:\nv_sub_f32 v28, 0, v{VM}"
        B = []
        for p in range(17):
            if p < 16:
                B += [f"v_fma_f32 v{S+2*p}, v{S+2*p}, s35, v28", f"v_fma_f32 v{S+2*p+1}, v{S+2*p+1}, s35, v28"]
            if p >= 1:
                q = p - 1
                B += [f"v_exp_f32 v{S+2*q}, v{S+2*q}", f"v_exp_f32 v{S+2*q+1}, v{S+2*q+1}"]
            if p >= 2:
                q = p - 2
                B += [f"v_add_f32 v{VL}, v{VL}, v{S+2*q}", f"v_add_f32 v29, v29, v{S+2*q+1}" if q else f"v_mov_b32 v29, v{S+1}",
                      f"v_cvt_pk_bf16_f32 v{P+q}, v{S+2*q}, v{S+2*q+1}"]
        B += ["s_nop 0", f"v_add_f32 v{VL}, v{VL}, v{S+30}", f"v_add_f32 v29, v29, v{S+31}", f"v_cvt_pk_bf16_f32 v{P+15}, v{S+30}, v{S+31}", f"v_add_f32 v{VL}, v{VL}, v29"]
        return A, A2, B
    def mask(S):
        a("v_mov_b32 v24, 0xf149f2ca")
        for kb in range(2):
            for r in range(16):
                c = kb*32 + (r//4)*8 + r % 4
                a(f"v_cmp_gt_i32 vcc, {c}, v{VTHR}\ns_nop 1\nv_cndmask_b32 v{S+kb*16+r}, v{S+kb*16+r}, v24, vcc")
    def top():
        a(f"""
        s_waitcnt vmcnt(0)
        s_barrier
        s_add_u32 s3, s31, 1
        s_lshl_b32 s33, s3, 15
        s_sub_u32 s38, s30, s3
        s_add_u32 s3, s31, 2
        s_lshl_b32 s32, s3, 15
        s_lshl_b32 s39, s31, 15
        s_cmp_eq_u32 s38, 0
        """)
    def publish(force_sel):
        l = a.label("pub")
        a(f"s_or_b32 s3, s26, s36\ns_cmp_lg_u32 s3, 0\ns_cbranch_scc1 {l}")
        if FORCE: a(f"s_cmp_{'eq' if force_sel == 0 else 'lg'}_u32 s25, 0\ns_cbranch_scc1 {l}")
        a(f"s_mov_b64 exec, 1\nbuffer_atomic_add v245, v247, s[64:67], s81 offen sc0\ns_mov_b64 exec, -1\n{l}:")
    def check():
        lp = a.label("wpf")
        if os.environ.get("NOPF") != "1": a(f"""
        s_cmp_lg_u32 s36, 0
        s_cbranch_scc1 {lp}
        s_lshl_b32 s83, s2, 2
        s_add_u32 s83, s83, s28
        s_cmp_ge_u32 s83, 576
        s_cbranch_scc1 {lp}
        s_sub_u32 s3, s83, 512
        s_mov_b32 s94, 0x400000
        s_cmp_lt_u32 s83, 512
        s_cselect_b32 s92, s86, s88
        s_cselect_b32 s93, s87, s89
        s_cselect_b32 s94, s94, 0x80000
        s_cselect_b32 s3, s83, s3
        s_mov_b32 s95, 0x00020000
        s_lshl_b32 s3, s3, 13
        v_lshlrev_b32 v244, 7, v2
        buffer_load_dword v244, v244, s[92:95], s3 offen
        {lp}:
        """)
    a(f"""
    s_lshl_b32 s3, s24, 3
    s_add_u32 s3, s3, s25
    s_lshl_b32 s3, s3, 16
    s_lshl_b32 s37, s26, 12
    s_add_u32 s3, s3, s37
    s_add_u32 s3, s3, {hex(WS_Q)}
    s_lshl_b32 s37, s26, 13
    s_add_u32 s37, s37, 98304
    """)
    for hh in range(2):
        a(f"s_add_u32 m0, s37, {hh*4096}\ns_nop 0")
        for j in range(4): a(f"buffer_load_dwordx4 v{VDMA}, s[64:67], s3 offen offset:{j*1024} lds")
        a("s_add_u32 s3, s3, 4096")
    dma(8, "0", KB[0])
    a("s_waitcnt vmcnt(4)\ns_barrier")
    a("L_k2_pass:")
    a(f"""
    s_sub_u32 s29, 15, s25
    s_cmp_eq_u32 s36, 0
    s_cselect_b32 s29, s29, s25
    s_add_u32 s30, s29, 1
    s_lshl_b32 s3, s36, 15
    s_lshl_b32 s37, s28, 13
    s_add_u32 s3, s3, s37
    s_add_u32 s3, s3, 98304
    v_lshlrev_b32 v5, 4, v2
    v_add_u32 v5, s3, v5
    """)
    for s in range(8): a(f"ds_read_b128 {vr(Q+s*4,4)}, v5 offset:{s*1024}")
    dma(12, "0", VB[0])
    a(f"v_mov_b32 v{VM}, 0xe0ad78ec\nv_mov_b32 v{VL}, 0")
    for i in range(64): a(f"v_mov_b32 v{O+i}, 0")
    lk = a.label("nok1"); lk2 = a.label("nok1b")
    a(f"s_cmp_lt_u32 s30, 2\ns_cbranch_scc1 {lk}\ns_mov_b32 s32, 32768")
    dma(8, "s32", KB[1])
    a(f"s_waitcnt vmcnt(8)\ns_branch {lk2}\n{lk}:\ns_waitcnt vmcnt(4)\n{lk2}:")
    a("s_mov_b32 s31, 0\ns_waitcnt lgkmcnt(0)\ns_barrier")
    pre(QKI, 0, 0)
    MM(QKI, 0, 0, None, False)
    a("s_cmp_lg_u32 s27, 0\ns_cbranch_scc1 L_k2_g1loop")
    a("L_k2_loop:")
    def k0pf():
        l = a.label("k0pf")
        a(f"s_cmp_lg_u32 s36, 0\ns_cbranch_scc1 {l}")
        dma(8, "0", KB[0])
        a(f"{l}:")
    def mkfill(A, A2, B):
        fill = [[] for _ in range(16)]
        fill[0] = A[8:12]; fill[1] = A[12:] + [A2]
        per = (len(B) + 13) // 14
        for i in range(14): fill[2+i] = B[i*per:(i+1)*per]
        return fill
    for par in range(2):
        top()
        a(f"s_cbranch_scc1 L_k2_tail{par}")
        stamp()
        items = QKI + PVI
        pre(items, par, par ^ 1)
        A, A2, B = SM_parts(SS[par])
        for x in A[:8]: a(x)
        MM(items, par, par ^ 1, mkfill(A, A2, B))
        a("s_add_u32 s31, s31, 1")
        stamp()
    a("s_branch L_k2_loop")
    for par in range(2):
        a(f"L_k2_tail{par}:")
        pre(PVI, par, par ^ 1)
        check()
        k0pf()
        a("s_nop 7")
        mask(SS[par])
        A, A2, B = SM_parts(SS[par])
        for x in A: a(x)
        a(A2)
        for x in B: a(x)
        a("s_nop 1")
        MM(PVI, par, par ^ 1, None, False)
        a("s_barrier\ns_branch L_k2_merge")
    a("L_k2_g1first:")
    pre(QKI, 1, 1)
    for j in range(4): dpiece(8, "s32", KB[0], j, 2)
    a("s_branch L_k2_g1qk0")
    a("L_k2_g1loop:")
    for par in range(2):
        top()
        a(f"s_cbranch_scc1 L_k2_g1tail{par}")
        stamp()
        if par == 0: a("s_cmp_eq_u32 s31, 0\ns_cbranch_scc1 L_k2_g1first")
        items = PVI + QKI
        pre(items, par ^ 1, par ^ 1)
        A, A2, B = SM_parts(SS[par])
        MM(items, par ^ 1, par ^ 1, mkfill(A, A2, B), True, True, f"L_k2_g1qk{par}", A[:8])
        a("s_add_u32 s31, s31, 1")
        stamp()
    a("s_branch L_k2_g1loop")
    for par in range(2):
        a(f"L_k2_g1tail{par}:")
        for j in range(4): dpiece(12, "s39", VB[par], j, 0)
        k0pf()
        if par == 0: a("s_cmp_eq_u32 s31, 0\ns_cbranch_scc1 L_k2_g1t0")
        pre(PVI, par ^ 1, par ^ 1)
        MM(PVI, par ^ 1, par ^ 1, None, False)
        if par == 0: a("L_k2_g1t0:")
        a("s_nop 7")
        mask(SS[par])
        A, A2, B = SM_parts(SS[par])
        for x in A: a(x)
        a(A2)
        for x in B: a(x)
        a("s_waitcnt vmcnt(0)\ns_barrier")
        pre(PVI, par, par ^ 1)
        MM(PVI, par, par ^ 1, None, False)
        if par == 0: a("s_branch L_k2_merge")
    a("L_k2_merge:")
    S = SS[0]
    ob_pre(a)
    a(f"""
    s_nop 15
    v_mov_b32 v25, v{VL}
    s_nop 1
    v_permlane32_swap_b32 v{VL}, v25
    s_nop 1
    v_add_f32 v{VL}, v{VL}, v25
    s_lshl_b32 s3, s26, 13
    s_add_u32 s3, s3, 65536
    v_lshlrev_b32 v5, 4, v2
    v_add_u32 v5, s3, v5
    s_lshl_b32 s3, s26, 9
    v_lshlrev_b32 v6, 2, v2
    v_add_u32 v6, s3, v6
    s_xor_b32 s37, s26, 4
    s_barrier
    ds_write_b32 v6, v{VM} offset:32768
    ds_write_b32 v6, v{VL} offset:33024
    s_cmp_eq_u32 s27, 0
    s_cbranch_scc1 L_k2_m0
    """)
    def merge(g):
        lw = a.label("mw")
        keep = O + (0 if g == 0 else 32); send = O + (32 if g == 0 else 0)
        for q in range(8): a(f"ds_write_b128 v5, {vr(send+q*4,4)} offset:{q*1024}")
        a(f"""
        v_xor_b32 v5, 0x8000, v5
        v_xor_b32 v6, 0x800, v6
        s_waitcnt lgkmcnt(0)
        s_barrier
        ds_read_b32 v24, v6 offset:32768
        ds_read_b32 v25, v6 offset:33024
        """)
        for q in range(8): a(f"ds_read_b128 {vr(S+q*4,4)}, v5 offset:{q*1024}")
        a(f"""
        s_waitcnt lgkmcnt(8)
        v_max_f32 v26, v{VM}, v24
        v_sub_f32 v27, v{VM}, v26
        v_sub_f32 v28, v24, v26
        v_exp_f32 v27, v27
        v_exp_f32 v28, v28
        s_nop 0
        v_mul_f32 v29, v27, v{VL}
        v_fma_f32 v29, v28, v25, v29
        v_rcp_f32 v29, v29
        s_nop 0
        v_mul_f32 v27, v27, v29
        v_mul_f32 v28, v28, v29
        s_lshl_b32 s3, s29, 2
        s_add_u32 s3, s3, s28
        s_mul_i32 s3, s3, {36*8192}
        s_lshl_b32 s37, s24, 13
        s_add_u32 s3, s3, s37
        s_add_u32 s3, s3, {g*4096}
        v_lshlrev_b32 v5, 4, v2
        s_waitcnt lgkmcnt(0)
        s_cmp_eq_u32 s36, 0
        s_cbranch_scc1 {lw}
        s_waitcnt vmcnt(0)
        {lw}:
        """)
        for i in range(32):
            a(f"v_mul_f32 v{keep+i}, v27, v{keep+i}\nv_fma_f32 v{keep+i}, v28, v{S+i}, v{keep+i}")
        for q in range(4):
            for p in range(4):
                a(f"v_cvt_pk_bf16_f32 v{P+q*4+p}, v{keep+q*8+2*p}, v{keep+q*8+2*p+1}")
            a(f"buffer_store_dwordx4 {vr(P+q*4,4)}, v5, s[20:23], s3 offen offset:{q*1024}")
    merge(1)
    a("s_branch L_k2_mdone\nL_k2_m0:")
    merge(0)
    a("L_k2_mdone:")
    ob_post(a)
    if INSTR:
        a(f"""
        s_cmp_lg_u32 s36, 0
        s_cbranch_scc1 L_nodump
        s_lshl_b32 s3, s2, 3
        s_add_u32 s3, s3, s26
        s_lshl_b32 s3, s3, 8
        v_lshlrev_b32 v5, 2, v2
        v_add_u32 v5, s3, v5
        s_add_u32 s64, s4, {hex(100<<20)}
        s_addc_u32 s65, s5, 0
        s_mov_b32 s66, 0x1000000
        s_mov_b32 s67, 0x00020000
        buffer_store_dword v244, v5, s[64:67], 0 offen
        L_nodump:
        """)
    a("""
    s_barrier
    s_add_u32 s36, s36, 1
    s_cmp_lt_u32 s36, 2
    s_cbranch_scc1 L_k2_pass
    """)
    a("L_k2_end:\ns_endpgm")
    return a.text()
```

```python
from common import *
from gemm import *
import k2
import os
NWG1 = 256
def pf(a):
    if os.environ.get("NOPF") == "1": return
    l = a.label("pf")
    a(f"""
    s_lshl_b32 s70, s2, 3
    s_add_u32 s70, s70, s42
    s_cmp_ge_u32 s70, 1920
    s_cbranch_scc1 {l}
    s_sub_u32 s71, s70, 512
    s_mov_b32 s74, 0x400000
    s_cmp_lt_u32 s70, 512
    s_cselect_b32 s72, s64, s66
    s_cselect_b32 s73, s65, s67
    s_cselect_b32 s74, 0x200000, s74
    s_cselect_b32 s71, s70, s71
    s_sub_u32 s3, s70, 1536
    s_cmp_ge_u32 s70, 1536
    s_cselect_b32 s72, s68, s72
    s_cselect_b32 s73, s69, s73
    s_cselect_b32 s74, 0x180000, s74
    s_cselect_b32 s71, s3, s71
    s_mov_b32 s75, 0x00020000
    s_lshl_b32 s71, s71, 12
    v_lshlrev_b32 v6, 6, v2
    buffer_load_dword v240, v6, s[72:75], s71 offen
    {l}:
    s_cmp_lg_u32 s70, 1920
    s_cbranch_scc1 {l}b
    s_movk_i32 s78, 16384
    s_mov_b32 s79, 0x00020000
    s_movk_i32 s82, 1024
    s_mov_b32 s83, 0x00020000
    v_lshlrev_b32 v6, 7, v2
    s_movk_i32 s3, 8192
    buffer_load_dword v241, v6, s[76:79], 0 offen
    buffer_load_dword v242, v6, s[76:79], s3 offen
    buffer_load_dword v243, v6, s[80:83], 0 offen
    {l}b:
    """)
def gen_k1():
    a = Asm()
    ACC = 64; XF = 192; WF = 224
    a(f"""
    s_cmp_ge_u32 s2, {NWG1}
    s_cbranch_scc1 L_k1_end
    s_load_dwordx8 s[4:11], s[0:1], 8
    s_load_dwordx2 s[20:21], s[0:1], 104
    s_load_dwordx2 s[64:65], s[0:1], 0
    s_load_dwordx2 s[66:67], s[0:1], 16
    s_load_dwordx2 s[68:69], s[0:1], 56
    s_load_dwordx2 s[76:77], s[0:1], 64
    s_load_dwordx2 s[80:81], s[0:1], 80
    s_and_b32 s40, s2, 7
    s_lshl_b32 s40, s40, 2
    s_bfe_u32 s3, s2, 0x20003
    s_add_u32 s40, s40, s3
    s_lshr_b32 s41, s2, 5
    v_lshrrev_b32 v1, 6, v0
    s_nop 0
    v_readfirstlane_b32 s42, v1
    v_and_b32 v2, 63, v0
    s_lshr_b32 s45, s40, 4
    s_and_b32 s44, s40, 15
    s_lshl_b32 s44, s44, 9
    s_lshr_b32 s48, s42, 2
    s_and_b32 s49, s42, 3
    s_lshl_b32 s46, s42, 5
    s_lshl_b32 s47, s41, 8
    s_add_u32 s46, s46, s47
    s_lshl_b32 s47, s48, 7
    s_waitcnt lgkmcnt(0)
    s_mov_b32 s24, s4
    s_mov_b32 s25, s5
    s_mov_b32 s26, 0x200000
    s_mov_b32 s27, 0x00020000
    s_cmp_eq_u32 s45, 0
    s_cselect_b32 s28, s8, s10
    s_cselect_b32 s29, s9, s11
    s_mov_b32 s30, 0x400000
    s_mov_b32 s31, 0x00020000
    s_mov_b32 s32, s20
    s_mov_b32 s33, s21
    s_mov_b32 s34, 0x10000000
    s_mov_b32 s35, 0x00020000
    s_mov_b32 s52, {8192*32}
    """)
    gemm_setup(a, "s46", "s47")
    a("""
    s_lshr_b32 s46, s49, 1
    s_lshl_b32 s46, s46, 13
    v_add_u32 v4, s46, v4
    s_and_b32 s46, s49, 1
    s_lshl_b32 s46, s46, 1
    """)
    for nb in range(2):
        a(f"s_add_u32 s47, s46, {nb}\nv_xor_b32 v5, s47, v3\nv_lshl_add_u32 v{RW+nb}, v5, 6, v4")
    a("""
    v_lshrrev_b32 v4, 4, v2
    v_and_b32 v5, 15, v2
    v_lshlrev_b32 v6, 2, v4
    v_xor_b32 v5, v5, v6
    v_lshlrev_b32 v5, 4, v5
    s_lshl_b32 s46, s48, 8
    s_add_u32 s46, s46, s44
    v_add_u32 v5, s46, v5
    s_lshl_b32 s46, s49, 3
    v_add_u32 v4, s46, v4
    """)
    for i in range(2):
        a(f"v_add_u32 v6, {4*i}, v4\nv_lshl_add_u32 v{VOW+i}, v6, 13, v5")
    gemm_prologue(a)
    PFK = int(os.environ.get("PFK", "-1"))
    if PFK < 0: pf(a)
    for c in range(8): a(f"v_mov_b32 v{48+c}, v{RX+c}")
    for c in range(2): a(f"v_mov_b32 v{56+c}, v{RW+c}")
    xq, wq = gemm_pieces(a, True, 2)
    def mk(sfx):
        def ex(kk, s, n):
            if (kk, s, n) == (13, 0, 1): k2.qpro_setup(a, sfx)
            if kk == 13 and s == 0 and n in (3, 4, 5, 6): xq((n-3)//2, (n-3)%2)
            if kk in (13, 14) and s == 1 and n in (2, 4): wq(kk-13, (n-2)//2)
            if kk == 15 and s == 0 and n in (1, 2, 3, 4): xq(2 + (n-1)//2, (n-1)%2)
        return ex
    barx = lambda kk: {13: (14, 14), 14: (14, 13)}.get(kk)
    if os.environ.get("SPF") == "1": a("""
    s_lshl_b32 s70, s2, 3
    s_add_u32 s70, s70, s42
    s_cmp_ge_u32 s70, 1280
    s_cbranch_scc1 L_k1_npf0
    s_sub_u32 s71, s70, 256
    s_mov_b32 s74, 0x400000
    s_cmp_lt_u32 s70, 256
    s_cselect_b32 s72, s4, s8
    s_cselect_b32 s73, s5, s9
    s_cselect_b32 s74, 0x200000, s74
    s_cselect_b32 s71, s70, s71
    s_sub_u32 s3, s70, 768
    s_cmp_ge_u32 s70, 768
    s_cselect_b32 s72, s10, s72
    s_cselect_b32 s73, s11, s73
    s_cselect_b32 s71, s3, s71
    s_mov_b32 s75, 0x00020000
    s_lshl_b32 s71, s71, 13
    v_lshlrev_b32 v240, 7, v2
    buffer_load_dword v240, v240, s[72:75], s71 offen
    L_k1_npf0:
    """)
    a("""
    s_and_b32 s57, s40, 15
    s_lshl_b32 s57, s57, 1
    s_lshr_b32 s46, s49, 1
    s_add_u32 s57, s57, s46
    s_and_b32 s49, s49, 1
    """)
    if os.environ.get("TLB", "0") == "1": a(f"""
    s_lshl_b32 s84, s57, 19
    s_lshl_b32 s85, s45, 24
    s_add_u32 s84, s84, s85
    s_add_u32 s84, s84, {hex(WS_K)}
    s_lshl_b32 s85, s41, 16
    s_add_u32 s84, s84, s85
    s_lshl_b32 s85, s48, 15
    s_add_u32 s84, s84, s85
    v_lshlrev_b32 v240, 9, v2
    buffer_load_dword v240, v240, s[32:35], s84 offen
    """)
    a("""
    s_cmp_eq_u32 s45, 1
    s_cbranch_scc1 L_k1_vtype
    """)
    a(f"""
    s_lshl_b32 s46, s57, 19
    s_add_u32 s46, s46, {hex(WS_K)}
    s_lshl_b32 s47, s41, 16
    s_add_u32 s46, s46, s47
    s_lshl_b32 s47, s48, 15
    s_add_u32 s46, s46, s47
    s_lshl_b32 s47, s49, 12
    s_add_u32 s46, s46, s47
    v_lshlrev_b32 v5, 4, v2
    """)
    a("s_mov_b32 s90, s46\nv_mov_b32 v14, v5\nv_add_u32 v15, 2048, v5")
    gemm_core(a, 4, [(0, 0), (1, 0)], ACC, XF, WF, False, mk('k'), rx=48, rw=56, barx=barx)
    for mb in range(4):
        for nb in range(2):
            for hf in range(2):
                b = ACC + (mb*2+nb)*16 + hf*8
                t = k2.HOME[mb*4+nb*2+hf]
                for p in range(4):
                    a(f"v_cvt_pk_bf16_f32 v{t+p}, v{b+2*p}, v{b+2*p+1}")
    a("s_branch L_k1_q")
    a("L_k1_vtype:")
    a(f"""
    s_lshl_b32 s46, s57, 19
    s_add_u32 s46, s46, {hex(WS_V)}
    s_lshl_b32 s47, s41, 16
    s_add_u32 s46, s46, s47
    s_lshl_b32 s47, s48, 15
    s_add_u32 s46, s46, s47
    s_lshl_b32 s47, s49, 11
    s_add_u32 s46, s46, s47
    v_lshlrev_b32 v5, 4, v2
    """)
    a("s_mov_b32 s90, s46\nv_mov_b32 v14, v5\nv_add_u32 v15, 4096, v5")
    gemm_core(a, 4, [(0, 0), (1, 0)], ACC, XF, WF, True, mk('v'), rx=48, rw=56, barx=barx)
    for mb in range(4):
        for hf in range(2):
            for nb in range(2):
                b = ACC + (mb*2+nb)*16 + hf*8
                t = k2.HOME[mb*4+hf*2+nb]
                for p in range(4):
                    a(f"v_cvt_pk_bf16_f32 v{t+p}, v{b+2*p}, v{b+2*p+1}")
    a("L_k1_q:\ns_barrier")
    for i in range(2): wq(2, i)
    k2.qpro(a)
    a("L_k1_end:\ns_endpgm")
    return a.text()
```

```python
from common import *
from gemm import *
import k3
import struct, os
def f32bits(x): return struct.unpack("<I", struct.pack("<f", x))[0]
NWG2 = 256
O = 64; SS = [128, 160]; P = 192; Q = 208
FS = [36, 40, 44, 48, 52, 56, 60, 240]
KA = 8; VA = 16
VM = 20; VL = 21; VTHR = 22; VDMA = 23
KB = [0, 32768]; VB = [65536, 98304]
INSTR = os.environ.get("INSTR") == "1"
FORCE = os.environ.get("FORCE") == "1"
SPR = os.environ.get("SPR", "1") == "1"
G0S = int(os.environ.get("G0S", "16"))
HOME = [216+4*i for i in range(10)] + [48+4*i for i in range(4)] + [32, 36]
def qpro_setup(a, sfx):
    a(f"""
    s_load_dwordx2 s[4:5], s[0:1], 104
    s_load_dwordx2 s[24:25], s[0:1], 0
    s_load_dwordx2 s[28:29], s[0:1], 16
    s_load_dwordx2 s[6:7], s[0:1], 56
    s_load_dwordx2 s[8:9], s[0:1], 64
    s_and_b32 s40, s2, 7
    s_lshl_b32 s40, s40, 2
    s_bfe_u32 s3, s2, 0x20003
    s_add_u32 s40, s40, s3
    s_lshr_b32 s41, s2, 5
    v_lshrrev_b32 v1, 6, v0
    s_nop 0
    v_readfirstlane_b32 s42, v1
    v_and_b32 v2, 63, v0
    s_lshr_b32 s48, s42, 2
    s_and_b32 s49, s42, 3
    s_sub_u32 s46, 15, s41
    s_cmp_eq_u32 s48, 0
    s_cselect_b32 s46, s46, s41
    s_lshl_b32 s46, s46, 7
    s_lshl_b32 s47, s49, 5
    s_add_u32 s43, s46, s47
    s_lshl_b32 s47, s42, 5
    s_waitcnt lgkmcnt(0)
    s_mov_b32 s26, 0x200000
    s_mov_b32 s27, 0x00020000
    s_mov_b32 s30, 0x180000
    s_movk_i32 s44, 3072
    s_cmp_eq_u32 s48, 0
    s_cselect_b32 s28, s28, s6
    s_cselect_b32 s29, s29, s7
    s_cselect_b32 s30, 0x400000, s30
    s_cselect_b32 s44, 8192, s44
    s_mov_b32 s31, 0x00020000
    s_mov_b32 s32, s4
    s_mov_b32 s33, s5
    s_mov_b32 s34, 0x10000000
    s_mov_b32 s35, 0x00020000
    s_lshl_b32 s52, s44, 5
    """)
    gemm_setup(a, "s43", "s47")
    for b in range(4):
        a(f"v_xor_b32 v5, {b}, v3\nv_lshl_add_u32 v{RW+b}, v5, 6, v4")
    a(f"""
    v_lshrrev_b32 v5, 5, v2
    v_lshl_add_u32 v5, v5, 3, v3
    v_lshlrev_b32 v5, 7, v5
    v_and_b32 v6, 3, v2
    v_lshl_add_u32 v5, v6, 3, v5
    v_bfe_u32 v6, v2, 4, 1
    v_lshl_add_u32 v5, v6, 5, v5
    v_add_u32 v5, {WBASE + 8192}, v5
    v_lshrrev_b32 v6, 1, v3
    v_lshl_add_u32 v{RW+4}, v6, 6, v5
    v_xor_b32 v{RW+5}, 64, v{RW+4}
    s_cmp_eq_u32 s48, 0
    s_cbranch_scc1 L_k2_wq{sfx}
    v_lshrrev_b32 v4, 3, v2
    v_bfe_u32 v6, v2, 4, 1
    v_lshlrev_b32 v6, 2, v6
    v_and_b32 v5, 7, v2
    v_xor_b32 v5, v5, v6
    v_lshrrev_b32 v6, 1, v5
    v_min_u32 v6, 2, v6
    v_lshlrev_b32 v6, 10, v6
    v_and_b32 v7, 1, v5
    v_lshl_add_u32 v6, v7, 4, v6
    s_lshl_b32 s46, s40, 5
    v_add_u32 v5, s46, v6
    s_lshl_b32 s46, s49, 3
    v_add_u32 v4, s46, v4
    v_mul_lo_u32 v6, v4, s44
    v_add_u32 v{VOW}, v6, v5
    v_mov_b32 v{VOW+1}, v{VOW}
    s_lshl_b32 s54, s49, 10
    s_add_u32 s54, s54, 8192
    s_branch L_k2_wdone{sfx}
    L_k2_wq{sfx}:
    v_lshrrev_b32 v4, 4, v2
    v_and_b32 v5, 15, v2
    v_lshlrev_b32 v6, 2, v4
    v_xor_b32 v5, v5, v6
    v_lshlrev_b32 v5, 4, v5
    s_lshl_b32 s46, s40, 8
    v_add_u32 v5, s46, v5
    s_lshl_b32 s46, s49, 3
    v_add_u32 v4, s46, v4
    """)
    for i in range(2):
        a(f"v_add_u32 v6, {4*i}, v4\nv_mul_lo_u32 v6, v6, s44\nv_add_u32 v{VOW+i}, v6, v5")
    a(f"L_k2_wdone{sfx}:")
    srd(a, 8, "s8", "s9", 16384)
    a("""
    v_and_b32 v5, 15, v2
    v_lshlrev_b32 v5, 1, v5
    v_lshrrev_b32 v4, 5, v2
    v_lshl_add_u32 v5, v4, 7, v5
    s_lshl_b32 s3, s40, 9
    v_add_u32 v5, s3, v5
    """)
    for j in range(8):
        a(f"buffer_load_ushort v{40+j}, v5, s[8:11], 0 offen offset:{((j//4)*8 + j%4)*32}")
def qpro(a):
    ACC = 64; XF = 160; WF = 168
    def kvst(kk, s, n):
        if n == 5 and (s == 0 if SPR else kk < 8):
            j = kk if SPR else kk*2 + s
            a(f"buffer_store_dwordx4 {vr(HOME[j],4)}, v{14 + (j%4)//2}, s[32:35], s90 offen offset:{(j%2)*1024}")
            if j % 4 == 3: a("s_add_u32 s90, s90, 8192")
    if os.environ.get("XPF", "0") == "1": a("""
    s_lshl_b32 s46, s43, 10
    s_and_b32 s47, s40, 3
    s_lshl_b32 s47, s47, 13
    s_add_u32 s46, s46, s47
    v_lshlrev_b32 v244, 7, v2
    buffer_load_dword v244, v244, s[24:27], s46 offen
    s_cmp_ge_u32 s42, 2
    s_cbranch_scc1 L_k2_nxpf
    s_lshl_b32 s46, s41, 19
    s_lshl_b32 s47, s42, 18
    s_add_u32 s46, s46, s47
    s_lshl_b32 s47, s40, 8
    s_add_u32 s46, s46, s47
    v_lshrrev_b32 v245, 1, v2
    v_lshlrev_b32 v245, 13, v245
    v_and_b32 v246, 1, v2
    v_lshl_add_u32 v245, v246, 7, v245
    buffer_load_dword v245, v245, s[28:31], s46 offen
    L_k2_nxpf:
    """)
    gemm_core(a, 1, [(0,0),(1,0),(2,0),(3,0),(4,0,2048,512),(5,0,2048,512)], ACC, XF, WF, False, kvst, True, (lambda kk, s: 1 if (kk >= 0 and s == 0) else 0) if SPR else (lambda kk, s: 1 if 0 <= kk < 8 else 0), xrot=2)
    a(f"""
    v_and_b32 v3, 31, v2
    v_lshrrev_b32 v4, 5, v2
    s_lshl_b32 s46, s40, 3
    s_add_u32 s46, s46, s41
    s_lshl_b32 s46, s46, 16
    s_lshl_b32 s47, s42, 13
    s_add_u32 s46, s46, s47
    s_add_u32 s91, s46, {hex(WS_Q)}
    v_lshlrev_b32 v5, 4, v2
    v_add_u32 v14, 4096, v5
    s_barrier
    """)
    for n in range(8, 11):
        nb, hf = n // 2, n % 2
        b = ACC + nb*16 + hf*8; t = XF + (n-8)*4
        for p in range(4): a(f"v_cvt_pk_bf16_f32 v{t+p}, v{b+2*p}, v{b+2*p+1}")
    W = 28; TK = 128; TQ = 144; AF = 48; BF = 52; KACC = 216
    a("v_cmp_lt_u32 vcc, 15, v3\nv_mov_b32 v6, 0\nv_mov_b32 v7, 0x80008000\ns_nop 0\nv_cndmask_b32 v6, v6, v7, vcc")
    for p in range(4):
        a(f"v_lshl_or_b32 v{W+p}, v{41+2*p}, 16, v{40+2*p}\nv_xor_b32 v{W+p}, v{W+p}, v6")
    a(f"""
    s_nop 1
    v_mfma_f32_32x32x16_bf16 {vr(TK,16)}, {vr(W,4)}, {vr(XF+4,4)}, 0
    """)
    for n in range(8):
        nb, hf = n // 2, n % 2
        b = ACC + nb*16 + hf*8; t = Q + n*4
        for p in range(4): a(f"v_cvt_pk_bf16_f32 v{t+p}, v{b+2*p}, v{b+2*p+1}")
        a(f"buffer_store_dwordx4 {vr(t,4)}, {'v5' if n < 4 else 'v14'}, s[32:35], s91 offen offset:{(n%4)*1024}")
    a(f"""
    s_mov_b32 s56, s40
    s_mov_b32 s40, {k3.LOG2E}
    s_lshl_b32 s28, s42, 12
    s_add_u32 s28, s28, 32768
    v_lshlrev_b32 v33, 6, v3
    v_add_u32 v33, s28, v33
    v_lshl_add_u32 v34, v4, 3, v33
    v_lshl_add_u32 v33, v4, 4, v33
    v_bfe_u32 v7, v2, 2, 2
    v_lshl_add_u32 v6, v4, 3, v7
    v_lshlrev_b32 v6, 6, v6
    v_and_b32 v7, 3, v2
    v_lshl_add_u32 v6, v7, 3, v6
    v_bfe_u32 v7, v2, 4, 1
    v_lshl_add_u32 v6, v7, 5, v6
    v_add_u32 v35, s28, v6
    v_mov_b32 v40, 0
    v_mov_b32 v41, 0
    v_mov_b32 v42, 0
    v_mov_b32 v43, 0
    v_mov_b32 v7, 0x3f80
    v_cmp_eq_u32 vcc, 0, v4
    s_nop 1
    v_cndmask_b32 v40, v40, v7, vcc
    ds_write_b128 v33, v[40:43] offset:{2048+32}
    ds_write_b128 v33, {vr(XF+8,4)} offset:2048
    """)
    k3.rnd16(a, TK, 44)
    k3.softmax16(a, TK, 44)
    for p in range(8): a(f"v_cvt_pk_bf16_f32 v{64+p}, v{TK+2*p}, v{TK+2*p+1}")
    for q in range(4): a(f"ds_write_b64 v34, {vr(64+2*q,2)} offset:{q*16}")
    a("s_waitcnt lgkmcnt(0)")
    for ks in range(2):
        a(f"""
        ds_read_b64_tr_b16 {vr(AF+ks*8,2)}, v35 offset:{ks*1024}
        ds_read_b64_tr_b16 {vr(AF+ks*8+2,2)}, v35 offset:{ks*1024+256}
        ds_read_b64_tr_b16 {vr(BF+ks*8,2)}, v35 offset:{2048+ks*1024}
        ds_read_b64_tr_b16 {vr(BF+ks*8+2,2)}, v35 offset:{2048+ks*1024+256}
        """)
    a("s_waitcnt lgkmcnt(0)")
    for ks in range(2):
        a(f"v_mfma_f32_32x32x16_bf16 {vr(KACC,16)}, {vr(AF+ks*8,4)}, {vr(BF+ks*8,4)}, {'0' if ks==0 else vr(KACC,16)}")
    a(f"""
    s_lshl_b32 s46, s56, 11
    s_add_u32 s46, s46, s43
    v_add_u32 v6, s46, v3
    v_lshlrev_b32 v6, 5, v6
    v_lshl_add_u32 v6, v4, 4, v6
    s_mov_b32 s47, {hex(WS_QKVB)}
    buffer_store_dwordx4 {vr(XF,4)}, v6, s[32:35], s47 offen
    s_nop 7
    s_nop 7
    v_lshlrev_b32 v5, 4, v2
    v_add_u32 v6, s28, v5
    """)
    for q in range(4): a(f"ds_write_b128 v6, {vr(KACC+q*4,4)} offset:{32768+q*1024}")
    a(f"""
    s_waitcnt lgkmcnt(0)
    s_barrier
    s_cmp_ge_u32 s42, 4
    s_cbranch_scc1 L_k2_nored
    s_lshl_b32 s3, s42, 10
    v_add_u32 v5, s3, v5
    v_add_u32 v7, 0x8000, v5
    """)
    for w in range(8): a(f"ds_read_b128 {vr(64+w*4,4)}, v7 offset:{32768+w*4096}")
    a("s_waitcnt lgkmcnt(0)")
    for i in range(4):
        a(f"""v_add_f32 v{64+i}, v{64+i}, v{68+i}
        v_add_f32 v{72+i}, v{72+i}, v{76+i}
        v_add_f32 v{80+i}, v{80+i}, v{84+i}
        v_add_f32 v{88+i}, v{88+i}, v{92+i}
        v_add_f32 v{64+i}, v{64+i}, v{72+i}
        v_add_f32 v{80+i}, v{80+i}, v{88+i}
        v_add_f32 v{64+i}, v{64+i}, v{80+i}""")
    a(f"""
    s_lshl_b32 s3, s56, 3
    s_add_u32 s3, s3, s41
    s_lshl_b32 s3, s3, 12
    s_add_u32 s3, s3, {hex(WS_KVP)}
    buffer_store_dwordx4 v[64:67], v5, s[32:35], s3 offen
    L_k2_nored:
    s_barrier
    """)
PART = 160; QB = 176; WPH = 180; GX = 208; GW = 212
def ob_qload(a):
    a(f"""
    s_lshl_b32 s3, s24, 11
    s_add_u32 s3, s3, s82
    v_add_u32 v6, s3, v3
    v_lshlrev_b32 v6, 5, v6
    v_lshl_add_u32 v6, v4, 4, v6
    s_mov_b32 s3, {hex(WS_QKVB)}
    buffer_load_dwordx4 {vr(QB,4)}, v6, s[64:67], s3 offen
    """)
def ob_tok(a, j):
    a(f"""
    s_sub_u32 s82, 15, {j}
    s_cmp_eq_u32 s27, 0
    s_cselect_b32 s82, s82, {j}
    s_lshl_b32 s82, s82, 7
    s_lshl_b32 s3, s28, 5
    s_add_u32 s82, s82, s3
    """)
def ob_pre(a):
    a(f"""
    s_cmp_eq_u32 s36, 0
    s_cbranch_scc1 L_k2_nopf
    v_and_b32 v3, 31, v2
    v_lshrrev_b32 v4, 5, v2
    s_lshl_b32 s83, s2, 3
    s_add_u32 s83, s83, s26
    s_lshl_b32 s3, s83, 10
    v_lshlrev_b32 v6, 4, v2
    buffer_load_dwordx4 {vr(GX,4)}, v6, s[72:75], s3 offen
    buffer_load_dwordx4 {vr(GW,4)}, v6, s[76:79], 0 offen
    s_bitcmp0_b32 s80, 0
    s_cbranch_scc1 L_k2_nopf
    """)
    ob_tok(a, "s25")
    ob_qload(a)
    a("""
    v_and_b32 v5, 15, v3
    v_lshlrev_b32 v5, 1, v5
    v_lshl_add_u32 v5, v4, 7, v5
    s_lshl_b32 s3, s24, 9
    v_add_u32 v5, s3, v5
    """)
    for j in range(8):
        a(f"buffer_load_ushort v{WPH+j}, v5, s[68:71], 0 offen offset:{((j//4)*8 + j%4)*32}")
    a(f"""
    s_lshl_b32 s3, s24, 15
    s_lshl_b32 s37, s27, 14
    s_add_u32 s3, s3, s37
    s_lshl_b32 s37, s28, 10
    s_add_u32 s3, s3, s37
    s_add_u32 s3, s3, {hex(WS_KVP)}
    v_lshlrev_b32 v5, 4, v2
    v_cmp_gt_u32 vcc, 17, v3
    s_nop 1
    s_mov_b64 exec, vcc
    """)
    for c in range(4):
        a(f"buffer_load_dwordx4 {vr(PART+c*4,4)}, v5, s[64:67], s3 offen\ns_add_u32 s3, s3, 4096")
    a("s_mov_b64 exec, -1\nL_k2_nopf:")
def ob_post(a):
    W = 36; T = 40; PF = 48; KVF = 56; D2 = 128; EX = 64
    a(f"""
    s_cmp_eq_u32 s36, 0
    s_cbranch_scc1 L_k2_obskip
    s_mov_b32 s40, {k3.LOG2E}
    s_bitcmp0_b32 s80, 0
    s_cbranch_scc1 L_k2_gate
    """)
    for r in range(4):
        a(f"""v_add_f32 v{PART+r}, v{PART+r}, v{PART+4+r}
        v_add_f32 v{PART+8+r}, v{PART+8+r}, v{PART+12+r}
        v_add_f32 v{PART+r}, v{PART+r}, v{PART+8+r}""")
    a(f"""
    v_lshlrev_b32 v5, 4, v2
    s_lshl_b32 s3, s26, 10
    v_add_u32 v6, s3, v5
    ds_write_b128 v6, {vr(PART,4)}
    v_cmp_lt_u32 vcc, 15, v3
    v_mov_b32 v6, 0
    v_mov_b32 v7, 0x80008000
    s_nop 0
    v_cndmask_b32 v6, v6, v7, vcc
    """)
    for p in range(4):
        a(f"v_lshl_or_b32 v{W+p}, v{WPH+1+2*p}, 16, v{WPH+2*p}\nv_xor_b32 v{W+p}, v{W+p}, v6")
    a("s_waitcnt lgkmcnt(0)\ns_barrier")
    for w in range(8): a(f"ds_read_b128 {vr(EX+w*4,4)}, v5 offset:{w*1024}")
    a("L_k2_obloop:")
    a(f"""
    v_mfma_f32_32x32x16_bf16 {vr(D2,16)}, {vr(W,4)}, {vr(QB,4)}, 0
    s_lshr_b32 s3, s82, 5
    s_mul_i32 s3, s3, {36*8192}
    s_lshl_b32 s37, s24, 10
    s_add_u32 s3, s3, s37
    s_add_u32 s84, s3, {32*8192}
    s_waitcnt lgkmcnt(0)
    """)
    for r in range(16): a(f"v_add_f32 v{EX+32+r}, v{EX+r}, v{EX+16+r}")
    for p in range(8): a(f"v_cvt_pk_bf16_f32 v{KVF+p}, v{EX+32+2*p}, v{EX+33+2*p}")
    k3.rnd16(a, D2, T)
    k3.softmax16(a, D2, T)
    for p in range(8): a(f"v_cvt_pk_bf16_f32 v{PF+p}, v{D2+2*p}, v{D2+2*p+1}")
    a(f"""
    s_nop 1
    v_mfma_f32_32x32x16_bf16 {vr(D2,16)}, {vr(KVF,4)}, {vr(PF,4)}, 0
    v_mfma_f32_32x32x16_bf16 {vr(D2,16)}, {vr(KVF+4,4)}, {vr(PF+4,4)}, {vr(D2,16)}
    s_nop 15
    s_nop 3
    v_mov_b32 v{T}, v{D2+8}
    v_mov_b32 v{T+1}, v{D2+8}
    s_nop 1
    v_permlane32_swap_b32 v{T}, v{T+1}
    s_nop 1
    v_cvt_pk_bf16_f32 v{T}, v{T}, v{T}
    v_and_b32 v{T}, 0xffff0000, v{T}
    v_add_f32 v{T}, 0x358637bd, v{T}
    v_cvt_pk_bf16_f32 v{T}, v{T}, v{T}
    v_and_b32 v{T}, 0xffff0000, v{T}
    v_rcp_f32 v{T}, v{T}
    """)
    for i in range(4):
        a(f"v_cvt_pk_bf16_f32 v{T+1}, v{D2+2*i}, v{D2+2*i+1}\nv_lshlrev_b32 v{D2+2*i}, 16, v{T+1}\nv_and_b32 v{D2+2*i+1}, 0xffff0000, v{T+1}")
    for i in range(8): a(f"v_mul_f32 v{D2+i}, v{D2+i}, v{T}")
    for p in range(4): a(f"v_cvt_pk_bf16_f32 v{T+4+p}, v{D2+2*p}, v{D2+2*p+1}")
    a(f"""
    buffer_store_dwordx4 {vr(T+4,4)}, v5, s[20:23], s84 offen
    s_lshr_b32 s3, s80, 8
    s_cmp_eq_u32 s3, 0
    s_cbranch_scc1 L_k2_gate
    s_ff1_i32_b32 s85, s3
    s_add_u32 s3, s85, 8
    s_bitset0_b32 s80, s3
    """)
    ob_tok(a, "s85")
    ob_qload(a)
    a("s_waitcnt vmcnt(0)\ns_branch L_k2_obloop\nL_k2_gate:\nv_mov_b32 v8, 0\nv_mov_b32 v9, 0")
    for i in range(4):
        a(f"""
        v_lshlrev_b32 v10, 16, v{GX+i}
        v_lshlrev_b32 v11, 16, v{GW+i}
        v_fmac_f32 v8, v10, v11
        v_and_b32 v10, 0xffff0000, v{GX+i}
        v_and_b32 v11, 0xffff0000, v{GW+i}
        v_fmac_f32 v9, v10, v11
        """)
    a("v_add_f32 v8, v8, v9")
    for off in (0x041F, 0x081F, 0x101F, 0x201F, 0x401F):
        a(f"ds_swizzle_b32 v9, v8 offset:{hex(off)}\ns_waitcnt lgkmcnt(0)\nv_add_f32 v8, v8, v9")
    a(f"""
    v_mov_b32 v9, v8
    s_nop 1
    v_permlane32_swap_b32 v8, v9
    s_nop 1
    v_add_f32 v8, v8, v9
    v_cvt_pk_bf16_f32 v8, v8, v8
    v_and_b32 v8, 0xffff0000, v8
    v_mul_f32 v8, s40, v8
    v_sub_f32 v8, 0, v8
    v_exp_f32 v8, v8
    s_nop 0
    v_add_f32 v8, 1.0, v8
    v_rcp_f32 v8, v8
    s_nop 0
    v_cvt_pk_bf16_f32 v8, v8, v8
    v_and_b32 v8, 0xffff0000, v8
    s_lshl_b32 s3, s83, 2
    s_add_u32 s3, s3, {hex(WS_G)}
    s_mov_b64 exec, 1
    buffer_store_dword v8, v247, s[64:67], s3 offen
    s_mov_b64 exec, -1
    L_k2_obskip:
    """)
def gen_k2():
    a = Asm()
    def stamp():
        if INSTR: a("s_memtime s[60:61]\ns_waitcnt lgkmcnt(0)\ns_and_b32 s59, s59, 63\ns_mov_b32 m0, s59\ns_nop 3\nv_writelane_b32 v244, s60, m0\ns_add_u32 s59, s59, 1")
    a(f"""
    s_cmp_ge_u32 s2, {NWG2}
    s_cbranch_scc1 L_k2_end
    """)
    a(f"""
    s_load_dwordx2 s[4:5], s[0:1], 104
    s_load_dwordx2 s[72:73], s[0:1], 0
    s_load_dwordx2 s[68:69], s[0:1], 64
    s_load_dwordx2 s[76:77], s[0:1], 80
    s_load_dwordx2 s[86:87], s[0:1], 40
    s_load_dwordx2 s[88:89], s[0:1], 72
    s_and_b32 s24, s2, 7
    s_lshl_b32 s24, s24, 2
    s_bfe_u32 s3, s2, 0x20003
    s_add_u32 s24, s24, s3
    s_lshr_b32 s25, s2, 5
    v_lshrrev_b32 v1, 6, v0
    s_nop 0
    v_readfirstlane_b32 s26, v1
    v_and_b32 v2, 63, v0
    s_lshr_b32 s27, s26, 2
    s_and_b32 s28, s26, 3
    s_lshl_b32 s34, s26, 12
    s_mov_b32 s35, {hex(f32bits(128**-0.5 * 1.4426950408889634))}
    s_lshl_b32 s3, s24, 19
    s_waitcnt lgkmcnt(0)
    s_add_u32 s6, s4, s3
    s_addc_u32 s7, s5, 0
    """)
    srd_ws(a, 8, 6, WS_K, 0x80000)
    srd_ws(a, 12, 6, WS_V, 0x80000)
    srd_ws(a, 16, 6, WS_Q, 0x80000)
    srd_ws(a, 20, 4, WS_CTXO, 2048*CTX_PITCH)
    srd(a, 64, "s4", "s5", 0x10000000)
    a(f"""
    s_movk_i32 s70, 16384
    s_mov_b32 s71, 0x00020000
    s_mov_b32 s74, 0x200000
    s_mov_b32 s75, 0x00020000
    s_movk_i32 s78, 1024
    s_mov_b32 s79, 0x00020000
    s_lshl_b32 s81, s24, 8
    s_add_u32 s81, s81, {hex(WS_CNT)}
    s_mov_b32 s80, 1
    v_mov_b32 v245, 1
    v_mov_b32 v247, 0
    s_add_u32 s3, s25, 8
    s_lshl_b32 s3, 1, s3
    v_mov_b32 v246, s3
    v_and_b32 v3, 31, v2
    v_lshrrev_b32 v4, 5, v2
    v_lshlrev_b32 v{VDMA}, 4, v2
    v_add_u32 v{VDMA}, s34, v{VDMA}
    s_lshl_b32 s3, s27, 14
    v_lshlrev_b32 v5, 4, v2
    v_add_u32 v{KA}, s3, v5
    v_add_u32 v{VA}, 0x10000, v{KA}
    s_lshl_b32 s3, s28, 5
    s_lshl_b32 s37, s27, 6
    s_sub_u32 s3, s3, s37
    v_lshlrev_b32 v5, 2, v4
    v_sub_u32 v5, v3, v5
    v_add_u32 v{VTHR}, s3, v5
    s_mov_b32 s36, 0
    s_mov_b32 s59, 0
    """)
    if INSTR: a("v_mov_b32 v244, 0")

    def dma(srdreg, soff, buf):
        a(f"s_add_u32 m0, s34, {buf}\ns_nop 0")
        for j in range(4):
            a(f"buffer_load_dwordx4 v{VDMA}, s[{srdreg}:{srdreg+3}], {soff} offen offset:{j*1024} lds")
    def dpiece(srdreg, soff, buf, j, need):
        if need:
            l = a.label("nd")
            a(f"s_cmp_lt_u32 s38, {need}\ns_cbranch_scc1 {l}")
        a(f"s_add_u32 m0, s34, {buf}\ns_nop 0\nbuffer_load_dwordx4 v{VDMA}, s[{srdreg}:{srdreg+3}], {soff} offen offset:{j*1024} lds")
        if need: a(f"{l}:")
    def rd_item(it, slot, parv, park):
        k, s, b = it
        if k == "pv": a(f"ds_read_b128 {vr(FS[slot],4)}, v{VA} offset:{VB[parv]-65536+s*4096+b*1024}")
        else: a(f"ds_read_b128 {vr(FS[slot],4)}, v{KA} offset:{KB[park]+b*8192+s*1024}")
    QKI = [("qk", s, kb) for s in range(8) for kb in range(2)]
    PVI = [("pv", s, db) for s in range(4) for db in range(4)]
    def pre(items, parv, park):
        for i in range(8): rd_item(items[i], i, parv, park)
    def MM(items, parv, park, fill=None, ld=True, g1=False, mid=None, pre_mid=None):
        n = len(items); SQ = SS[park]; qi = 0
        for i, it in enumerate(items):
            k, s, b = it
            if mid is not None and i == 16:
                a(f"{mid}:")
                for x in pre_mid: a(x)
            a(f"s_waitcnt lgkmcnt({min(7, n-1-i)})")
            if k == "pv":
                if fill is not None and s == 0 and b == 0 and not g1: a("s_nop 1")
                acc = vr(O+b*16, 16)
                a(f"v_mfma_f32_32x32x16_bf16 {acc}, {vr(FS[i%8],4)}, {vr(P+s*4,4)}, {acc}")
            else:
                acc = vr(SQ+b*16, 16)
                a(f"v_mfma_f32_32x32x16_bf16 {acc}, {vr(FS[i%8],4)}, {vr(Q+s*4,4)}, {'0' if s==0 else acc}")
            if i + 8 < n: rd_item(items[i+8], i % 8, parv, park)
            if k == "qk" and fill is not None:
                for x in fill[qi]: a(x)
                qi += 1
            i0 = i - (G0S if not g1 else 0)
            if ld and 0 <= i0 < 16 and i0 % 2 == 1:
                j = i0 // 2
                if j < 4: dpiece(12, "s39" if g1 else "s33", VB[parv ^ 1], j, 0)
                else: dpiece(8, "s32", KB[park ^ 1], j - 4, 2)
    def SM_parts(S):
        lr = a.label("noresc")
        A = [f"v_max3_f32 v24, v{S}, v{S+1}, v{S+2}", f"v_max3_f32 v25, v{S+16}, v{S+17}, v{S+18}"]
        for i in range(3, 15, 2):
            A += [f"v_max3_f32 v24, v24, v{S+i}, v{S+i+1}", f"v_max3_f32 v25, v25, v{S+16+i}, v{S+16+i+1}"]
        A2 = f"""v_max3_f32 v24, v24, v{S+15}, v25
        v_max_f32 v24, v24, v{S+31}
        v_mov_b32 v25, v24
        s_nop 1
        v_permlane32_swap_b32 v24, v25
        s_nop 1
        v_max_f32 v24, v24, v25
        v_mul_f32 v24, s35, v24
        v_max_f32 v25, v{VM}, v24
        v_sub_f32 v26, v25, v{VM}
        v_cmp_lt_f32 vcc, 0x41000000, v26
        s_cbranch_vccz {lr}
        v_sub_f32 v26, 0, v26
        v_exp_f32 v26, v26
        v_mov_b32 v{VM}, v25
        s_nop 0
        v_mov_b32 v27, v26
        v_mul_f32 v{VL}, v{VL}, v26
        """ + "\n".join(f"v_pk_mul_f32 {vr(O+i,2)}, {vr(O+i,2)}, v[26:27]" for i in range(0, 64, 2)) + f"\n{lr}:\nv_sub_f32 v28, 0, v{VM}"
        B = []
        for p in range(17):
            if p < 16:
                B += [f"v_fma_f32 v{S+2*p}, v{S+2*p}, s35, v28", f"v_fma_f32 v{S+2*p+1}, v{S+2*p+1}, s35, v28"]
            if p >= 1:
                q = p - 1
                B += [f"v_exp_f32 v{S+2*q}, v{S+2*q}", f"v_exp_f32 v{S+2*q+1}, v{S+2*q+1}"]
            if p >= 2:
                q = p - 2
                B += [f"v_add_f32 v{VL}, v{VL}, v{S+2*q}", f"v_add_f32 v29, v29, v{S+2*q+1}" if q else f"v_mov_b32 v29, v{S+1}",
                      f"v_cvt_pk_bf16_f32 v{P+q}, v{S+2*q}, v{S+2*q+1}"]
        B += ["s_nop 0", f"v_add_f32 v{VL}, v{VL}, v{S+30}", f"v_add_f32 v29, v29, v{S+31}", f"v_cvt_pk_bf16_f32 v{P+15}, v{S+30}, v{S+31}", f"v_add_f32 v{VL}, v{VL}, v29"]
        return A, A2, B
    def mask(S):
        a("v_mov_b32 v24, 0xf149f2ca")
        for kb in range(2):
            for r in range(16):
                c = kb*32 + (r//4)*8 + r % 4
                a(f"v_cmp_gt_i32 vcc, {c}, v{VTHR}\ns_nop 1\nv_cndmask_b32 v{S+kb*16+r}, v{S+kb*16+r}, v24, vcc")
    def top():
        a(f"""
        s_waitcnt vmcnt(0)
        s_barrier
        s_add_u32 s3, s31, 1
        s_lshl_b32 s33, s3, 15
        s_sub_u32 s38, s30, s3
        s_add_u32 s3, s31, 2
        s_lshl_b32 s32, s3, 15
        s_lshl_b32 s39, s31, 15
        s_cmp_eq_u32 s38, 0
        """)
    def publish(force_sel):
        l = a.label("pub")
        a(f"s_or_b32 s3, s26, s36\ns_cmp_lg_u32 s3, 0\ns_cbranch_scc1 {l}")
        if FORCE: a(f"s_cmp_{'eq' if force_sel == 0 else 'lg'}_u32 s25, 0\ns_cbranch_scc1 {l}")
        a(f"s_mov_b64 exec, 1\nbuffer_atomic_add v245, v247, s[64:67], s81 offen sc0\ns_mov_b64 exec, -1\n{l}:")
    def check():
        lp = a.label("wpf")
        if os.environ.get("NOPF") != "1": a(f"""
        s_cmp_lg_u32 s36, 0
        s_cbranch_scc1 {lp}
        s_lshl_b32 s83, s2, 2
        s_add_u32 s83, s83, s28
        s_cmp_ge_u32 s83, 576
        s_cbranch_scc1 {lp}
        s_sub_u32 s3, s83, 512
        s_mov_b32 s94, 0x400000
        s_cmp_lt_u32 s83, 512
        s_cselect_b32 s92, s86, s88
        s_cselect_b32 s93, s87, s89
        s_cselect_b32 s94, s94, 0x80000
        s_cselect_b32 s3, s83, s3
        s_mov_b32 s95, 0x00020000
        s_lshl_b32 s3, s3, 13
        v_lshlrev_b32 v244, 7, v2
        buffer_load_dword v244, v244, s[92:95], s3 offen
        {lp}:
        """)
    a(f"""
    s_lshl_b32 s3, s24, 3
    s_add_u32 s3, s3, s25
    s_lshl_b32 s3, s3, 16
    s_lshl_b32 s37, s26, 12
    s_add_u32 s3, s3, s37
    s_add_u32 s3, s3, {hex(WS_Q)}
    s_lshl_b32 s37, s26, 13
    s_add_u32 s37, s37, 98304
    """)
    for hh in range(2):
        a(f"s_add_u32 m0, s37, {hh*4096}\ns_nop 0")
        for j in range(4): a(f"buffer_load_dwordx4 v{VDMA}, s[64:67], s3 offen offset:{j*1024} lds")
        a("s_add_u32 s3, s3, 4096")
    dma(8, "0", KB[0])
    a("s_waitcnt vmcnt(4)\ns_barrier")
    a("L_k2_pass:")
    a(f"""
    s_sub_u32 s29, 15, s25
    s_cmp_eq_u32 s36, 0
    s_cselect_b32 s29, s29, s25
    s_add_u32 s30, s29, 1
    s_lshl_b32 s3, s36, 15
    s_lshl_b32 s37, s28, 13
    s_add_u32 s3, s3, s37
    s_add_u32 s3, s3, 98304
    v_lshlrev_b32 v5, 4, v2
    v_add_u32 v5, s3, v5
    """)
    for s in range(8): a(f"ds_read_b128 {vr(Q+s*4,4)}, v5 offset:{s*1024}")
    dma(12, "0", VB[0])
    a(f"v_mov_b32 v{VM}, 0xe0ad78ec\nv_mov_b32 v{VL}, 0")
    for i in range(64): a(f"v_mov_b32 v{O+i}, 0")
    lk = a.label("nok1"); lk2 = a.label("nok1b")
    a(f"s_cmp_lt_u32 s30, 2\ns_cbranch_scc1 {lk}\ns_mov_b32 s32, 32768")
    dma(8, "s32", KB[1])
    a(f"s_waitcnt vmcnt(8)\ns_branch {lk2}\n{lk}:\ns_waitcnt vmcnt(4)\n{lk2}:")
    a("s_mov_b32 s31, 0\ns_waitcnt lgkmcnt(0)\ns_barrier")
    pre(QKI, 0, 0)
    MM(QKI, 0, 0, None, False)
    a("s_cmp_lg_u32 s27, 0\ns_cbranch_scc1 L_k2_g1loop")
    a("L_k2_loop:")
    def k0pf():
        l = a.label("k0pf")
        a(f"s_cmp_lg_u32 s36, 0\ns_cbranch_scc1 {l}")
        dma(8, "0", KB[0])
        a(f"{l}:")
    def mkfill(A, A2, B):
        fill = [[] for _ in range(16)]
        fill[0] = A[8:12]; fill[1] = A[12:] + [A2]
        per = (len(B) + 13) // 14
        for i in range(14): fill[2+i] = B[i*per:(i+1)*per]
        return fill
    for par in range(2):
        top()
        a(f"s_cbranch_scc1 L_k2_tail{par}")
        stamp()
        items = QKI + PVI
        pre(items, par, par ^ 1)
        A, A2, B = SM_parts(SS[par])
        for x in A[:8]: a(x)
        MM(items, par, par ^ 1, mkfill(A, A2, B))
        a("s_add_u32 s31, s31, 1")
        stamp()
    a("s_branch L_k2_loop")
    for par in range(2):
        a(f"L_k2_tail{par}:")
        pre(PVI, par, par ^ 1)
        check()
        k0pf()
        a("s_nop 7")
        mask(SS[par])
        A, A2, B = SM_parts(SS[par])
        for x in A: a(x)
        a(A2)
        for x in B: a(x)
        a("s_nop 1")
        MM(PVI, par, par ^ 1, None, False)
        a("s_barrier\ns_branch L_k2_merge")
    a("L_k2_g1first:")
    pre(QKI, 1, 1)
    for j in range(4): dpiece(8, "s32", KB[0], j, 2)
    a("s_branch L_k2_g1qk0")
    a("L_k2_g1loop:")
    for par in range(2):
        top()
        a(f"s_cbranch_scc1 L_k2_g1tail{par}")
        stamp()
        if par == 0: a("s_cmp_eq_u32 s31, 0\ns_cbranch_scc1 L_k2_g1first")
        items = PVI + QKI
        pre(items, par ^ 1, par ^ 1)
        A, A2, B = SM_parts(SS[par])
        MM(items, par ^ 1, par ^ 1, mkfill(A, A2, B), True, True, f"L_k2_g1qk{par}", A[:8])
        a("s_add_u32 s31, s31, 1")
        stamp()
    a("s_branch L_k2_g1loop")
    for par in range(2):
        a(f"L_k2_g1tail{par}:")
        for j in range(4): dpiece(12, "s39", VB[par], j, 0)
        k0pf()
        if par == 0: a("s_cmp_eq_u32 s31, 0\ns_cbranch_scc1 L_k2_g1t0")
        pre(PVI, par ^ 1, par ^ 1)
        MM(PVI, par ^ 1, par ^ 1, None, False)
        if par == 0: a("L_k2_g1t0:")
        a("s_nop 7")
        mask(SS[par])
        A, A2, B = SM_parts(SS[par])
        for x in A: a(x)
        a(A2)
        for x in B: a(x)
        a("s_waitcnt vmcnt(0)\ns_barrier")
        pre(PVI, par, par ^ 1)
        MM(PVI, par, par ^ 1, None, False)
        if par == 0: a("s_branch L_k2_merge")
    a("L_k2_merge:")
    S = SS[0]
    ob_pre(a)
    a(f"""
    s_nop 15
    v_mov_b32 v25, v{VL}
    s_nop 1
    v_permlane32_swap_b32 v{VL}, v25
    s_nop 1
    v_add_f32 v{VL}, v{VL}, v25
    s_lshl_b32 s3, s26, 13
    s_add_u32 s3, s3, 65536
    v_lshlrev_b32 v5, 4, v2
    v_add_u32 v5, s3, v5
    s_lshl_b32 s3, s26, 9
    v_lshlrev_b32 v6, 2, v2
    v_add_u32 v6, s3, v6
    s_xor_b32 s37, s26, 4
    s_barrier
    ds_write_b32 v6, v{VM} offset:32768
    ds_write_b32 v6, v{VL} offset:33024
    s_cmp_eq_u32 s27, 0
    s_cbranch_scc1 L_k2_m0
    """)
    def merge(g):
        lw = a.label("mw")
        keep = O + (0 if g == 0 else 32); send = O + (32 if g == 0 else 0)
        for q in range(8): a(f"ds_write_b128 v5, {vr(send+q*4,4)} offset:{q*1024}")
        a(f"""
        v_xor_b32 v5, 0x8000, v5
        v_xor_b32 v6, 0x800, v6
        s_waitcnt lgkmcnt(0)
        s_barrier
        ds_read_b32 v24, v6 offset:32768
        ds_read_b32 v25, v6 offset:33024
        """)
        for q in range(8): a(f"ds_read_b128 {vr(S+q*4,4)}, v5 offset:{q*1024}")
        a(f"""
        s_waitcnt lgkmcnt(8)
        v_max_f32 v26, v{VM}, v24
        v_sub_f32 v27, v{VM}, v26
        v_sub_f32 v28, v24, v26
        v_exp_f32 v27, v27
        v_exp_f32 v28, v28
        s_nop 0
        v_mul_f32 v29, v27, v{VL}
        v_fma_f32 v29, v28, v25, v29
        v_rcp_f32 v29, v29
        s_nop 0
        v_mul_f32 v27, v27, v29
        v_mul_f32 v28, v28, v29
        s_lshl_b32 s3, s29, 2
        s_add_u32 s3, s3, s28
        s_mul_i32 s3, s3, {36*8192}
        s_lshl_b32 s37, s24, 13
        s_add_u32 s3, s3, s37
        s_add_u32 s3, s3, {g*4096}
        v_lshlrev_b32 v5, 4, v2
        s_waitcnt lgkmcnt(0)
        s_cmp_eq_u32 s36, 0
        s_cbranch_scc1 {lw}
        s_waitcnt vmcnt(0)
        {lw}:
        """)
        for i in range(32):
            a(f"v_mul_f32 v{keep+i}, v27, v{keep+i}\nv_fma_f32 v{keep+i}, v28, v{S+i}, v{keep+i}")
        for q in range(4):
            for p in range(4):
                a(f"v_cvt_pk_bf16_f32 v{P+q*4+p}, v{keep+q*8+2*p}, v{keep+q*8+2*p+1}")
            a(f"buffer_store_dwordx4 {vr(P+q*4,4)}, v5, s[20:23], s3 offen offset:{q*1024}")
    merge(1)
    a("s_branch L_k2_mdone\nL_k2_m0:")
    merge(0)
    a("L_k2_mdone:")
    ob_post(a)
    if INSTR:
        a(f"""
        s_cmp_lg_u32 s36, 0
        s_cbranch_scc1 L_nodump
        s_lshl_b32 s3, s2, 3
        s_add_u32 s3, s3, s26
        s_lshl_b32 s3, s3, 8
        v_lshlrev_b32 v5, 2, v2
        v_add_u32 v5, s3, v5
        s_add_u32 s64, s4, {hex(100<<20)}
        s_addc_u32 s65, s5, 0
        s_mov_b32 s66, 0x1000000
        s_mov_b32 s67, 0x00020000
        buffer_store_dword v244, v5, s[64:67], 0 offen
        L_nodump:
        """)
    a("""
    s_barrier
    s_add_u32 s36, s36, 1
    s_cmp_lt_u32 s36, 2
    s_cbranch_scc1 L_k2_pass
    """)
    a("L_k2_end:\ns_endpgm")
    return a.text()
```

```python
from common import *
from gemm import *
import k3
import struct, os
def f32bits(x): return struct.unpack("<I", struct.pack("<f", x))[0]
NWG2 = 256
O = 64; SS = [128, 160]; P = 192; Q = 208
FS = [36, 40, 44, 48, 52, 56, 60, 240]
KA = 8; VA = 16
VM = 20; VL = 21; VTHR = 22; VDMA = 23
KB = [0, 32768]; VB = [65536, 98304]
INSTR = os.environ.get("INSTR") == "1"
FORCE = os.environ.get("FORCE") == "1"
SPR = os.environ.get("SPR", "1") == "1"
G0S = int(os.environ.get("G0S", "16"))
HOME = [216+4*i for i in range(10)] + [48+4*i for i in range(4)] + [32, 36]
def qpro_setup(a, sfx):
    a(f"""
    s_load_dwordx2 s[4:5], s[0:1], 104
    s_load_dwordx2 s[24:25], s[0:1], 0
    s_load_dwordx2 s[28:29], s[0:1], 16
    s_load_dwordx2 s[6:7], s[0:1], 56
    s_load_dwordx2 s[8:9], s[0:1], 64
    s_and_b32 s40, s2, 7
    s_lshl_b32 s40, s40, 2
    s_bfe_u32 s3, s2, 0x20003
    s_add_u32 s40, s40, s3
    s_lshr_b32 s41, s2, 5
    v_lshrrev_b32 v1, 6, v0
    s_nop 0
    v_readfirstlane_b32 s42, v1
    v_and_b32 v2, 63, v0
    s_lshr_b32 s48, s42, 2
    s_and_b32 s49, s42, 3
    s_sub_u32 s46, 15, s41
    s_cmp_eq_u32 s48, 0
    s_cselect_b32 s46, s46, s41
    s_lshl_b32 s46, s46, 7
    s_lshl_b32 s47, s49, 5
    s_add_u32 s43, s46, s47
    s_lshl_b32 s47, s42, 5
    s_waitcnt lgkmcnt(0)
    s_mov_b32 s26, 0x200000
    s_mov_b32 s27, 0x00020000
    s_mov_b32 s30, 0x180000
    s_movk_i32 s44, 3072
    s_cmp_eq_u32 s48, 0
    s_cselect_b32 s28, s28, s6
    s_cselect_b32 s29, s29, s7
    s_cselect_b32 s30, 0x400000, s30
    s_cselect_b32 s44, 8192, s44
    s_mov_b32 s31, 0x00020000
    s_mov_b32 s32, s4
    s_mov_b32 s33, s5
    s_mov_b32 s34, 0x10000000
    s_mov_b32 s35, 0x00020000
    s_lshl_b32 s52, s44, 5
    """)
    gemm_setup(a, "s43", "s47")
    for b in range(4):
        a(f"v_xor_b32 v5, {b}, v3\nv_lshl_add_u32 v{RW+b}, v5, 6, v4")
    a(f"""
    v_lshrrev_b32 v5, 5, v2
    v_lshl_add_u32 v5, v5, 3, v3
    v_lshlrev_b32 v5, 7, v5
    v_and_b32 v6, 3, v2
    v_lshl_add_u32 v5, v6, 3, v5
    v_bfe_u32 v6, v2, 4, 1
    v_lshl_add_u32 v5, v6, 5, v5
    v_add_u32 v5, {WBASE + 8192}, v5
    v_lshrrev_b32 v6, 1, v3
    v_lshl_add_u32 v{RW+4}, v6, 6, v5
    v_xor_b32 v{RW+5}, 64, v{RW+4}
    s_cmp_eq_u32 s48, 0
    s_cbranch_scc1 L_k2_wq{sfx}
    v_lshrrev_b32 v4, 3, v2
    v_bfe_u32 v6, v2, 4, 1
    v_lshlrev_b32 v6, 2, v6
    v_and_b32 v5, 7, v2
    v_xor_b32 v5, v5, v6
    v_lshrrev_b32 v6, 1, v5
    v_min_u32 v6, 2, v6
    v_lshlrev_b32 v6, 10, v6
    v_and_b32 v7, 1, v5
    v_lshl_add_u32 v6, v7, 4, v6
    s_lshl_b32 s46, s40, 5
    v_add_u32 v5, s46, v6
    s_lshl_b32 s46, s49, 3
    v_add_u32 v4, s46, v4
    v_mul_lo_u32 v6, v4, s44
    v_add_u32 v{VOW}, v6, v5
    v_mov_b32 v{VOW+1}, v{VOW}
    s_lshl_b32 s54, s49, 10
    s_add_u32 s54, s54, 8192
    s_branch L_k2_wdone{sfx}
    L_k2_wq{sfx}:
    v_lshrrev_b32 v4, 4, v2
    v_and_b32 v5, 15, v2
    v_lshlrev_b32 v6, 2, v4
    v_xor_b32 v5, v5, v6
    v_lshlrev_b32 v5, 4, v5
    s_lshl_b32 s46, s40, 8
    v_add_u32 v5, s46, v5
    s_lshl_b32 s46, s49, 3
    v_add_u32 v4, s46, v4
    """)
    for i in range(2):
        a(f"v_add_u32 v6, {4*i}, v4\nv_mul_lo_u32 v6, v6, s44\nv_add_u32 v{VOW+i}, v6, v5")
    a(f"L_k2_wdone{sfx}:")
    srd(a, 8, "s8", "s9", 16384)
    a("""
    v_and_b32 v5, 15, v2
    v_lshlrev_b32 v5, 1, v5
    v_lshrrev_b32 v4, 5, v2
    v_lshl_add_u32 v5, v4, 7, v5
    s_lshl_b32 s3, s40, 9
    v_add_u32 v5, s3, v5
    """)
    for j in range(8):
        a(f"buffer_load_ushort v{40+j}, v5, s[8:11], 0 offen offset:{((j//4)*8 + j%4)*32}")
def qpro(a):
    ACC = 64; XF = 160; WF = 168
    def kvst(kk, s, n):
        if n == 5 and (s == 0 if SPR else kk < 8):
            j = kk if SPR else kk*2 + s
            a(f"buffer_store_dwordx4 {vr(HOME[j],4)}, v{14 + (j%4)//2}, s[32:35], s90 offen offset:{(j%2)*1024}")
            if j % 4 == 3: a("s_add_u32 s90, s90, 8192")
    if os.environ.get("XPF", "0") == "1": a("""
    s_lshl_b32 s46, s43, 10
    s_and_b32 s47, s40, 3
    s_lshl_b32 s47, s47, 13
    s_add_u32 s46, s46, s47
    v_lshlrev_b32 v244, 7, v2
    buffer_load_dword v244, v244, s[24:27], s46 offen
    s_cmp_ge_u32 s42, 2
    s_cbranch_scc1 L_k2_nxpf
    s_lshl_b32 s46, s41, 19
    s_lshl_b32 s47, s42, 18
    s_add_u32 s46, s46, s47
    s_lshl_b32 s47, s40, 8
    s_add_u32 s46, s46, s47
    v_lshrrev_b32 v245, 1, v2
    v_lshlrev_b32 v245, 13, v245
    v_and_b32 v246, 1, v2
    v_lshl_add_u32 v245, v246, 7, v245
    buffer_load_dword v245, v245, s[28:31], s46 offen
    L_k2_nxpf:
    """)
    gemm_core(a, 1, [(0,0),(1,0),(2,0),(3,0),(4,0,2048,512),(5,0,2048,512)], ACC, XF, WF, False, kvst, True, (lambda kk, s: 1 if (kk >= 0 and s == 0) else 0) if SPR else (lambda kk, s: 1 if 0 <= kk < 8 else 0), xrot=2)
    a(f"""
    v_and_b32 v3, 31, v2
    v_lshrrev_b32 v4, 5, v2
    s_lshl_b32 s46, s40, 3
    s_add_u32 s46, s46, s41
    s_lshl_b32 s46, s46, 16
    s_lshl_b32 s47, s42, 13
    s_add_u32 s46, s46, s47
    s_add_u32 s91, s46, {hex(WS_Q)}
    v_lshlrev_b32 v5, 4, v2
    v_add_u32 v14, 4096, v5
    s_barrier
    """)
    for n in range(8, 11):
        nb, hf = n // 2, n % 2
        b = ACC + nb*16 + hf*8; t = XF + (n-8)*4
        for p in range(4): a(f"v_cvt_pk_bf16_f32 v{t+p}, v{b+2*p}, v{b+2*p+1}")
    W = 28; TK = 128; TQ = 144; AF = 48; BF = 52; KACC = 216
    a("v_cmp_lt_u32 vcc, 15, v3\nv_mov_b32 v6, 0\nv_mov_b32 v7, 0x80008000\ns_nop 0\nv_cndmask_b32 v6, v6, v7, vcc")
    for p in range(4):
        a(f"v_lshl_or_b32 v{W+p}, v{41+2*p}, 16, v{40+2*p}\nv_xor_b32 v{W+p}, v{W+p}, v6")
    a(f"""
    s_nop 1
    v_mfma_f32_32x32x16_bf16 {vr(TK,16)}, {vr(W,4)}, {vr(XF+4,4)}, 0
    """)
    for n in range(8):
        nb, hf = n // 2, n % 2
        b = ACC + nb*16 + hf*8; t = Q + n*4
        for p in range(4): a(f"v_cvt_pk_bf16_f32 v{t+p}, v{b+2*p}, v{b+2*p+1}")
        a(f"buffer_store_dwordx4 {vr(t,4)}, {'v5' if n < 4 else 'v14'}, s[32:35], s91 offen offset:{(n%4)*1024}")
    a(f"""
    s_mov_b32 s56, s40
    s_mov_b32 s40, {k3.LOG2E}
    s_lshl_b32 s28, s42, 12
    s_add_u32 s28, s28, 32768
    v_lshlrev_b32 v33, 6, v3
    v_add_u32 v33, s28, v33
    v_lshl_add_u32 v34, v4, 3, v33
    v_lshl_add_u32 v33, v4, 4, v33
    v_bfe_u32 v7, v2, 2, 2
    v_lshl_add_u32 v6, v4, 3, v7
    v_lshlrev_b32 v6, 6, v6
    v_and_b32 v7, 3, v2
    v_lshl_add_u32 v6, v7, 3, v6
    v_bfe_u32 v7, v2, 4, 1
    v_lshl_add_u32 v6, v7, 5, v6
    v_add_u32 v35, s28, v6
    v_mov_b32 v40, 0
    v_mov_b32 v41, 0
    v_mov_b32 v42, 0
    v_mov_b32 v43, 0
    v_mov_b32 v7, 0x3f80
    v_cmp_eq_u32 vcc, 0, v4
    s_nop 1
    v_cndmask_b32 v40, v40, v7, vcc
    ds_write_b128 v33, v[40:43] offset:{2048+32}
    ds_write_b128 v33, {vr(XF+8,4)} offset:2048
    """)
    k3.rnd16(a, TK, 44)
    k3.softmax16(a, TK, 44)
    for p in range(8): a(f"v_cvt_pk_bf16_f32 v{64+p}, v{TK+2*p}, v{TK+2*p+1}")
    for q in range(4): a(f"ds_write_b64 v34, {vr(64+2*q,2)} offset:{q*16}")
    a("s_waitcnt lgkmcnt(0)")
    for ks in range(2):
        a(f"""
        ds_read_b64_tr_b16 {vr(AF+ks*8,2)}, v35 offset:{ks*1024}
        ds_read_b64_tr_b16 {vr(AF+ks*8+2,2)}, v35 offset:{ks*1024+256}
        ds_read_b64_tr_b16 {vr(BF+ks*8,2)}, v35 offset:{2048+ks*1024}
        ds_read_b64_tr_b16 {vr(BF+ks*8+2,2)}, v35 offset:{2048+ks*1024+256}
        """)
    a("s_waitcnt lgkmcnt(0)")
    for ks in range(2):
        a(f"v_mfma_f32_32x32x16_bf16 {vr(KACC,16)}, {vr(AF+ks*8,4)}, {vr(BF+ks*8,4)}, {'0' if ks==0 else vr(KACC,16)}")
    a(f"""
    s_lshl_b32 s46, s56, 11
    s_add_u32 s46, s46, s43
    v_add_u32 v6, s46, v3
    v_lshlrev_b32 v6, 5, v6
    v_lshl_add_u32 v6, v4, 4, v6
    s_mov_b32 s47, {hex(WS_QKVB)}
    buffer_store_dwordx4 {vr(XF,4)}, v6, s[32:35], s47 offen
    s_nop 7
    s_nop 7
    v_lshlrev_b32 v5, 4, v2
    v_add_u32 v6, s28, v5
    """)
    for q in range(4): a(f"ds_write_b128 v6, {vr(KACC+q*4,4)} offset:{32768+q*1024}")
    a(f"""
    s_waitcnt lgkmcnt(0)
    s_barrier
    s_cmp_ge_u32 s42, 4
    s_cbranch_scc1 L_k2_nored
    s_lshl_b32 s3, s42, 10
    v_add_u32 v5, s3, v5
    v_add_u32 v7, 0x8000, v5
    """)
    for w in range(8): a(f"ds_read_b128 {vr(64+w*4,4)}, v7 offset:{32768+w*4096}")
    a("s_waitcnt lgkmcnt(0)")
    for i in range(4):
        a(f"""v_add_f32 v{64+i}, v{64+i}, v{68+i}
        v_add_f32 v{72+i}, v{72+i}, v{76+i}
        v_add_f32 v{80+i}, v{80+i}, v{84+i}
        v_add_f32 v{88+i}, v{88+i}, v{92+i}
        v_add_f32 v{64+i}, v{64+i}, v{72+i}
        v_add_f32 v{80+i}, v{80+i}, v{88+i}
        v_add_f32 v{64+i}, v{64+i}, v{80+i}""")
    a(f"""
    s_lshl_b32 s3, s56, 3
    s_add_u32 s3, s3, s41
    s_lshl_b32 s3, s3, 12
    s_add_u32 s3, s3, {hex(WS_KVP)}
    buffer_store_dwordx4 v[64:67], v5, s[32:35], s3 offen
    L_k2_nored:
    s_barrier
    """)
PART = 160; QB = 176; WPH = 180; GX = 208; GW = 212
def ob_qload(a):
    a(f"""
    s_lshl_b32 s3, s24, 11
    s_add_u32 s3, s3, s82
    v_add_u32 v6, s3, v3
    v_lshlrev_b32 v6, 5, v6
    v_lshl_add_u32 v6, v4, 4, v6
    s_mov_b32 s3, {hex(WS_QKVB)}
    buffer_load_dwordx4 {vr(QB,4)}, v6, s[64:67], s3 offen
    """)
def ob_tok(a, j):
    a(f"""
    s_sub_u32 s82, 15, {j}
    s_cmp_eq_u32 s27, 0
    s_cselect_b32 s82, s82, {j}
    s_lshl_b32 s82, s82, 7
    s_lshl_b32 s3, s28, 5
    s_add_u32 s82, s82, s3
    """)
def ob_pre(a):
    a(f"""
    v_and_b32 v3, 31, v2
    v_lshrrev_b32 v4, 5, v2
    s_lshl_b32 s83, s2, 3
    s_add_u32 s83, s83, s26
    s_lshl_b32 s3, s83, 10
    v_lshlrev_b32 v6, 4, v2
    buffer_load_dwordx4 {vr(GX,4)}, v6, s[72:75], s3 offen
    buffer_load_dwordx4 {vr(GW,4)}, v6, s[76:79], 0 offen
    s_bitcmp0_b32 s80, 0
    s_cbranch_scc1 L_k2_nopf
    """)
    ob_tok(a, "s25")
    ob_qload(a)
    a("""
    v_and_b32 v5, 15, v3
    v_lshlrev_b32 v5, 1, v5
    v_lshl_add_u32 v5, v4, 7, v5
    s_lshl_b32 s3, s24, 9
    v_add_u32 v5, s3, v5
    """)
    for j in range(8):
        a(f"buffer_load_ushort v{WPH+j}, v5, s[68:71], 0 offen offset:{((j//4)*8 + j%4)*32}")
    a(f"""
    s_lshl_b32 s3, s24, 15
    s_lshl_b32 s37, s27, 14
    s_add_u32 s3, s3, s37
    s_lshl_b32 s37, s28, 10
    s_add_u32 s3, s3, s37
    s_add_u32 s3, s3, {hex(WS_KVP)}
    v_lshlrev_b32 v5, 4, v2
    v_cmp_gt_u32 vcc, 17, v3
    s_nop 1
    s_mov_b64 exec, vcc
    """)
    for c in range(4):
        a(f"buffer_load_dwordx4 {vr(PART+c*4,4)}, v5, s[64:67], s3 offen\ns_add_u32 s3, s3, 4096")
    a("s_mov_b64 exec, -1\nL_k2_nopf:")
def ob_post(a):
    W = 36; T = 40; PF = 48; KVF = 56; D2 = 128; EX = 64
    a(f"""
    s_mov_b32 s40, {k3.LOG2E}
    s_bitcmp0_b32 s80, 0
    s_cbranch_scc1 L_k2_gate
    """)
    for r in range(4):
        a(f"""v_add_f32 v{PART+r}, v{PART+r}, v{PART+4+r}
        v_add_f32 v{PART+8+r}, v{PART+8+r}, v{PART+12+r}
        v_add_f32 v{PART+r}, v{PART+r}, v{PART+8+r}""")
    a(f"""
    v_lshlrev_b32 v5, 4, v2
    s_lshl_b32 s3, s26, 10
    v_add_u32 v6, s3, v5
    v_add_u32 v6, 0x10000, v6
    ds_write_b128 v6, {vr(PART,4)}
    v_cmp_lt_u32 vcc, 15, v3
    v_mov_b32 v6, 0
    v_mov_b32 v7, 0x80008000
    s_nop 0
    v_cndmask_b32 v6, v6, v7, vcc
    """)
    for p in range(4):
        a(f"v_lshl_or_b32 v{W+p}, v{WPH+1+2*p}, 16, v{WPH+2*p}\nv_xor_b32 v{W+p}, v{W+p}, v6")
    a("v_add_u32 v7, 0x10000, v5\ns_waitcnt lgkmcnt(0)\ns_barrier")
    for w in range(8): a(f"ds_read_b128 {vr(EX+w*4,4)}, v7 offset:{w*1024}")
    a("L_k2_obloop:")
    a(f"""
    v_mfma_f32_32x32x16_bf16 {vr(D2,16)}, {vr(W,4)}, {vr(QB,4)}, 0
    s_lshr_b32 s3, s82, 5
    s_mul_i32 s3, s3, {36*8192}
    s_lshl_b32 s37, s24, 10
    s_add_u32 s3, s3, s37
    s_add_u32 s84, s3, {32*8192}
    s_waitcnt lgkmcnt(0)
    """)
    for r in range(16): a(f"v_add_f32 v{EX+32+r}, v{EX+r}, v{EX+16+r}")
    for p in range(8): a(f"v_cvt_pk_bf16_f32 v{KVF+p}, v{EX+32+2*p}, v{EX+33+2*p}")
    k3.rnd16(a, D2, T)
    k3.softmax16(a, D2, T)
    for p in range(8): a(f"v_cvt_pk_bf16_f32 v{PF+p}, v{D2+2*p}, v{D2+2*p+1}")
    a(f"""
    s_nop 1
    v_mfma_f32_32x32x16_bf16 {vr(D2,16)}, {vr(KVF,4)}, {vr(PF,4)}, 0
    v_mfma_f32_32x32x16_bf16 {vr(D2,16)}, {vr(KVF+4,4)}, {vr(PF+4,4)}, {vr(D2,16)}
    s_nop 15
    s_nop 3
    v_mov_b32 v{T}, v{D2+8}
    v_mov_b32 v{T+1}, v{D2+8}
    s_nop 1
    v_permlane32_swap_b32 v{T}, v{T+1}
    s_nop 1
    v_cvt_pk_bf16_f32 v{T}, v{T}, v{T}
    v_and_b32 v{T}, 0xffff0000, v{T}
    v_add_f32 v{T}, 0x358637bd, v{T}
    v_cvt_pk_bf16_f32 v{T}, v{T}, v{T}
    v_and_b32 v{T}, 0xffff0000, v{T}
    v_rcp_f32 v{T}, v{T}
    """)
    for i in range(4):
        a(f"v_cvt_pk_bf16_f32 v{T+1}, v{D2+2*i}, v{D2+2*i+1}\nv_lshlrev_b32 v{D2+2*i}, 16, v{T+1}\nv_and_b32 v{D2+2*i+1}, 0xffff0000, v{T+1}")
    for i in range(8): a(f"v_mul_f32 v{D2+i}, v{D2+i}, v{T}")
    for p in range(4): a(f"v_cvt_pk_bf16_f32 v{T+4+p}, v{D2+2*p}, v{D2+2*p+1}")
    a(f"""
    buffer_store_dwordx4 {vr(T+4,4)}, v5, s[20:23], s84 offen
    s_lshr_b32 s3, s80, 8
    s_cmp_eq_u32 s3, 0
    s_cbranch_scc1 L_k2_gate
    s_ff1_i32_b32 s85, s3
    s_add_u32 s3, s85, 8
    s_bitset0_b32 s80, s3
    """)
    ob_tok(a, "s85")
    ob_qload(a)
    a("s_waitcnt vmcnt(0)\ns_branch L_k2_obloop\nL_k2_gate:\nv_mov_b32 v24, 0\nv_mov_b32 v25, 0")
    for i in range(4):
        a(f"""
        v_lshlrev_b32 v26, 16, v{GX+i}
        v_lshlrev_b32 v27, 16, v{GW+i}
        v_fmac_f32 v24, v26, v27
        v_and_b32 v26, 0xffff0000, v{GX+i}
        v_and_b32 v27, 0xffff0000, v{GW+i}
        v_fmac_f32 v25, v26, v27
        """)
    a("v_add_f32 v24, v24, v25")
    for off in (0x041F, 0x081F, 0x101F, 0x201F, 0x401F):
        a(f"ds_swizzle_b32 v25, v24 offset:{hex(off)}\ns_waitcnt lgkmcnt(0)\nv_add_f32 v24, v24, v25")
    a(f"""
    v_mov_b32 v25, v24
    s_nop 1
    v_permlane32_swap_b32 v24, v25
    s_nop 1
    v_add_f32 v24, v24, v25
    v_cvt_pk_bf16_f32 v24, v24, v24
    v_and_b32 v24, 0xffff0000, v24
    v_mul_f32 v24, s40, v24
    v_sub_f32 v24, 0, v24
    v_exp_f32 v24, v24
    s_nop 0
    v_add_f32 v24, 1.0, v24
    v_rcp_f32 v24, v24
    s_nop 0
    v_cvt_pk_bf16_f32 v24, v24, v24
    v_and_b32 v24, 0xffff0000, v24
    s_lshl_b32 s3, s83, 2
    s_add_u32 s3, s3, {hex(WS_G)}
    s_mov_b64 exec, 1
    buffer_store_dword v24, v247, s[64:67], s3 offen
    s_mov_b64 exec, -1
    L_k2_obskip:
    """)
def gen_k2():
    a = Asm()
    def stamp():
        if INSTR: a("s_memtime s[60:61]\ns_waitcnt lgkmcnt(0)\ns_and_b32 s59, s59, 63\ns_mov_b32 m0, s59\ns_nop 3\nv_writelane_b32 v244, s60, m0\ns_add_u32 s59, s59, 1")
    a(f"""
    s_cmp_ge_u32 s2, {NWG2}
    s_cbranch_scc1 L_k2_end
    """)
    a(f"""
    s_load_dwordx2 s[4:5], s[0:1], 104
    s_load_dwordx2 s[72:73], s[0:1], 0
    s_load_dwordx2 s[68:69], s[0:1], 64
    s_load_dwordx2 s[76:77], s[0:1], 80
    s_load_dwordx2 s[86:87], s[0:1], 40
    s_load_dwordx2 s[88:89], s[0:1], 72
    s_and_b32 s24, s2, 7
    s_lshl_b32 s24, s24, 2
    s_bfe_u32 s3, s2, 0x20003
    s_add_u32 s24, s24, s3
    s_lshr_b32 s25, s2, 5
    v_lshrrev_b32 v1, 6, v0
    s_nop 0
    v_readfirstlane_b32 s26, v1
    v_and_b32 v2, 63, v0
    s_lshr_b32 s27, s26, 2
    s_and_b32 s28, s26, 3
    s_lshl_b32 s34, s26, 12
    s_mov_b32 s35, {hex(f32bits(128**-0.5 * 1.4426950408889634))}
    s_lshl_b32 s3, s24, 19
    s_waitcnt lgkmcnt(0)
    s_add_u32 s6, s4, s3
    s_addc_u32 s7, s5, 0
    """)
    srd_ws(a, 8, 6, WS_K, 0x80000)
    srd_ws(a, 12, 6, WS_V, 0x80000)
    srd_ws(a, 16, 6, WS_Q, 0x80000)
    srd_ws(a, 20, 4, WS_CTXO, 2048*CTX_PITCH)
    srd(a, 64, "s4", "s5", 0x10000000)
    a(f"""
    s_movk_i32 s70, 16384
    s_mov_b32 s71, 0x00020000
    s_mov_b32 s74, 0x200000
    s_mov_b32 s75, 0x00020000
    s_movk_i32 s78, 1024
    s_mov_b32 s79, 0x00020000
    s_lshl_b32 s81, s24, 8
    s_add_u32 s81, s81, {hex(WS_CNT)}
    s_mov_b32 s80, 1
    v_mov_b32 v245, 1
    v_mov_b32 v247, 0
    s_add_u32 s3, s25, 8
    s_lshl_b32 s3, 1, s3
    v_mov_b32 v246, s3
    v_and_b32 v3, 31, v2
    v_lshrrev_b32 v4, 5, v2
    v_lshlrev_b32 v{VDMA}, 4, v2
    v_add_u32 v{VDMA}, s34, v{VDMA}
    s_lshl_b32 s3, s27, 14
    v_lshlrev_b32 v5, 4, v2
    v_add_u32 v{KA}, s3, v5
    v_add_u32 v{VA}, 0x10000, v{KA}
    s_lshl_b32 s3, s28, 5
    s_lshl_b32 s37, s27, 6
    s_sub_u32 s3, s3, s37
    v_lshlrev_b32 v5, 2, v4
    v_sub_u32 v5, v3, v5
    v_add_u32 v{VTHR}, s3, v5
    s_mov_b32 s36, 0
    s_mov_b32 s59, 0
    """)
    if INSTR: a("v_mov_b32 v244, 0")

    def dma(srdreg, soff, buf):
        a(f"s_add_u32 m0, s34, {buf}\ns_nop 0")
        for j in range(4):
            a(f"buffer_load_dwordx4 v{VDMA}, s[{srdreg}:{srdreg+3}], {soff} offen offset:{j*1024} lds")
    def dpiece(srdreg, soff, buf, j, need):
        if need:
            l = a.label("nd")
            a(f"s_cmp_lt_u32 s38, {need}\ns_cbranch_scc1 {l}")
        a(f"s_add_u32 m0, s34, {buf}\ns_nop 0\nbuffer_load_dwordx4 v{VDMA}, s[{srdreg}:{srdreg+3}], {soff} offen offset:{j*1024} lds")
        if need: a(f"{l}:")
    def rd_item(it, slot, parv, park):
        k, s, b = it
        if k == "pv": a(f"ds_read_b128 {vr(FS[slot],4)}, v{VA} offset:{VB[parv]-65536+s*4096+b*1024}")
        else: a(f"ds_read_b128 {vr(FS[slot],4)}, v{KA} offset:{KB[park]+b*8192+s*1024}")
    QKI = [("qk", s, kb) for s in range(8) for kb in range(2)]
    PVI = [("pv", s, db) for s in range(4) for db in range(4)]
    def pre(items, parv, park):
        for i in range(8): rd_item(items[i], i, parv, park)
    def MM(items, parv, park, fill=None, ld=True, g1=False, mid=None, pre_mid=None):
        n = len(items); SQ = SS[park]; qi = 0
        for i, it in enumerate(items):
            k, s, b = it
            if mid is not None and i == 16:
                a(f"{mid}:")
                for x in pre_mid: a(x)
            a(f"s_waitcnt lgkmcnt({min(7, n-1-i)})")
            if k == "pv":
                if fill is not None and s == 0 and b == 0 and not g1: a("s_nop 1")
                acc = vr(O+b*16, 16)
                a(f"v_mfma_f32_32x32x16_bf16 {acc}, {vr(FS[i%8],4)}, {vr(P+s*4,4)}, {acc}")
            else:
                acc = vr(SQ+b*16, 16)
                a(f"v_mfma_f32_32x32x16_bf16 {acc}, {vr(FS[i%8],4)}, {vr(Q+s*4,4)}, {'0' if s==0 else acc}")
            if i + 8 < n: rd_item(items[i+8], i % 8, parv, park)
            if k == "qk" and fill is not None:
                for x in fill[qi]: a(x)
                qi += 1
            i0 = i - (G0S if not g1 else 0)
            if ld and 0 <= i0 < 16 and i0 % 2 == 1:
                j = i0 // 2
                if j < 4: dpiece(12, "s39" if g1 else "s33", VB[parv ^ 1], j, 0)
                else: dpiece(8, "s32", KB[park ^ 1], j - 4, 2)
    def SM_parts(S):
        lr = a.label("noresc")
        A = [f"v_max3_f32 v24, v{S}, v{S+1}, v{S+2}", f"v_max3_f32 v25, v{S+16}, v{S+17}, v{S+18}"]
        for i in range(3, 15, 2):
            A += [f"v_max3_f32 v24, v24, v{S+i}, v{S+i+1}", f"v_max3_f32 v25, v25, v{S+16+i}, v{S+16+i+1}"]
        A2 = f"""v_max3_f32 v24, v24, v{S+15}, v25
        v_max_f32 v24, v24, v{S+31}
        v_mov_b32 v25, v24
        s_nop 1
        v_permlane32_swap_b32 v24, v25
        s_nop 1
        v_max_f32 v24, v24, v25
        v_mul_f32 v24, s35, v24
        v_max_f32 v25, v{VM}, v24
        v_sub_f32 v26, v25, v{VM}
        v_cmp_lt_f32 vcc, 0x41000000, v26
        s_cbranch_vccz {lr}
        v_sub_f32 v26, 0, v26
        v_exp_f32 v26, v26
        v_mov_b32 v{VM}, v25
        s_nop 0
        v_mov_b32 v27, v26
        v_mul_f32 v{VL}, v{VL}, v26
        """ + "\n".join(f"v_pk_mul_f32 {vr(O+i,2)}, {vr(O+i,2)}, v[26:27]" for i in range(0, 64, 2)) + f"\n{lr}:\nv_sub_f32 v28, 0, v{VM}"
        B = []
        for p in range(17):
            if p < 16:
                B += [f"v_fma_f32 v{S+2*p}, v{S+2*p}, s35, v28", f"v_fma_f32 v{S+2*p+1}, v{S+2*p+1}, s35, v28"]
            if p >= 1:
                q = p - 1
                B += [f"v_exp_f32 v{S+2*q}, v{S+2*q}", f"v_exp_f32 v{S+2*q+1}, v{S+2*q+1}"]
            if p >= 2:
                q = p - 2
                B += [f"v_add_f32 v{VL}, v{VL}, v{S+2*q}", f"v_add_f32 v29, v29, v{S+2*q+1}" if q else f"v_mov_b32 v29, v{S+1}",
                      f"v_cvt_pk_bf16_f32 v{P+q}, v{S+2*q}, v{S+2*q+1}"]
        B += ["s_nop 0", f"v_add_f32 v{VL}, v{VL}, v{S+30}", f"v_add_f32 v29, v29, v{S+31}", f"v_cvt_pk_bf16_f32 v{P+15}, v{S+30}, v{S+31}", f"v_add_f32 v{VL}, v{VL}, v29"]
        return A, A2, B
    def mask(S):
        a("v_mov_b32 v24, 0xf149f2ca")
        for kb in range(2):
            for r in range(16):
                c = kb*32 + (r//4)*8 + r % 4
                a(f"v_cmp_gt_i32 vcc, {c}, v{VTHR}\ns_nop 1\nv_cndmask_b32 v{S+kb*16+r}, v{S+kb*16+r}, v24, vcc")
    def top():
        a(f"""
        s_waitcnt vmcnt(0)
        s_barrier
        s_add_u32 s3, s31, 1
        s_lshl_b32 s33, s3, 15
        s_sub_u32 s38, s30, s3
        s_add_u32 s3, s31, 2
        s_lshl_b32 s32, s3, 15
        s_lshl_b32 s39, s31, 15
        s_cmp_eq_u32 s38, 0
        """)
    def publish(force_sel):
        l = a.label("pub")
        a(f"s_or_b32 s3, s26, s36\ns_cmp_lg_u32 s3, 0\ns_cbranch_scc1 {l}")
        if FORCE: a(f"s_cmp_{'eq' if force_sel == 0 else 'lg'}_u32 s25, 0\ns_cbranch_scc1 {l}")
        a(f"s_mov_b64 exec, 1\nbuffer_atomic_add v245, v247, s[64:67], s81 offen sc0\ns_mov_b64 exec, -1\n{l}:")
    def check():
        lp = a.label("wpf")
        if os.environ.get("NOPF") != "1": a(f"""
        s_cmp_lg_u32 s36, 0
        s_cbranch_scc1 {lp}
        s_lshl_b32 s83, s2, 2
        s_add_u32 s83, s83, s28
        s_cmp_ge_u32 s83, 576
        s_cbranch_scc1 {lp}
        s_sub_u32 s3, s83, 512
        s_mov_b32 s94, 0x400000
        s_cmp_lt_u32 s83, 512
        s_cselect_b32 s92, s86, s88
        s_cselect_b32 s93, s87, s89
        s_cselect_b32 s94, s94, 0x80000
        s_cselect_b32 s3, s83, s3
        s_mov_b32 s95, 0x00020000
        s_lshl_b32 s3, s3, 13
        v_lshlrev_b32 v244, 7, v2
        buffer_load_dword v244, v244, s[92:95], s3 offen
        {lp}:
        """)
    ob_pre(a)
    a(f"""
    s_lshl_b32 s3, s24, 3
    s_add_u32 s3, s3, s25
    s_lshl_b32 s3, s3, 16
    s_lshl_b32 s37, s26, 12
    s_add_u32 s3, s3, s37
    s_add_u32 s3, s3, {hex(WS_Q)}
    s_lshl_b32 s37, s26, 13
    s_add_u32 s37, s37, 98304
    """)
    for hh in range(2):
        a(f"s_add_u32 m0, s37, {hh*4096}\ns_nop 0")
        for j in range(4): a(f"buffer_load_dwordx4 v{VDMA}, s[64:67], s3 offen offset:{j*1024} lds")
        a("s_add_u32 s3, s3, 4096")
    dma(8, "0", KB[0])
    a("s_waitcnt vmcnt(12)")
    ob_post(a)
    a("s_waitcnt vmcnt(6)\ns_barrier")
    a("L_k2_pass:")
    a(f"""
    s_sub_u32 s29, 15, s25
    s_cmp_eq_u32 s36, 0
    s_cselect_b32 s29, s29, s25
    s_add_u32 s30, s29, 1
    s_lshl_b32 s3, s36, 15
    s_lshl_b32 s37, s28, 13
    s_add_u32 s3, s3, s37
    s_add_u32 s3, s3, 98304
    v_lshlrev_b32 v5, 4, v2
    v_add_u32 v5, s3, v5
    """)
    for s in range(8): a(f"ds_read_b128 {vr(Q+s*4,4)}, v5 offset:{s*1024}")
    dma(12, "0", VB[0])
    a(f"v_mov_b32 v{VM}, 0xe0ad78ec\nv_mov_b32 v{VL}, 0")
    for i in range(64): a(f"v_mov_b32 v{O+i}, 0")
    lk = a.label("nok1"); lk2 = a.label("nok1b")
    a(f"s_cmp_lt_u32 s30, 2\ns_cbranch_scc1 {lk}\ns_mov_b32 s32, 32768")
    dma(8, "s32", KB[1])
    a(f"s_waitcnt vmcnt(8)\ns_branch {lk2}\n{lk}:\ns_waitcnt vmcnt(4)\n{lk2}:")
    a("s_mov_b32 s31, 0\ns_waitcnt lgkmcnt(0)\ns_barrier")
    pre(QKI, 0, 0)
    MM(QKI, 0, 0, None, False)
    a("s_cmp_lg_u32 s27, 0\ns_cbranch_scc1 L_k2_g1loop")
    a("L_k2_loop:")
    def k0pf():
        l = a.label("k0pf")
        a(f"s_cmp_lg_u32 s36, 0\ns_cbranch_scc1 {l}")
        dma(8, "0", KB[0])
        a(f"{l}:")
    def mkfill(A, A2, B):
        fill = [[] for _ in range(16)]
        fill[0] = A[8:12]; fill[1] = A[12:] + [A2]
        per = (len(B) + 13) // 14
        for i in range(14): fill[2+i] = B[i*per:(i+1)*per]
        return fill
    for par in range(2):
        top()
        a(f"s_cbranch_scc1 L_k2_tail{par}")
        stamp()
        items = QKI + PVI
        pre(items, par, par ^ 1)
        A, A2, B = SM_parts(SS[par])
        for x in A[:8]: a(x)
        MM(items, par, par ^ 1, mkfill(A, A2, B))
        a("s_add_u32 s31, s31, 1")
        stamp()
    a("s_branch L_k2_loop")
    for par in range(2):
        a(f"L_k2_tail{par}:")
        pre(PVI, par, par ^ 1)
        check()
        k0pf()
        a("s_nop 7")
        mask(SS[par])
        A, A2, B = SM_parts(SS[par])
        for x in A: a(x)
        a(A2)
        for x in B: a(x)
        a("s_nop 1")
        MM(PVI, par, par ^ 1, None, False)
        a("s_barrier\ns_branch L_k2_merge")
    a("L_k2_g1first:")
    pre(QKI, 1, 1)
    for j in range(4): dpiece(8, "s32", KB[0], j, 2)
    a("s_branch L_k2_g1qk0")
    a("L_k2_g1loop:")
    for par in range(2):
        top()
        a(f"s_cbranch_scc1 L_k2_g1tail{par}")
        stamp()
        if par == 0: a("s_cmp_eq_u32 s31, 0\ns_cbranch_scc1 L_k2_g1first")
        items = PVI + QKI
        pre(items, par ^ 1, par ^ 1)
        A, A2, B = SM_parts(SS[par])
        MM(items, par ^ 1, par ^ 1, mkfill(A, A2, B), True, True, f"L_k2_g1qk{par}", A[:8])
        a("s_add_u32 s31, s31, 1")
        stamp()
    a("s_branch L_k2_g1loop")
    for par in range(2):
        a(f"L_k2_g1tail{par}:")
        for j in range(4): dpiece(12, "s39", VB[par], j, 0)
        k0pf()
        if par == 0: a("s_cmp_eq_u32 s31, 0\ns_cbranch_scc1 L_k2_g1t0")
        pre(PVI, par ^ 1, par ^ 1)
        MM(PVI, par ^ 1, par ^ 1, None, False)
        if par == 0: a("L_k2_g1t0:")
        a("s_nop 7")
        mask(SS[par])
        A, A2, B = SM_parts(SS[par])
        for x in A: a(x)
        a(A2)
        for x in B: a(x)
        a("s_waitcnt vmcnt(0)\ns_barrier")
        pre(PVI, par, par ^ 1)
        MM(PVI, par, par ^ 1, None, False)
        if par == 0: a("s_branch L_k2_merge")
    a("L_k2_merge:")
    S = SS[0]
    a(f"""
    s_nop 15
    v_mov_b32 v25, v{VL}
    s_nop 1
    v_permlane32_swap_b32 v{VL}, v25
    s_nop 1
    v_add_f32 v{VL}, v{VL}, v25
    s_lshl_b32 s3, s26, 13
    s_add_u32 s3, s3, 65536
    v_lshlrev_b32 v5, 4, v2
    v_add_u32 v5, s3, v5
    s_lshl_b32 s3, s26, 9
    v_lshlrev_b32 v6, 2, v2
    v_add_u32 v6, s3, v6
    s_xor_b32 s37, s26, 4
    s_barrier
    ds_write_b32 v6, v{VM} offset:32768
    ds_write_b32 v6, v{VL} offset:33024
    s_cmp_eq_u32 s27, 0
    s_cbranch_scc1 L_k2_m0
    """)
    def merge(g):
        lw = a.label("mw")
        keep = O + (0 if g == 0 else 32); send = O + (32 if g == 0 else 0)
        for q in range(8): a(f"ds_write_b128 v5, {vr(send+q*4,4)} offset:{q*1024}")
        a(f"""
        v_xor_b32 v5, 0x8000, v5
        v_xor_b32 v6, 0x800, v6
        s_waitcnt lgkmcnt(0)
        s_barrier
        ds_read_b32 v24, v6 offset:32768
        ds_read_b32 v25, v6 offset:33024
        """)
        for q in range(8): a(f"ds_read_b128 {vr(S+q*4,4)}, v5 offset:{q*1024}")
        a(f"""
        s_waitcnt lgkmcnt(8)
        v_max_f32 v26, v{VM}, v24
        v_sub_f32 v27, v{VM}, v26
        v_sub_f32 v28, v24, v26
        v_exp_f32 v27, v27
        v_exp_f32 v28, v28
        s_nop 0
        v_mul_f32 v29, v27, v{VL}
        v_fma_f32 v29, v28, v25, v29
        v_rcp_f32 v29, v29
        s_nop 0
        v_mul_f32 v27, v27, v29
        v_mul_f32 v28, v28, v29
        s_lshl_b32 s3, s29, 2
        s_add_u32 s3, s3, s28
        s_mul_i32 s3, s3, {36*8192}
        s_lshl_b32 s37, s24, 13
        s_add_u32 s3, s3, s37
        s_add_u32 s3, s3, {g*4096}
        v_lshlrev_b32 v5, 4, v2
        s_waitcnt lgkmcnt(0)
        s_cmp_eq_u32 s36, 0
        s_cbranch_scc1 {lw}
        s_waitcnt vmcnt(0)
        {lw}:
        """)
        for i in range(32):
            a(f"v_mul_f32 v{keep+i}, v27, v{keep+i}\nv_fma_f32 v{keep+i}, v28, v{S+i}, v{keep+i}")
        for q in range(4):
            for p in range(4):
                a(f"v_cvt_pk_bf16_f32 v{P+q*4+p}, v{keep+q*8+2*p}, v{keep+q*8+2*p+1}")
            a(f"buffer_store_dwordx4 {vr(P+q*4,4)}, v5, s[20:23], s3 offen offset:{q*1024}")
    merge(1)
    a("s_branch L_k2_mdone\nL_k2_m0:")
    merge(0)
    a("L_k2_mdone:")
    if INSTR:
        a(f"""
        s_cmp_lg_u32 s36, 0
        s_cbranch_scc1 L_nodump
        s_lshl_b32 s3, s2, 3
        s_add_u32 s3, s3, s26
        s_lshl_b32 s3, s3, 8
        v_lshlrev_b32 v5, 2, v2
        v_add_u32 v5, s3, v5
        s_add_u32 s64, s4, {hex(100<<20)}
        s_addc_u32 s65, s5, 0
        s_mov_b32 s66, 0x1000000
        s_mov_b32 s67, 0x00020000
        buffer_store_dword v244, v5, s[64:67], 0 offen
        L_nodump:
        """)
    a("""
    s_barrier
    s_add_u32 s36, s36, 1
    s_cmp_lt_u32 s36, 2
    s_cbranch_scc1 L_k2_pass
    """)
    a("L_k2_end:\ns_endpgm")
    return a.text()
```

```python
from common import *
from gemm import *
import k2
import os
NWG1 = 256
def pf(a):
    if os.environ.get("NOPF") == "1": return
    l = a.label("pf")
    a(f"""
    s_lshl_b32 s70, s2, 3
    s_add_u32 s70, s70, s42
    s_cmp_ge_u32 s70, 1920
    s_cbranch_scc1 {l}
    s_sub_u32 s71, s70, 512
    s_mov_b32 s74, 0x400000
    s_cmp_lt_u32 s70, 512
    s_cselect_b32 s72, s64, s66
    s_cselect_b32 s73, s65, s67
    s_cselect_b32 s74, 0x200000, s74
    s_cselect_b32 s71, s70, s71
    s_sub_u32 s3, s70, 1536
    s_cmp_ge_u32 s70, 1536
    s_cselect_b32 s72, s68, s72
    s_cselect_b32 s73, s69, s73
    s_cselect_b32 s74, 0x180000, s74
    s_cselect_b32 s71, s3, s71
    s_mov_b32 s75, 0x00020000
    s_lshl_b32 s71, s71, 12
    v_lshlrev_b32 v6, 6, v2
    buffer_load_dword v240, v6, s[72:75], s71 offen
    {l}:
    s_cmp_lg_u32 s70, 1920
    s_cbranch_scc1 {l}b
    s_movk_i32 s78, 16384
    s_mov_b32 s79, 0x00020000
    s_movk_i32 s82, 1024
    s_mov_b32 s83, 0x00020000
    v_lshlrev_b32 v6, 7, v2
    s_movk_i32 s3, 8192
    buffer_load_dword v241, v6, s[76:79], 0 offen
    buffer_load_dword v242, v6, s[76:79], s3 offen
    buffer_load_dword v243, v6, s[80:83], 0 offen
    {l}b:
    """)
def gen_k1():
    a = Asm()
    ACC = 64; XF = 192; WF = 224
    a(f"""
    s_cmp_ge_u32 s2, {NWG1}
    s_cbranch_scc1 L_k1_end
    s_load_dwordx8 s[4:11], s[0:1], 8
    s_load_dwordx2 s[20:21], s[0:1], 104
    s_load_dwordx2 s[64:65], s[0:1], 0
    s_load_dwordx2 s[66:67], s[0:1], 16
    s_load_dwordx2 s[68:69], s[0:1], 56
    s_load_dwordx2 s[76:77], s[0:1], 64
    s_load_dwordx2 s[80:81], s[0:1], 80
    s_and_b32 s40, s2, 7
    s_lshl_b32 s40, s40, 2
    s_bfe_u32 s3, s2, 0x20003
    s_add_u32 s40, s40, s3
    s_lshr_b32 s41, s2, 5
    v_lshrrev_b32 v1, 6, v0
    s_nop 0
    v_readfirstlane_b32 s42, v1
    v_and_b32 v2, 63, v0
    s_lshr_b32 s45, s40, 4
    s_and_b32 s44, s40, 15
    s_lshl_b32 s44, s44, 9
    s_lshr_b32 s48, s42, 2
    s_and_b32 s49, s42, 3
    s_lshl_b32 s46, s42, 5
    s_lshl_b32 s47, s41, 8
    s_add_u32 s46, s46, s47
    s_lshl_b32 s47, s48, 7
    s_waitcnt lgkmcnt(0)
    s_mov_b32 s24, s4
    s_mov_b32 s25, s5
    s_mov_b32 s26, 0x200000
    s_mov_b32 s27, 0x00020000
    s_cmp_eq_u32 s45, 0
    s_cselect_b32 s28, s8, s10
    s_cselect_b32 s29, s9, s11
    s_mov_b32 s30, 0x400000
    s_mov_b32 s31, 0x00020000
    s_mov_b32 s32, s20
    s_mov_b32 s33, s21
    s_mov_b32 s34, 0x10000000
    s_mov_b32 s35, 0x00020000
    s_mov_b32 s52, {8192*32}
    """)
    gemm_setup(a, "s46", "s47")
    a("""
    s_lshr_b32 s46, s49, 1
    s_lshl_b32 s46, s46, 13
    v_add_u32 v4, s46, v4
    s_and_b32 s46, s49, 1
    s_lshl_b32 s46, s46, 1
    """)
    for nb in range(2):
        a(f"s_add_u32 s47, s46, {nb}\nv_xor_b32 v5, s47, v3\nv_lshl_add_u32 v{RW+nb}, v5, 6, v4")
    a("""
    v_lshrrev_b32 v4, 4, v2
    v_and_b32 v5, 15, v2
    v_lshlrev_b32 v6, 2, v4
    v_xor_b32 v5, v5, v6
    v_lshlrev_b32 v5, 4, v5
    s_lshl_b32 s46, s48, 8
    s_add_u32 s46, s46, s44
    v_add_u32 v5, s46, v5
    s_lshl_b32 s46, s49, 3
    v_add_u32 v4, s46, v4
    """)
    for i in range(2):
        a(f"v_add_u32 v6, {4*i}, v4\nv_lshl_add_u32 v{VOW+i}, v6, 13, v5")
    PFK = int(os.environ.get("PFK", "-1"))
    if PFK == -2: pf(a)
    gemm_prologue(a)
    if PFK == -1: pf(a)
    for c in range(8): a(f"v_mov_b32 v{48+c}, v{RX+c}")
    for c in range(2): a(f"v_mov_b32 v{56+c}, v{RW+c}")
    xq, wq = gemm_pieces(a, True, 2)
    def mk(sfx):
        def ex(kk, s, n):
            if (kk, s, n) == (13, 0, 1): k2.qpro_setup(a, sfx)
            if kk == 13 and s == 0 and n in (3, 4, 5, 6): xq((n-3)//2, (n-3)%2)
            if kk in (13, 14) and s == 1 and n in (2, 4): wq(kk-13, (n-2)//2)
            if kk == 15 and s == 0 and n in (1, 2, 3, 4): xq(2 + (n-1)//2, (n-1)%2)
        return ex
    barx = lambda kk: {13: (14, 14), 14: (14, 13)}.get(kk)
    if os.environ.get("SPF") == "1": a("""
    s_lshl_b32 s70, s2, 3
    s_add_u32 s70, s70, s42
    s_cmp_ge_u32 s70, 1280
    s_cbranch_scc1 L_k1_npf0
    s_sub_u32 s71, s70, 256
    s_mov_b32 s74, 0x400000
    s_cmp_lt_u32 s70, 256
    s_cselect_b32 s72, s4, s8
    s_cselect_b32 s73, s5, s9
    s_cselect_b32 s74, 0x200000, s74
    s_cselect_b32 s71, s70, s71
    s_sub_u32 s3, s70, 768
    s_cmp_ge_u32 s70, 768
    s_cselect_b32 s72, s10, s72
    s_cselect_b32 s73, s11, s73
    s_cselect_b32 s71, s3, s71
    s_mov_b32 s75, 0x00020000
    s_lshl_b32 s71, s71, 13
    v_lshlrev_b32 v240, 7, v2
    buffer_load_dword v240, v240, s[72:75], s71 offen
    L_k1_npf0:
    """)
    a("""
    s_and_b32 s57, s40, 15
    s_lshl_b32 s57, s57, 1
    s_lshr_b32 s46, s49, 1
    s_add_u32 s57, s57, s46
    s_and_b32 s49, s49, 1
    """)
    if os.environ.get("TLB", "0") == "1": a(f"""
    s_lshl_b32 s84, s57, 19
    s_lshl_b32 s85, s45, 24
    s_add_u32 s84, s84, s85
    s_add_u32 s84, s84, {hex(WS_K)}
    s_lshl_b32 s85, s41, 16
    s_add_u32 s84, s84, s85
    s_lshl_b32 s85, s48, 15
    s_add_u32 s84, s84, s85
    v_lshlrev_b32 v240, 9, v2
    buffer_load_dword v240, v240, s[32:35], s84 offen
    """)
    a("""
    s_cmp_eq_u32 s45, 1
    s_cbranch_scc1 L_k1_vtype
    """)
    a(f"""
    s_lshl_b32 s46, s57, 19
    s_add_u32 s46, s46, {hex(WS_K)}
    s_lshl_b32 s47, s41, 16
    s_add_u32 s46, s46, s47
    s_lshl_b32 s47, s48, 15
    s_add_u32 s46, s46, s47
    s_lshl_b32 s47, s49, 12
    s_add_u32 s46, s46, s47
    v_lshlrev_b32 v5, 4, v2
    """)
    a("s_mov_b32 s90, s46\nv_mov_b32 v14, v5\nv_add_u32 v15, 2048, v5")
    gemm_core(a, 4, [(0, 0), (1, 0)], ACC, XF, WF, False, mk('k'), rx=48, rw=56, barx=barx)
    for mb in range(4):
        for nb in range(2):
            for hf in range(2):
                b = ACC + (mb*2+nb)*16 + hf*8
                t = k2.HOME[mb*4+nb*2+hf]
                for p in range(4):
                    a(f"v_cvt_pk_bf16_f32 v{t+p}, v{b+2*p}, v{b+2*p+1}")
    a("s_branch L_k1_q")
    a("L_k1_vtype:")
    a(f"""
    s_lshl_b32 s46, s57, 19
    s_add_u32 s46, s46, {hex(WS_V)}
    s_lshl_b32 s47, s41, 16
    s_add_u32 s46, s46, s47
    s_lshl_b32 s47, s48, 15
    s_add_u32 s46, s46, s47
    s_lshl_b32 s47, s49, 11
    s_add_u32 s46, s46, s47
    v_lshlrev_b32 v5, 4, v2
    """)
    a("s_mov_b32 s90, s46\nv_mov_b32 v14, v5\nv_add_u32 v15, 4096, v5")
    gemm_core(a, 4, [(0, 0), (1, 0)], ACC, XF, WF, True, mk('v'), rx=48, rw=56, barx=barx)
    for mb in range(4):
        for hf in range(2):
            for nb in range(2):
                b = ACC + (mb*2+nb)*16 + hf*8
                t = k2.HOME[mb*4+hf*2+nb]
                for p in range(4):
                    a(f"v_cvt_pk_bf16_f32 v{t+p}, v{b+2*p}, v{b+2*p+1}")
    a("L_k1_q:\ns_barrier")
    for i in range(2): wq(2, i)
    k2.qpro(a)
    a("L_k1_end:\ns_endpgm")
    return a.text()
```
